```python
import torch

def _softmax(x, axis=-1):
    return torch.softmax(x, dim=axis)
def _gelu(x):
    return torch.nn.functional.gelu(x, approximate="tanh")
def _silu(x):
    return torch.nn.functional.silu(x)
def _sigmoid(x):
    return torch.sigmoid(x)
def _layernorm(x, axis=-1, eps=1e-5):
    m = x.mean(dim=axis, keepdim=True)
    v = x.var(dim=axis, keepdim=True, unbiased=False)
    return (x - m) / torch.sqrt(v + eps)
def _scatter_add(tgt, idx, src, axis=0):
    return tgt.clone().index_add_(axis, idx, src)
def _segment_sum(src, seg, n):
    out = torch.zeros((n,) + src.shape[1:], dtype=src.dtype)
    return out.index_add_(0, seg, src)
def _pad(x, pw):
    flat = tuple(v for pair in reversed(pw) for v in pair)
    return torch.nn.functional.pad(x, flat)

kernel_name = 'recurrent_scan__spectral_gfnet__dense_activation_relu__prompt'

def setup_inputs():

    _w = (lambda a: (lambda t: t.to(torch.bfloat16) if t.is_floating_point() else t)(torch.as_tensor(a)))
    def _A_setup():
        B, S, D = 1, 2048, 640
        Df = D // 2 + 1
        return {
            "x": _w((lambda *s: torch.randn(*s, dtype=torch.bfloat16) * 0.05)(B, S, D)),
            "w_r": _w((lambda *s: torch.randn(*s, dtype=torch.bfloat16) * 0.05)(S, Df) * 0.02),
            "w_i": _w((lambda *s: torch.randn(*s, dtype=torch.bfloat16) * 0.1)(S, Df) * 0.02),
        }
    _A_in = _A_setup()

    def _B_setup():
        B, S, D, Dff = 1, 2048, 640, 1728
        return {
            "x": _w((lambda *s: torch.randn(*s, dtype=torch.bfloat16) * 0.05)(B, S, D)),
            "w1": _w((lambda *s: torch.randn(*s, dtype=torch.bfloat16) * 0.05)(D, Dff)),
            "w2": _w((lambda *s: torch.randn(*s, dtype=torch.bfloat16) * 0.05)(Dff, D)),
        }
    _B_in = _B_setup()

    return {
        "A_x": _A_in["x"],
        "A_w_r": _A_in["w_r"],
        "A_w_i": _A_in["w_i"],
        "B_x": _B_in["x"],
        "B_w1": _B_in["w1"],
        "B_w2": _B_in["w2"],
    }

def reference(A_x, A_w_r, A_w_i, B_x, B_w1, B_w2):
    def _A_ref(x, w_r, w_i):
        B, S, D = x.shape
        X = (lambda x, axes=(-2,-1): torch.fft.rfft2(x.float(), dim=axes))(x, axes=(-2, -1))
        W = w_r + 1j * w_i
        X = X * W
        y = (lambda x, s, axes=(-2,-1): torch.fft.irfft2(x, s=s, dim=axes).to(torch.bfloat16))(X, (S, D), axes=(-2, -1))
        return y

    def _B_ref(x, w1, w2):
        h = torch.einsum("bsd,df->bsf", x, w1)
        zero = torch.zeros_like(h)
        h = torch.maximum(h, zero)
        return torch.einsum("bsf,fd->bsd", h, w2)

    x = A_x
    xn = _layernorm(x, axis=-1)
    s = _A_ref(xn, A_w_r, A_w_i)
    g = _silu(_B_ref(xn, B_w1, B_w2))
    return x + s * g
```

```python
import re, struct


def f2u(x):
    return struct.unpack("<I", struct.pack("<f", x))[0]


def fl(x):
    return "0x%08x" % f2u(x)


def V(n, c=1):
    return f"v{n}" if c == 1 else f"v[{n}:{n+c-1}]"


def A(n, c=1):
    return f"a{n}" if c == 1 else f"a[{n}:{n+c-1}]"


def S(n, c=1):
    return f"s{n}" if c == 1 else f"s[{n}:{n+c-1}]"


class K:
    def __init__(self):
        self.L = []
        self.nlab = 0
        self.vm = []
        self.lg = []
        self.vid = 0

    def __call__(self, s=""):
        for line in s.split("\n"):
            line = line.strip()
            if line:
                self.L.append(line)

    def lab(self, base="L"):
        self.nlab += 1
        return f"{base}{self.nlab}"

    def vmem(self, s, opt=False):
        self(s)
        self.vid += 1
        self.vm.append((self.vid, opt))
        return self.vid

    def wait_vm(self, tok):
        ids = [i for i, _ in self.vm]
        if tok not in ids:
            return
        p = ids.index(tok)
        n = sum(1 for _, o in self.vm[p + 1:] if not o)
        n = min(n, 63)
        self(f"s_waitcnt vmcnt({n})")
        self.vm = self.vm[p + 1:]

    def drain_vm(self):
        self("s_waitcnt vmcnt(0)")
        self.vm = []

    def last_vm(self):
        return self.vm[-1][0] if self.vm else None

    def ds(self, s, opt=False):
        self(s)
        self.vid += 1
        self.lg.append((self.vid, opt))
        return self.vid

    def wait_lg(self, tok):
        ids = [i for i, _ in self.lg]
        if tok not in ids:
            return
        p = ids.index(tok)
        n = sum(1 for _, o in self.lg[p + 1:] if not o)
        n = min(n, 15)
        self(f"s_waitcnt lgkmcnt({n})")
        self.lg = self.lg[p + 1:]

    def drain_lg(self):
        self("s_waitcnt lgkmcnt(0)")
        self.lg = []

    def snapshot(self):
        return (list(self.vm), list(self.lg))

    def restore(self, snap):
        self.vm, self.lg = list(snap[0]), list(snap[1])

    def text(self):
        return "\n".join(fix_hazards(self.L)) + "\n"


_REG = re.compile(r"(?<![\w.])([vas])(?:(\d+)|\[(\d+):(\d+)\])")
TRANS = ("v_exp_", "v_log_", "v_rcp_", "v_rsq_", "v_sqrt_", "v_sin_", "v_cos_")


def regs(op):
    out = []
    for m in _REG.finditer(op):
        k = m.group(1)
        if m.group(2) is not None:
            out.append((k, int(m.group(2))))
        else:
            out += [(k, i) for i in range(int(m.group(3)), int(m.group(4)) + 1)]
    if re.search(r"\bvcc\b", op):
        out += [("s", 106), ("s", 107)]
    if re.search(r"\bm0\b", op):
        out.append(("s", 124))
    if re.search(r"\bexec\b", op):
        out += [("s", 126), ("s", 127)]
    return out


class I:
    def __init__(self, text):
        self.text = text
        t = text.split(";")[0].strip()
        self.label = None
        self.kind = "other"
        self.w = set()
        self.r = set()
        self.states = 1
        self.target = None
        self.uncond = False
        self.end = False
        if t.endswith(":"):
            self.label = t[:-1]
            self.kind = "label"
            self.states = 0
            return
        if t.startswith("."):
            self.kind = "dir"
            self.states = 0
            return
        p = t.split(None, 1)
        mn = p[0]
        self.mn = mn
        ops = [o.strip() for o in p[1].split(",")] if len(p) > 1 else []
        ops2 = []
        depth = 0
        for o in ops:
            if depth > 0:
                ops2[-1] += "," + o
            else:
                ops2.append(o)
            depth += o.count("[") - o.count("]")
        ops = ops2
        self.ops = ops
        if mn == "s_nop":
            self.states = int(ops[0], 0) + 1
            self.kind = "nop"
        elif mn == "s_endpgm":
            self.end = True
        elif mn == "s_branch":
            self.target = ops[0]
            self.uncond = True
        elif mn.startswith("s_cbranch"):
            self.target = ops[0]
        elif mn.startswith("v_mfma"):
            self.kind = "mfma"
            self.passes = 8 if "32x32x16" in mn else 4 if "16x16x32" in mn else None
            assert self.passes, mn
            self.D = set(regs(ops[0]))
            self.AB = set(regs(ops[1])) | set(regs(ops[2]))
            self.C = set(regs(ops[3]))
            self.w = self.D
            self.r = self.AB | self.C
        elif mn.startswith("v_"):
            self.kind = "valu"
            self.trans = mn.startswith(TRANS)
            self.dpp = "_dpp" in mn or "row_" in t or "quad_perm" in t
            self.perml = mn.startswith("v_permlane")
            self.rdlane = mn.startswith("v_readlane") or mn.startswith("v_readfirstlane")
            self.w = set(regs(ops[0]))
            srcs = ops[1:]
            if mn.startswith(("v_add_co", "v_addc_co", "v_sub_co", "v_subb_co")):
                self.w |= set(regs(ops[1]))
                srcs = ops[2:]
            for o in srcs:
                self.r |= set(regs(o))
            if mn.startswith(("v_fmac", "v_dot2c", "v_pk_fmac")) or self.dpp:
                self.r |= set(regs(ops[0]))
            if self.perml:
                self.w |= set(regs(ops[1]))
                self.r |= set(regs(ops[0]))
        elif mn.startswith("buffer_") or mn.startswith("global_"):
            self.kind = "vmem"
            self.lds = bool(re.search(r"\blds\b", t))
            self.store = "store" in mn or "atomic" in mn
            self.wide = self.store and ("x4" in mn or "x3" in mn)
            if self.lds or mn in ("buffer_inv", "buffer_wbl2"):
                for o in ops:
                    self.r |= set(regs(o))
                self.r.add(("s", 124))
                self.data = set()
            elif self.store:
                for o in ops:
                    self.r |= set(regs(o))
                self.data = set(regs(ops[0]))
            else:
                self.w = set(regs(ops[0]))
                for o in ops[1:]:
                    self.r |= set(regs(o))
                self.data = set()
        elif mn.startswith("ds_"):
            self.kind = "ds"
            if "read" in mn or "permute" in mn or "swizzle" in mn:
                self.w = set(regs(ops[0]))
                for o in ops[1:]:
                    self.r |= set(regs(o))
            else:
                for o in ops:
                    self.r |= set(regs(o))
        elif mn.startswith("s_"):
            self.kind = "salu"
            if ops and not mn.startswith(("s_cmp", "s_waitcnt", "s_barrier", "s_sleep", "s_setprio", "s_bitcmp")):
                self.w = set(regs(ops[0]))
                for o in ops[1:]:
                    self.r |= set(regs(o))
                if "saveexec" in mn:
                    self.w |= {("s", 126), ("s", 127)}
            else:
                for o in ops:
                    self.r |= set(regs(o))


def isv(x):
    return x[0] in "va"


def need(p, c):
    n = 0
    if p.kind == "valu":
        wv = {x for x in p.w if isv(x)}
        ws = {x for x in p.w if x[0] == "s"}
        if c.kind == "mfma" and wv & c.r:
            n = max(n, 2)
        if c.kind == "valu":
            if wv & c.r:
                if c.rdlane:
                    n = max(n, 1)
                if c.dpp or c.perml:
                    n = max(n, 2)
                if p.trans and not c.trans:
                    n = max(n, 1)
            if ws & c.r:
                n = max(n, 4 if c.rdlane else 2)
        if c.kind in ("vmem",) and ws & c.r:
            n = max(n, 5)
        if c.kind in ("vmem", "ds") and p.trans and wv & c.r:
            n = max(n, 1)
        if c.kind == "salu" and ws & c.r:
            n = max(n, 1)
    elif p.kind == "mfma":
        big = 12 if p.passes == 8 else 8
        if c.kind in ("valu", "vmem", "ds") and p.D & (c.r | c.w):
            n = max(n, big)
        if c.kind == "valu" and p.C & c.w:
            n = max(n, 7 if p.passes == 8 else 3)
        if c.kind == "mfma":
            if p.D & c.AB:
                n = max(n, big)
            if p.D & c.C and not (p.D == c.C and p.passes == c.passes):
                n = max(n, big - 2)
            if p.D & c.D and not (p.D == c.C and p.passes == c.passes):
                n = max(n, big - 2)
    elif p.kind == "vmem":
        if p.wide and p.data & c.w:
            n = max(n, 2 if c.kind == "valu" else 1)
    elif p.kind == "salu":
        if ("s", 124) in p.w and c.kind == "vmem" and c.lds:
            n = max(n, 1)
    return n


def fix_hazards(lines):
    ins = [I(t) for t in lines]
    total = 0
    while True:
        labels = {x.label: i for i, x in enumerate(ins) if x.label}
        ins_at = {}
        for i, p in enumerate(ins):
            if p.kind not in ("valu", "mfma", "vmem", "salu"):
                continue
            if p.kind == "vmem" and not p.wide:
                continue
            if p.kind == "salu" and ("s", 124) not in p.w:
                continue
            lim = 12 if p.kind == "mfma" else 5
            stack = [(i + 1, 0)]
            if p.target:
                stack.append((labels[p.target], 0))
            seen = {}
            while stack:
                j, d = stack.pop()
                while j < len(ins) and d < lim:
                    if seen.get(j, 99) <= d:
                        break
                    seen[j] = d
                    c = ins[j]
                    if c.kind not in ("label", "dir", "nop"):
                        n = need(p, c)
                        if n > d:
                            ins_at[j] = max(ins_at.get(j, 0), n - d)
                    if c.end:
                        break
                    d += c.states
                    if c.target:
                        stack.append((labels[c.target], d))
                        if c.uncond:
                            break
                    j += 1
        if not ins_at:
            break
        out = []
        last = -100
        for j, c in enumerate(ins):
            if j in ins_at and j - last > 12:
                out.append(I(f"s_nop {ins_at[j]-1}"))
                total += ins_at[j]
                last = j
            out.append(c)
        ins = out
    fix_hazards.total = total
    return [x.text for x in ins]
```

```python
import math, sys
import numpy as np
from kf import *

KN = "recurrent_scan__spectral_gfnet__dense_activation_relu__prompt_kernel"

WS_GEN = 0
FS = 16
WS_F1 = 0x1000
WS_FH = 0x3000
WS_FZ = 0x5000
WS_ST = 0x10000
PFB = 161 * 128
WS_PF = 0x100000
WS_W2 = 0x700000
WS_H = 0xA00000
WS_Z = 0x1200000
WS_STAMP = 0x2000000
WS_SIZE = 268435456

SLOT = 32768
L_OUT = 98304
L_XN = 119040
L_RP = 129280
L_CS = 61440
L_G = 0
L_RED = 0
L_Z = 65536
L_INB = 65536
L_EXC = 98304
L_ZST = 114688
ZSTU = 32 * 272
LDS_BYTES = 163840

sX, sWS, sWR, sWI, sW1, sW2, sOUT, sTAB = 4, 8, 12, 16, 20, 24, 28, 32
sWAVE, sC, sXCD, sIDX, sTAG, sRB, sU0, sWIDE, sJOB, sRB2, sJ, sROT = range(36, 48)
T0, T1, T2, T3, T4, T5, T6, T7 = range(48, 56)
sPOLL = 56
sEX = 58
sST = 60
sM = 62
sWROW = 64
sSTAMP = 74

SPIN_MAX = 200000


def pi_(m):
    return (m & ~12) | ((m & 4) << 1) | ((m & 8) >> 1)


def bf16(x):
    u = np.asarray(x, dtype=np.float32).view(np.uint32).astype(np.uint64)
    return (((u + 0x7FFF + ((u >> 16) & 1)) >> 16) & 0xFFFF).astype(np.uint16)


def tables():
    fr = []
    for part in range(2):
        for t in range(3):
            f = np.zeros((64, 8))
            for l in range(64):
                n, h = l & 31, l >> 5
                f1, e1 = n >> 1, n & 1
                for j in range(8):
                    Q = 4 * t + 2 * h + (j >> 2)
                    if Q >= 10 or n >= 22 or Q // 5 != e1:
                        continue
                    d1 = 4 * (Q % 5) + (j & 3)
                    th = 2 * math.pi * ((d1 * f1) % 20) / 20
                    f[l, j] = math.cos(th) if part == 0 else -math.sin(th)
            fr.append(f)
    for kind in range(3):
        for t in range(2):
            f = np.zeros((64, 8))
            for l in range(64):
                a = pi_(l & 31)
                for j in range(8):
                    b = 16 * t + 8 * (l >> 5) + j
                    th = 2 * math.pi * ((a * b) % 32) / 32
                    f[l, j] = [math.cos(th), -math.sin(th), math.sin(th)][kind]
            fr.append(f)
    for hb in range(2):
        for kind in range(3):
            for tau in range(4):
                t = tau ^ (2 * hb)
                f = np.zeros((64, 8))
                for l in range(64):
                    a = 32 * hb + pi_(l & 31)
                    for j in range(8):
                        b = 16 * t + 8 * (l >> 5) + j
                        th = 2 * math.pi * ((a * b) % 64) / 64
                        f[l, j] = [math.cos(th), -math.sin(th), math.sin(th)][kind]
                fr.append(f)
    return fr


TAB_F20, TAB_F32, TAB_F64 = 0, 6 * 1024, 12 * 1024
TAB_BYTES = 36 * 1024


class Gen:
    def __init__(self, stop=None, stamps=False, **opt):
        self.k = K()
        self.stop = stop
        self.stamps = stamps
        self.nst = 0
        self.stn = []
        self.opt = dict(FLAG_AT=2, NPRE=6, ROT=1)
        self.opt.update(opt)

    def stamp(self, name):
        if not self.stamps:
            return
        k = self.k
        if name in self.stn:
            i = self.stn.index(name)
        else:
            i = len(self.stn)
            self.stn.append(name)
        assert sSTAMP + i <= 101
        k(f"s_memrealtime s[{sST}:{sST+1}]")
        k.drain_lg()
        k(f"s_mov_b32 s{sSTAMP+i}, s{sST}")

    def pi_v(self, d, s, t):
        k = self.k
        k(f"v_and_b32 v{d}, 0x13, v{s}")
        k(f"v_bfe_u32 v{t}, v{s}, 2, 1")
        k(f"v_lshl_or_b32 v{d}, v{t}, 3, v{d}")
        k(f"v_bfe_u32 v{t}, v{s}, 3, 1")
        k(f"v_lshl_or_b32 v{d}, v{t}, 2, v{d}")

    def poll(self, base, nflags_regs, name):
        k = self.k
        L = k.lab("L_poll")
        Ld = k.lab("L_polld")
        k(f"s_mov_b32 s{sPOLL}, 0")
        k(f"{L}:")
        for i, (ar, dr) in enumerate(nflags_regs):
            k(f"buffer_load_dword v{dr}, v{ar}, s[{sWS}:{sWS+3}], 0 offen sc1")
        k("s_waitcnt vmcnt(0)")
        k.vm = []
        for i, (ar, dr) in enumerate(nflags_regs):
            if i == 0:
                k(f"v_cmp_ne_u32 vcc, s{sTAG}, v{dr}")
            else:
                k(f"v_cmp_ne_u32 s[{sM}:{sM+1}], s{sTAG}, v{dr}")
                k(f"s_or_b64 vcc, vcc, s[{sM}:{sM+1}]")
        k(f"s_add_u32 s{sPOLL}, s{sPOLL}, 1")
        k("s_cmp_eq_u64 vcc, 0")
        k(f"s_cbranch_scc1 {Ld}")
        k(f"s_cmp_lt_u32 s{sPOLL}, {SPIN_MAX}")
        k(f"s_cbranch_scc1 {L}")
        k(f"{Ld}:")

    def flag_store(self, soff_expr_reg, vtmp):
        k = self.k
        L = k.lab("L_fs")
        k(f"s_cmp_lg_u32 s{sWAVE}, 0")
        k(f"s_cbranch_scc1 {L}")
        k(f"v_mov_b32 v{vtmp}, s{sTAG}")
        k(f"v_mov_b32 v{vtmp+1}, 0")
        k("s_mov_b64 exec, 1")
        k.vmem(f"buffer_store_dword v{vtmp}, v{vtmp+1}, s[{sWS}:{sWS+3}], s{soff_expr_reg} offen sc1", opt=True)
        k("s_mov_b64 exec, -1")
        k(f"{L}:")

    def finish(self):
        k = self.k
        k("L_fin:")
        if self.stamps:
            self.stamp("end")
            k(f"s_cmp_lg_u32 s{sWAVE}, 0\ns_cbranch_scc1 L_end")
            k(f"s_lshl_b32 s{T0}, s2, 8\ns_add_u32 s{T0}, s{T0}, {WS_STAMP}\nv_mov_b32 v2, 0")
            k("s_mov_b64 exec, 1")
            for i in range(len(self.stn)):
                k(f"v_mov_b32 v3, s{sSTAMP+i}")
                k(f"buffer_store_dword v3, v2, s[{sWS}:{sWS+3}], s{T0} offen offset:{4*i}")
        k("L_end:")
        k("s_endpgm")

    def startup(self):
        k = self.k
        o = self.opt
        if self.stamps:
            for i in range(sSTAMP, 102):
                k(f"s_mov_b32 s{i}, 0")
        self.stamp("start")
        k("s_cmp_ge_u32 s2, 256\ns_cbranch_scc1 L_end")
        k(f"s_load_dwordx2 s[{sX}:{sX+1}], s[0:1], 0")
        k(f"s_load_dwordx2 s[{sWS}:{sWS+1}], s[0:1], 64")
        k(f"s_load_dwordx2 s[{sWR}:{sWR+1}], s[0:1], 8")
        k(f"s_load_dwordx2 s[{sWI}:{sWI+1}], s[0:1], 16")
        k(f"s_load_dwordx2 s[{sW1}:{sW1+1}], s[0:1], 32")
        k(f"s_load_dwordx2 s[{sW2}:{sW2+1}], s[0:1], 40")
        k(f"s_load_dwordx2 s[{sOUT}:{sOUT+1}], s[0:1], 48")
        k(f"v_lshrrev_b32 v2, 6, v0\nv_and_b32 v1, 63, v0")
        k(f"s_and_b32 s{sXCD}, s2, 7\ns_lshr_b32 s{sIDX}, s2, 3")
        k(f"v_readfirstlane_b32 s{sWAVE}, v2")
        k(f"s_lshl_b32 s{sC}, s{sXCD}, 5\ns_add_u32 s{sC}, s{sC}, s{sIDX}")
        k(f"s_and_b32 s{T0}, s{sC}, 7\ns_lshl_b32 s{T0}, s{T0}, 3\ns_lshl_b32 s{T1}, s{sWAVE}, 1\ns_add_u32 s{T0}, s{T0}, s{T1}")
        k(f"s_lshl_b32 s{T0}, s{T0}, 5\ns_lshr_b32 s{T1}, s{sC}, 3\ns_add_u32 s{T0}, s{T0}, s{T1}\ns_mul_i32 s{T0}, s{T0}, 1280")
        k("v_lshrrev_b32 v3, 5, v1")
        k("v_and_b32 v4, 31, v1")
        k("v_mul_u32_u24 v5, 40960, v3\nv_lshl_add_u32 v5, v4, 3, v5")
        k(f"s_mov_b32 s{sX+2}, 2621440\ns_mov_b32 s{sX+3}, 0x20000")
        k(f"s_mov_b32 s{sWS+2}, {WS_SIZE}\ns_mov_b32 s{sWS+3}, 0x20000")
        k(f"s_getpc_b64 s[{sTAB}:{sTAB+1}]")
        k("L_pc:")
        k(f"s_add_u32 s{sTAB}, s{sTAB}, tab_data-L_pc\ns_addc_u32 s{sTAB+1}, s{sTAB+1}, 0")
        k(f"s_mov_b32 s{sTAB+2}, {TAB_BYTES}\ns_mov_b32 s{sTAB+3}, 0x20000")
        k("v_lshlrev_b32 v6, 4, v1")
        k("s_waitcnt lgkmcnt(0)")
        self.t_x = [k.vmem(f"buffer_load_dwordx2 v[{10+2*i}:{11+2*i}], v5, s[{sX}:{sX+3}], s{T0} offen offset:{256*i}") for i in range(5)]
        k(f"s_load_dword s{sTAG}, s[{sWS}:{sWS+1}], {WS_GEN}")
        for i in range(12):
            k(f"s_movk_i32 s{T1}, {(i//4)*4096}") if i % 4 == 0 else None
            self.t_c = k.vmem(f"buffer_load_dwordx4 {A(4*i,4)}, v6, s[{sTAB}:{sTAB+3}], s{T1} offen offset:{(i%4)*1024}")
        for s_, n in ((sWR, 2048 * 642), (sWI, 2048 * 642), (sW1, 640 * 3456), (sW2, 1728 * 1280), (sOUT, 2621440)):
            k(f"s_mov_b32 s{s_+2}, {n}\ns_mov_b32 s{s_+3}, 0x20000")
        Lw3, Lj = k.lab("L_w3"), k.lab("L_rj")
        k(f"s_cmp_eq_u32 s{sWAVE}, 3\ns_cbranch_scc1 {Lw3}")
        k(f"s_and_b32 s{T1}, s{sC}, 1\ns_lshl_b32 s{T1}, s{T1}, 5\ns_lshr_b32 s{T2}, s{sC}, 3\ns_add_u32 s{T1}, s{T1}, s{T2}")
        k(f"s_bfe_u32 s{T2}, s{sC}, 0x10002\ns_lshl_b32 s{T2}, s{T2}, 10\ns_add_u32 s{T1}, s{T1}, s{T2}")
        k(f"s_bfe_u32 s{T2}, s{sC}, 0x10001\ns_lshl_b32 s{T2}, s{T2}, 8\ns_add_u32 s{T1}, s{T1}, s{T2}")
        k(f"s_mul_i32 s{sWROW}, s{T1}, 642")
        for i in range(1, 8):
            k(f"s_add_u32 s{sWROW+i}, s{sWROW}, {(8*(i>>2)+(i&3))*64*642}")
        k("v_min_u32 v7, 160, v0\nv_lshlrev_b32 v7, 2, v7\nv_min_u32 v7, 638, v7")
        for i in range(8):
            k.vmem(f"buffer_load_dword v{224+2*i}, v7, s[{sWR}:{sWR+3}], s{sWROW+i} offen", opt=True)
            k.vmem(f"buffer_load_dword v{225+2*i}, v7, s[{sWI}:{sWI+3}], s{sWROW+i} offen", opt=True)
        k(f"s_branch {Lj}")
        k(f"{Lw3}:")
        for n in range(5):
            k(f"v_add_u32 v7, {64*n}, v1\nv_mul_u32_u24 v8, 6554, v7\nv_lshrrev_b32 v8, 16, v8")
            k(f"v_mul_u32_u24 v9, 10, v8\nv_sub_u32 v7, v7, v9\nv_mul_u32_u24 v8, 1280, v8\nv_lshl_add_u32 v8, v7, 4, v8")
            k(f"v_cmp_lt_u32 vcc, 4, v7\nv_add_u32 v9, 560, v8\nv_cndmask_b32 v{224+n}, v8, v9, vcc")
        for uu in range(2):
            k(f"s_lshl_b32 s{T1}, s{sC}, 1\ns_add_u32 s{T1}, s{T1}, {uu}\ns_lshr_b32 s{T2}, s{T1}, 3\ns_and_b32 s{T1}, s{T1}, 7")
            k(f"s_mul_i32 s{T3}, s{T2}, 40960\ns_mul_i32 s{T4}, s{T1}, 80\ns_add_u32 s{T3}, s{T3}, s{T4}")
            k(f"s_mul_i32 s{T2}, s{T2}, 5120\ns_mul_i32 s{T1}, s{T1}, 276480\ns_add_u32 s{T1}, s{T1}, s{T2}\ns_add_u32 s{sWROW+uu}, s{T1}, {WS_W2}")
            for n in range(5):
                k(f"s_mov_b32 m0, {L_RP + uu*5120 + n*1024}")
                k.vmem(f"buffer_load_dwordx4 v{224+n}, s[{sW2}:{sW2+3}], s{T3} offen lds")
        k(f"s_lshl_b32 s{T1}, s{sIDX}, 9\nv_lshlrev_b32 v7, 7, v1\nv_add_u32 v7, s{T1}, v7")
        k(f"s_getpc_b64 s[{T4}:{T4+1}]")
        k("L_pc2:")
        k(f"s_sub_u32 s{T4}, s{T4}, L_pc2-{KN}\ns_subb_u32 s{T4+1}, s{T4+1}, 0")
        k(f"s_mov_b32 s{T4+2}, tab_end-{KN}\ns_mov_b32 s{T4+3}, 0x20000")
        k("s_mov_b64 exec, 0xf")
        for n in range(6):
            k(f"s_mov_b32 s{T1}, {n*16384}")
            k.vmem(f"buffer_load_dword v239, v7, s[{T4}:{T4+3}], s{T1} offen")
        k("s_mov_b64 exec, -1")
        k(f"{Lj}:")
        self.t_role = k.last_vm()
        k(f"s_lshr_b32 s{T1}, s{sXCD}, 1\ns_lshl_b32 s{sRB}, s{T1}, 2\ns_lshr_b32 s{T2}, s{sIDX}, 3\ns_add_u32 s{sRB}, s{sRB}, s{T2}")
        k(f"s_lshl_b32 s{sRB2}, s{T1}, 3\ns_lshr_b32 s{T3}, s{sIDX}, 2\ns_add_u32 s{sRB2}, s{sRB2}, s{T3}")
        k(f"s_and_b32 s{T3}, s{sXCD}, 1\ns_lshl_b32 s{sJ}, s{T3}, 2\ns_and_b32 s{T4}, s{sIDX}, 3\ns_add_u32 s{sJ}, s{sJ}, s{T4}")
        k(f"s_and_b32 s{T4}, s{sIDX}, 7")
        k(f"s_mul_i32 s{T5}, s{T4}, 3\ns_add_u32 s{T5}, s{T5}, 3\ns_mul_i32 s{T6}, s{T3}, 27\ns_add_u32 s{T5}, s{T5}, s{T6}")
        k(f"s_cmp_eq_u32 s{T5}, 39\ns_cselect_b32 s{T5}, 27, s{T5}")
        k(f"s_lshl_b32 s{T6}, s{T4}, 2\ns_mul_i32 s{T7}, s{T3}, 30\ns_add_u32 s{T6}, s{T6}, s{T7}")
        k(f"s_cmp_lt_u32 s{T4}, 3\ns_cselect_b32 s{sU0}, s{T6}, s{T5}\ns_cselect_b32 s{sWIDE}, 1, 0")
        k(f"s_mul_i32 s{T5}, s{sXCD}, 20\ns_mul_i32 s{T6}, s{T2}, 5\ns_add_u32 s{T5}, s{T5}, s{T6}\ns_add_u32 s{T5}, s{T5}, s{T4}\ns_sub_u32 s{T5}, s{T5}, 3")
        k(f"s_cmp_eq_u32 s{sC}, 0\ns_cselect_b32 s{T6}, 160, -1")
        k(f"s_cmp_eq_u32 s{sWIDE}, 1\ns_cselect_b32 s{sJOB}, s{T6}, s{T5}")
        if o["ROT"]:
            k(f"s_lshl_b32 s{T5}, s{T3}, 3\ns_add_u32 s{T5}, s{T5}, s{T4}\ns_mul_i32 s{T6}, s{sRB}, 3\ns_add_u32 s{T5}, s{T5}, s{T6}")
            k(f"s_mul_i32 s{T6}, s{T5}, 6554\ns_lshr_b32 s{T6}, s{T6}, 16\ns_mul_i32 s{T6}, s{T6}, 10\ns_sub_u32 s{sROT}, s{T5}, s{T6}")
        else:
            k(f"s_mov_b32 s{sROT}, 0")
        k(f"s_lshl_b32 s{T5}, s{sRB}, 1\ns_lshr_b32 s{T6}, s{sWAVE}, 1\ns_add_u32 s{T5}, s{T5}, s{T6}\ns_and_b32 s{T6}, s{sWAVE}, 1\ns_lshl_b32 s{T6}, s{T6}, 10")
        k(f"s_add_u32 s{T5}, s{T5}, s{T6}\ns_mul_i32 s{T5}, s{T5}, 1280")
        k("v_lshrrev_b32 v7, 3, v1\nv_mul_u32_u24 v8, 40960, v7\nv_lshrrev_b32 v9, 4, v1\nv_and_b32 v2, 7, v1\nv_xor_b32 v9, v9, v2")
        k(f"v_lshl_add_u32 v152, v9, 4, v8\nv_add_u32 v152, s{T5}, v152\nv_xor_b32 v153, 64, v152")
        k(f"s_lshr_b32 s{T5}, s{sU0}, 1\ns_lshl_b32 s{T5}, s{T5}, 7\ns_mul_i32 s{T6}, s{sWAVE}, {16*3456}\ns_add_u32 s{T5}, s{T5}, s{T6}")
        k("v_mul_u32_u24 v8, 3456, v7\nv_bfe_u32 v9, v1, 4, 1\nv_lshlrev_b32 v9, 2, v9\nv_xor_b32 v9, v9, v2")
        k(f"v_lshl_add_u32 v154, v9, 4, v8\nv_add_u32 v154, s{T5}, v154")
        self.t_chunk = {}
        for c in range(3):
            self.dma_chunk(c)
        self.stamp("issued")

    def dma_chunk_list(self, c):
        k = self.k
        slot = (c % 5) * SLOT
        out = []

        def pre():
            k(f"s_add_u32 s{T0}, s{sROT}, {c}\ns_cmp_ge_u32 s{T0}, 10\ns_cselect_b32 s{T1}, 10, 0\ns_sub_u32 s{T0}, s{T0}, s{T1}")
            k(f"s_lshl_b32 s{T1}, s{T0}, 7\ns_mul_i32 s{T2}, s{T0}, {64*3456}")
            k(f"s_lshl_b32 s{T3}, s{sWAVE}, 12\ns_lshl_b32 s{T6}, s{sWAVE}, 11")
        for n in range(4):
            def f(n=n):
                if n == 0:
                    pre()
                else:
                    k(f"s_add_u32 s{T1}, s{T1}, 327680")
                k(f"s_add_u32 m0, s{T3}, {slot + n*1024}")
                self.t_chunk[c] = k.vmem(f"buffer_load_dwordx4 v{152+(n&1)}, s[{sX}:{sX+3}], s{T1} offen lds")
            out.append(f)
        for n in range(4):
            def f(n=n):
                L, rg = n & 1, n >> 1
                k(f"s_add_u32 s{T7}, s{T2}, {rg*8*3456 + L*128}")
                k(f"s_add_u32 m0, s{T6}, {slot + 16384 + L*8192 + rg*1024}")
                self.t_chunk[c] = k.vmem(f"buffer_load_dwordx4 v154, s[{sW1}:{sW1+3}], s{T7} offen lds")
            out.append(f)
        return out

    def dma_chunk(self, c):
        for f in self.dma_chunk_list(c):
            f()

    def phase1_setup(self):
        k = self.k
        k("v_lshrrev_b32 v7, 1, v4\nv_cvt_f32_u32 v7, v7")
        k(f"v_mul_f32 v7, {fl(1/640)}, v7")
        k("v_lshlrev_b32 v8, 3, v3\nv_cvt_f32_u32 v8, v8\nv_mul_f32 v8, v8, v7")
        for i in range(16):
            g, r = i >> 2, i & 3
            d = 16 * (g >> 1) + 4 * (g & 1) + r
            k(f"v_fmamk_f32 v9, v7, {fl(float(d))}, v8")
            k(f"v_cos_f32 v{84+i}, v9")
            k(f"v_sin_f32 v{100+i}, v9")
        k(f"s_mul_i32 s{T0}, s{sWAVE}, 2560\ns_add_u32 s{T0}, s{T0}, {L_XN}")
        k(f"v_mul_u32_u24 v7, 1280, v3\nv_lshl_add_u32 v7, v4, 3, v7\nv_add_u32 v116, s{T0}, v7")
        k("v_bfe_u32 v7, v1, 2, 2\nv_lshlrev_b32 v7, 6, v7\nv_bfe_u32 v8, v1, 4, 1\nv_lshl_or_b32 v7, v8, 5, v7")
        k("v_and_b32 v8, 1, v1\nv_lshl_or_b32 v7, v8, 4, v7\nv_bfe_u32 v8, v1, 1, 1\nv_lshl_or_b32 v7, v8, 3, v7")
        k(f"v_add_u32 v118, s{T0}, v7\nv_lshl_add_u32 v117, v3, 9, v118")
        self.pi_v(7, 4, 8)
        k("v_mul_u32_u24 v8, 20, v7\nv_lshl_add_u32 v8, v3, 1, v8")
        k(f"s_lshl_b32 s{T0}, s{sWAVE}, 2\ns_add_u32 s{T0}, s{T0}, {L_OUT}")
        k("v_cmp_lt_u32 vcc, 15, v7\nv_mov_b32 v9, 0x80008000\nv_cndmask_b32 v220, 0, v9, vcc")
        for p in range(6):
            c0 = 4 * (p >> 1) + (p & 1)
            k(f"v_add_u32 v9, {c0}, v8")
            k(f"v_sub_u32 v2, 640, v9")
            k(f"v_lshl_add_u32 v119, v3, 1, {c0}")
            k(f"v_add_u32 v120, -1, v119\nv_cmp_gt_u32 vcc, 9, v120\nv_mov_b32 v120, 322\nv_cndmask_b32 v2, v120, v2, vcc")
            k(f"v_cmp_gt_u32 vcc, 321, v9\nv_cndmask_b32 v2, v2, v9, vcc")
            if p == 5:
                k(f"v_cmp_gt_u32 vcc, 11, v119\nv_cndmask_b32 v2, v120, v2, vcc")
            k("v_and_b32 v9, 1, v2\nv_lshlrev_b32 v9, 2, v9\nv_bfe_u32 v119, v2, 2, 3\nv_xor_b32 v9, v9, v119")
            k("v_lshrrev_b32 v2, 1, v2\nv_lshlrev_b32 v2, 7, v2\nv_lshl_add_u32 v2, v9, 4, v2")
            k(f"v_add_u32 v{208+p}, s{T0}, v2\nv_xor_b32 v{214+p}, 16, v{208+p}")
        k(f"s_lshl_b32 s{T0}, s{sWAVE}, 12")
        k("v_bfe_u32 v7, v1, 1, 3\nv_xor_b32 v7, v7, v3\nv_lshlrev_b32 v7, 4, v7\nv_lshl_add_u32 v7, v4, 7, v7")
        k(f"v_add_u32 v128, s{T0}, v7")
        for t in range(1, 4):
            k(f"v_xor_b32 v{128+t}, {32*t}, v128")
        k("v_bfe_u32 v7, v1, 2, 2\nv_lshl_add_u32 v7, v3, 3, v7\nv_lshlrev_b32 v7, 7, v7")
        k("v_bfe_u32 v8, v1, 3, 1\nv_lshl_or_b32 v7, v8, 6, v7\nv_bfe_u32 v8, v1, 4, 1\nv_lshl_or_b32 v7, v8, 5, v7")
        k("v_and_b32 v8, 1, v1\nv_lshl_or_b32 v7, v8, 4, v7\nv_bfe_u32 v8, v1, 1, 1\nv_lshl_or_b32 v7, v8, 3, v7")
        k(f"s_add_u32 s{T1}, s{sWIDE}, 3\ns_and_b32 s{T2}, s{sU0}, 1")
        for bi in range(4):
            k(f"s_add_u32 s{T3}, s{sWAVE}, {bi}\ns_cmp_ge_u32 s{T3}, s{T1}\ns_cselect_b32 s{T4}, s{T1}, 0\ns_sub_u32 s{T3}, s{T3}, s{T4}")
            k(f"s_cmp_ge_u32 s{T3}, s{T1}\ns_cselect_b32 s{T4}, s{T1}, 0\ns_sub_u32 s{T3}, s{T3}, s{T4}")
            k(f"s_mov_b32 s{sWROW+4+bi}, s{T3}") if False else None
            k(f"s_add_u32 s{T3}, s{T3}, s{T2}\ns_and_b32 s{T4}, s{T3}, 1\ns_lshl_b32 s{T4}, s{T4}, 6\ns_lshr_b32 s{T3}, s{T3}, 1\ns_lshl_b32 s{T3}, s{T3}, 13")
            k(f"s_add_u32 s{T3}, s{T3}, 16384\nv_xor_b32 v8, s{T4}, v7\nv_add_u32 v{132+bi}, s{T3}, v8")
        for i in range(8):
            k(f"v_add_u32 v{136+i}, 0x10000, v{128+i}\nv_add_u32 v{144+i}, 0x20000, v{128+i}")
        k("v_lshrrev_b32 v7, 4, v1\nv_xor_b32 v7, v7, v1\nv_and_b32 v7, 1, v7\nv_cmp_eq_u32 vcc, 0, v7\nv_mov_b32 v8, 0x3f803f80")
        k("v_cndmask_b32 v124, 0, v8, vcc\nv_mov_b32 v125, v124\nv_mov_b32 v126, v124\nv_mov_b32 v127, v124")

    def reduce32(self, r, t):
        k = self.k
        for sh in (8, 4, 2, 1):
            k(f"v_add_f32_dpp v{r}, v{r}, v{r} row_ror:{sh} row_mask:0xf bank_mask:0xf")
        k(f"v_mov_b32 v{t}, v{r}")
        k(f"v_permlane16_swap_b32 v{t}, v{r}")
        k(f"v_add_f32 v{r}, v{r}, v{t}")

    def phase1(self):
        k = self.k
        k.drain_lg()
        k(f"s_mul_i32 s{sTAG}, s{sTAG}, 1664525\ns_add_u32 s{sTAG}, s{sTAG}, 1013904223")
        k.wait_vm(self.t_x[-1])
        self.stamp("x")
        for i in range(10):
            k(f"v_lshlrev_b32 v{20+2*i}, 16, v{10+i}\nv_and_b32 v{21+2*i}, 0xffff0000, v{10+i}")
        k("v_pk_add_f32 v[8:9], v[20:21], v[22:23]\nv_pk_add_f32 v[10:11], v[24:25], v[26:27]")
        for i in range(4, 10, 2):
            k(f"v_pk_add_f32 v[8:9], v[8:9], v[{20+2*i}:{21+2*i}]\nv_pk_add_f32 v[10:11], v[10:11], v[{22+2*i}:{23+2*i}]")
        k("v_pk_add_f32 v[8:9], v[8:9], v[10:11]\nv_add_f32 v8, v8, v9")
        self.reduce32(8, 9)
        k(f"v_mul_f32 v8, {fl(1/640)}, v8")
        for i in range(10):
            k(f"v_pk_add_f32 v[{20+2*i}:{21+2*i}], v[{20+2*i}:{21+2*i}], v[8:9] op_sel_hi:[1,0] neg_lo:[0,1] neg_hi:[0,1]")
        k("v_pk_mul_f32 v[10:11], v[20:21], v[20:21]\nv_pk_mul_f32 v[12:13], v[22:23], v[22:23]")
        for i in range(2, 10, 2):
            k(f"v_pk_fma_f32 v[10:11], v[{20+2*i}:{21+2*i}], v[{20+2*i}:{21+2*i}], v[10:11]")
            k(f"v_pk_fma_f32 v[12:13], v[{22+2*i}:{23+2*i}], v[{22+2*i}:{23+2*i}], v[12:13]")
        k("v_pk_add_f32 v[10:11], v[10:11], v[12:13]\nv_add_f32 v10, v10, v11")
        self.reduce32(10, 11)
        k(f"v_mul_f32 v10, {fl(1/640)}, v10")
        k("v_cvt_pk_bf16_f32 v12, v8, v10")
        k("v_and_b32 v13, 0xffff0000, v12")
        k(f"v_add_f32 v13, {fl(1e-5)}, v13\nv_cvt_pk_bf16_f32 v13, v13, v13\nv_and_b32 v13, 0xffff0000, v13")
        k("v_sqrt_f32 v13, v13\nv_cvt_pk_bf16_f32 v13, v13, v13\nv_and_b32 v13, 0xffff0000, v13")
        k("v_rcp_f32 v14, v13\nv_lshlrev_b32 v15, 16, v12\nv_sub_f32 v15, v8, v15")
        k("v_mul_f32 v15, v15, v14")
        k("v_and_b32 v12, 0xffff, v12\nv_or_b32 v12, v12, v13")
        k(f"v_mov_b32 v13, s{sTAG}")
        for i in range(10):
            k(f"v_pk_fma_f32 v[{20+2*i}:{21+2*i}], v[{20+2*i}:{21+2*i}], v[14:15], v[14:15] op_sel:[0,0,1] op_sel_hi:[1,0,1]")
        for i in range(10):
            k(f"v_cvt_pk_bf16_f32 v{40+i}, v{20+2*i}, v{21+2*i}")
        for i in range(5):
            tw = k.ds(f"ds_write_b64 v116, v[{40+2*i}:{41+2*i}] offset:{256*i}")
        k(f"s_lshl_b32 s{T0}, s{sC}, 6\ns_lshl_b32 s{T1}, s{sWAVE}, 4\ns_add_u32 s{T0}, s{T0}, s{T1}\ns_add_u32 s{T0}, s{T0}, {WS_ST}")
        k("v_lshlrev_b32 v2, 3, v3")
        k("s_mov_b32 exec_lo, 1\ns_mov_b32 exec_hi, 1")
        k.vmem(f"buffer_store_dwordx2 v[12:13], v2, s[{sWS}:{sWS+3}], s{T0} offen sc1")
        k("s_mov_b64 exec, -1")
        k.wait_lg(tw)
        toks = []
        for t in range(3):
            for jj in range(2):
                ar = 117 if t < 2 else 118
                toks.append(k.ds(f"ds_read_b64_tr_b16 v[{40+4*t+2*jj}:{41+4*t+2*jj}], v{ar} offset:{t*1024+jj*256}"))
        k.wait_vm(self.t_c)
        for t in range(3):
            k.wait_lg(toks[2 * t + 1])
            for part in range(2):
                D = V(52 + 16 * part, 16)
                k(f"v_mfma_f32_32x32x16_bf16 {D}, {V(40+4*t,4)}, {A(12*part+4*t,4)}, {'0' if t == 0 else D}")
        self.stamp("dst1")
        for p in range(8):
            re, im, c, s = V(52 + 2 * p, 2), V(68 + 2 * p, 2), V(84 + 2 * p, 2), V(100 + 2 * p, 2)
            k(f"v_pk_mul_f32 v[8:9], {re}, {c}\nv_pk_mul_f32 v[10:11], {im}, {c}")
            k(f"v_pk_fma_f32 v[8:9], {im}, {s}, v[8:9]\nv_pk_fma_f32 v[10:11], {re}, {s}, v[10:11] neg_lo:[1,0,0] neg_hi:[1,0,0]")
            k(f"v_cvt_pk_bf16_f32 v{160+p}, v8, v9\nv_cvt_pk_bf16_f32 v{168+p}, v10, v11")
        Fr, Fi, NFi = 24, 32, 40
        first = True
        for t in range(2):
            for (dat, cre, cim) in ((160, Fr, Fi), (168, NFi, Fr)):
                k(f"v_mfma_f32_32x32x16_bf16 {V(176,16)}, {V(dat+4*t,4)}, {A(cre+4*t,4)}, {'0' if first else V(176,16)}")
                k(f"v_mfma_f32_32x32x16_bf16 {V(192,16)}, {V(dat+4*t,4)}, {A(cim+4*t,4)}, {'0' if first else V(192,16)}")
                first = False
        Lw3, Lj = k.lab("L_w3b"), k.lab("L_rjb")
        snap = k.snapshot()
        k(f"s_cmp_eq_u32 s{sWAVE}, 3\ns_cbranch_scc1 {Lw3}")
        k.wait_vm(self.t_role)
        k("v_cmp_gt_u32 vcc, 160, v0\nv_mov_b32 v2, 0x07060302\nv_mov_b32 v7, 0x05040100\nv_cndmask_b32 v7, v2, v7, vcc")
        for i in range(8):
            k(f"v_perm_b32 v{240+i}, v{225+2*i}, v{224+2*i}, v7")
            k(f"v_perm_b32 v{248+i}, v{225+2*i}, v{224+2*i}, v2")
        k(f"v_min_u32 v2, 161, v0\nv_bfe_u32 v7, v2, 1, 3\nv_lshlrev_b32 v7, 4, v7\nv_lshl_add_u32 v2, v2, 7, v7\nv_add_u32 v2, {L_OUT}, v2")
        for q, lc in enumerate((2, 3, 6, 7)):
            k(f"v_xor_b32 v7, {16*lc}, v2")
            k.ds(f"ds_write_b128 v7, {V(240+4*q,4)}", opt=True)
        k(f"s_branch {Lj}")
        k(f"{Lw3}:")
        st1 = k.snapshot()
        k.restore(snap)
        k(f"s_cmp_ge_u32 s{sC}, 216\ns_cbranch_scc1 {Lj}")
        k.wait_vm(self.t_role)
        k("v_lshrrev_b32 v2, 4, v1\nv_bfe_u32 v7, v1, 2, 2\nv_lshl_add_u32 v2, v2, 3, v7\nv_mul_u32_u24 v2, 160, v2")
        k(f"v_and_b32 v7, 3, v1\nv_lshl_add_u32 v2, v7, 3, v2\nv_add_u32 v2, {L_RP}, v2")
        k("v_bfe_u32 v7, v1, 1, 1\nv_lshl_add_u32 v7, v7, 6, v2")
        for uu in range(2):
            for b in range(5):
                for jj in range(2):
                    off = uu * 5120 + jj * 640 + (0, 32, 80, 112, 64)[b]
                    k.ds(f"ds_read_b64_tr_b16 {A(48+20*uu+4*b+2*jj,2)}, v{7 if b == 4 else 2} offset:{off}", opt=True)
            k("s_waitcnt lgkmcnt(0)")
            k(f"s_add_u32 s{T0}, s{sWROW+uu}, 4096")
            for b in range(5):
                k.vmem(f"buffer_store_dwordx4 {A(48+20*uu+4*b,4)}, v6, s[{sWS}:{sWS+3}], s{sWROW+uu if b < 4 else T0} offen offset:{(b&3)*1024} sc1", opt=True)
        k(f"{Lj}:")
        k.lg = st1[1]
        for p in range(6):
            r0 = 4 * (p >> 1) + 2 * (p & 1)
            k(f"v_cvt_pk_bf16_f32 v{8+(p&1)*2}, v{176+r0}, v{177+r0}\nv_cvt_pk_bf16_f32 v{9+(p&1)*2}, v{192+r0}, v{193+r0}")
            k(f"v_xor_b32 v{9+(p&1)*2}, v220, v{9+(p&1)*2}")
            k.ds(f"ds_write_b32 v{208+p}, v{8+(p&1)*2}")
            k.ds(f"ds_write_b32 v{214+p}, v{9+(p&1)*2}")
        k.drain_lg()
        k("s_barrier")
        self.stamp("out")
        k(f"v_lshlrev_b32 v2, 4, v0\nv_add_u32 v7, {L_OUT}, v2")
        k(f"s_mul_i32 s{T0}, s{sC}, {PFB}\ns_add_u32 s{T0}, s{T0}, {WS_PF}")
        toks = [k.ds(f"ds_read_b128 {V(160+4*i,4)}, v7 offset:{4096*i}") for i in range(6)]
        for i in range(6):
            k.wait_lg(toks[i])
            if i == 5:
                L = k.lab("L_o6")
                k(f"s_cmp_lg_u32 s{sWAVE}, 0\ns_cbranch_scc1 {L}\ns_mov_b64 exec, 0xff")
            self.t_out = k.vmem(f"buffer_store_dwordx4 {V(160+4*i,4)}, v2, s[{sWS}:{sWS+3}], s{T0} offen sc1", opt=(i == 5))
            if i == 5:
                k(f"s_mov_b64 exec, -1\n{L}:")
            else:
                k(f"s_add_u32 s{T0}, s{T0}, 4096")
        self.stamp("p1done")

    def gemm1(self, nb):
        k = self.k
        o = self.opt

        def reads(c, t, bs):
            slot = c % 5
            st, off0 = slot // 2, (slot % 2) * SLOT
            out = []
            out.append(lambda: k.ds(f"ds_read_b128 {V(112+4*bs,4)}, v{128+8*st+t} offset:{off0}"))
            for bi in range(nb):
                for jj in range(2):
                    out.append(lambda bi=bi, jj=jj: k.ds(
                        f"ds_read_b64_tr_b16 {V(80+16*bs+4*bi+2*jj,2)}, v{132+8*st+bi} offset:{off0 + t*2048 + jj*512}"))
            return out

        k.wait_vm(self.t_chunk[0])
        k("s_barrier")
        for f in reads(0, 0, 0):
            f()
        self.dma_chunk(3)
        self.dma_chunk(4)
        step = 0
        for c in range(10):
            for t in range(4):
                bs = step & 1
                k.drain_lg()
                fill = []
                if t < 3:
                    fill = reads(c, t + 1, bs ^ 1)
                elif c < 9:
                    k.wait_vm(self.t_chunk[c + 1])
                    if c + 1 == o["FLAG_AT"]:
                        k.wait_vm(self.t_out)
                    k("s_barrier")
                    self.stamp(f"B{c+1}") if c + 1 in (1, 3, 5, 7, 9) else None
                    fill = reads(c + 1, 0, bs ^ 1)
                    if c + 1 == o["FLAG_AT"]:
                        def ff():
                            k(f"s_mul_i32 s{T0}, s{sC}, {FS}\ns_add_u32 s{T0}, s{T0}, {WS_F1}")
                            self.flag_store(T0, 8)
                        fill.append(ff)
                    if c + 5 < 10:
                        fill += self.dma_chunk_list(c + 5)
                    if c == 6:
                        def fs():
                            k(f"s_lshl_b32 s{T0}, s{sRB}, 7\ns_lshl_b32 s{T1}, s{sWAVE}, 5\ns_add_u32 s{T0}, s{T0}, s{T1}\ns_lshl_b32 s{T0}, s{T0}, 3")
                            k(f"s_add_u32 s{T0}, s{T0}, {WS_ST}\nv_lshlrev_b32 v156, 3, v4\nv_add_u32 v156, s{T0}, v156")
                            self.t_st = k.vmem(f"buffer_load_dwordx2 v[158:159], v156, s[{sWS}:{sWS+3}], 0 offen sc1")
                        fill.append(fs)
                per = -(-len(fill) // max(nb - 1, 1))
                for bi in range(nb):
                    D = V(16 + 16 * bi, 16)
                    k(f"v_mfma_f32_32x32x16_bf16 {D}, {V(80+16*bs+4*bi,4)}, {V(112+4*bs,4)}, {'0' if step == 0 else D}")
                    if bi == 0:
                        k(f"v_mfma_f32_16x16x32_bf16 v[120:123], {V(80+16*bs,4)}, v[124:127], {'0' if step == 0 else 'v[120:123]'}")
                    for f in fill[:per]:
                        f()
                    fill = fill[per:]
                assert not fill
                step += 1
        self.stamp("g1mm")
        k(f"s_mov_b32 s{T0}, s{sWAVE}" if nb == 4 else f"s_cmp_eq_u32 s{sWAVE}, 3\ns_cselect_b32 s{T0}, 3, s{sWAVE}")
        k(f"s_lshl_b32 s{T0}, s{T0}, 7\ns_add_u32 s{T0}, s{T0}, {L_CS}")
        k(f"v_lshrrev_b32 v7, 4, v1\nv_lshlrev_b32 v7, 4, v7\nv_and_b32 v8, 1, v1\nv_lshl_or_b32 v7, v8, 6, v7\nv_add_u32 v7, s{T0}, v7")
        k("s_mov_b32 exec_lo, 0x00030003\ns_mov_b32 exec_hi, 0x00030003")
        k.ds("ds_write_b128 v7, v[120:123]")
        k("s_mov_b64 exec, -1")
        L, Ld = k.lab("L_st"), k.lab("L_std")
        k.wait_vm(self.t_st)
        k(f"s_mov_b32 s{sPOLL}, 0")
        k(f"{L}:")
        k(f"v_cmp_ne_u32 vcc, s{sTAG}, v159")
        k(f"s_add_u32 s{sPOLL}, s{sPOLL}, 1")
        k(f"s_cmp_eq_u64 vcc, 0\ns_cbranch_scc1 {Ld}")
        k(f"buffer_load_dwordx2 v[158:159], v156, s[{sWS}:{sWS+3}], 0 offen sc1")
        k("s_waitcnt vmcnt(0)")
        k(f"s_cmp_lt_u32 s{sPOLL}, {SPIN_MAX}\ns_cbranch_scc1 {L}")
        k(f"{Ld}:")
        k("v_lshlrev_b32 v158, 16, v158")
        k.drain_lg()
        k("s_barrier")
        k(f"s_lshl_b32 s{T0}, s{sRB}, 3\ns_lshl_b32 s{T1}, s{sWAVE}, 1\ns_add_u32 s{T0}, s{T0}, s{T1}\ns_mul_i32 s{T0}, s{T0}, 55296")
        k(f"s_lshl_b32 s{T1}, s{sU0}, 10\ns_add_u32 s{T0}, s{T0}, s{T1}\ns_add_u32 s{T0}, s{T0}, {WS_H}")
        k("v_bfe_u32 v7, v1, 4, 1\nv_mul_u32_u24 v7, 55296, v7\nv_and_b32 v8, 15, v1\nv_lshl_add_u32 v7, v8, 4, v7\nv_lshl_add_u32 v7, v3, 8, v7")
        k(f"v_lshlrev_b32 v8, 4, v3\nv_add_u32 v8, {L_CS}, v8")
        for bi in range(nb):
            k(f"s_add_u32 s{T2}, s{sWAVE}, {bi}\ns_cmp_ge_u32 s{T2}, {nb}\ns_cselect_b32 s{T3}, {nb}, 0\ns_sub_u32 s{T2}, s{T2}, s{T3}")
            if nb == 3:
                k(f"s_cmp_ge_u32 s{T2}, {nb}\ns_cselect_b32 s{T3}, {nb}, 0\ns_sub_u32 s{T2}, s{T2}, s{T3}")
            k(f"s_lshl_b32 s{T3}, s{T2}, 7\nv_add_u32 v9, s{T3}, v8")
            cb = 160 + 16 * (bi & 1)
            toks = [k.ds(f"ds_read_b128 {V(cb+4*g,4)}, v9 offset:{32*g}") for g in range(4)]
            k(f"s_lshl_b32 s{T2}, s{T2}, 10\ns_add_u32 s{T2}, s{T2}, s{T0}")
            pk = 80 + 8 * bi
            for g in range(4):
                k.wait_lg(toks[g])
                for r in range(4):
                    i = 4 * g + r
                    k(f"v_fma_f32 v{16+16*bi+i}, -v158, v{cb+i}, v{16+16*bi+i}")
                for r in range(0, 4, 2):
                    i = 4 * g + r
                    k(f"v_cvt_pk_bf16_f32 v{pk+i//2}, v{16+16*bi+i}, v{17+16*bi+i}")
                    k(f"v_pk_max_i16 v{pk+i//2}, v{pk+i//2}, 0")
                if g & 1:
                    self.t_h = k.vmem(f"buffer_store_dwordx4 {V(pk+4*(g>>1),4)}, v7, s[{sWS}:{sWS+3}], s{T2} offen offset:{512*(g>>1)} sc1")
        self.stamp("g1done")

    def gen_g(self):
        k = self.k
        k(f"s_mul_i32 s{T0}, s{sJ}, 40\nv_and_b32 v7, 15, v1\nv_add_u32 v8, s{T0}, v7\nv_cvt_f32_u32 v10, v8\nv_add_f32 v11, 0x41800000, v10")
        k(f"v_and_b32 v8, 7, v7\nv_lshrrev_b32 v7, 3, v7\nv_mul_u32_u24 v7, 320, v7\nv_add3_u32 v8, v8, v7, s{T0}\nv_add_u32 v8, 32, v8\nv_cvt_f32_u32 v12, v8")
        k("v_lshrrev_b32 v7, 4, v1\nv_lshlrev_b32 v7, 3, v7")
        k(f"s_and_b32 s{T0}, s{sWAVE}, 1\ns_mul_i32 s{T0}, s{T0}, 160\ns_lshr_b32 s{T1}, s{sWAVE}, 1\ns_add_u32 s{T0}, s{T0}, s{T1}")
        k(f"v_add_u32 v7, s{T0}, v7\nv_cvt_f32_u32 v13, v7")
        k(f"s_mul_i32 s{T0}, s{sWAVE}, 15360\ns_add_u32 s{T0}, s{T0}, {L_G}\nv_add_u32 v14, s{T0}, v6")
        k(f"s_mov_b32 s{T1}, 0")
        L = k.lab("L_gg")
        k(f"{L}:")
        for blk in range(3):
            b = 216 + 4 * (blk & 1)
            for jd in range(4):
                k(f"v_add_f32 v8, {fl(2.0*jd)}, v13" if jd else "v_mov_b32 v8, v13")
                k(f"v_mul_f32 v8, v8, v{10+blk}\nv_mul_f32 v8, {fl(1/640)}, v8\nv_fract_f32 v8, v8")
                k(f"v_cos_f32 v9, v8\nv_sin_f32 v8, v8")
                k(f"v_cvt_pk_bf16_f32 v{b+jd}, v9, -v8")
            k(f"v_mul_f32 v8, 0.5, v{10+blk}\nv_fract_f32 v8, v8\nv_cos_f32 v8, v8\nv_cmp_eq_f32 vcc, 0, v13\nv_cvt_pk_bf16_f32 v8, 1.0, v8")
            k(f"v_cndmask_b32 v{b}, v{b}, v8, vcc")
            k(f"ds_write_b128 v14, {V(b,4)} offset:{1024*blk}")
        k(f"v_add_f32 v13, 0x42000000, v13\nv_add_u32 v14, 3072, v14")
        k(f"s_add_u32 s{T1}, s{T1}, 1\ns_cmp_lt_u32 s{T1}, 5\ns_cbranch_scc1 {L}")
        k.drain_lg()

    def w2reg(self, i, b):
        q = 5 * i + b
        return A(4 * q, 4) if q < 64 else V(232 + 4 * (q - 64), 4)

    def w2_loads(self, steps):
        k = self.k
        for i in steps:
            k(f"s_add_u32 s{T0}, s{sWAVE}, {4*i}\ns_mul_i32 s{T1}, s{T0}, 5120\ns_add_u32 s{T1}, s{T1}, s{T5}")
            if i == 13:
                k(f"s_cmp_ge_u32 s{T0}, 54\ns_cselect_b32 s{T1}, {WS_SIZE}, s{T1}")
            k(f"s_add_u32 s{T2}, s{T1}, 4096")
            for b in range(5):
                k.vmem(f"buffer_load_dwordx4 {self.w2reg(i,b)}, v6, s[{sWS}:{sWS+3}], s{T1 if b < 4 else T2} offen offset:{(b&3)*1024} sc1")

    def middle(self):
        k = self.k
        o = self.opt
        Lnj, Ljoin = k.lab("L_nojob"), k.lab("L_join")
        self.gen_g()
        self.stamp("ggen")
        k.wait_vm(self.t_h)
        k("s_barrier")
        k(f"s_lshl_b32 s{T0}, s{sRB}, 4\ns_and_b32 s{T1}, s{sXCD}, 1\ns_lshl_b32 s{T1}, s{T1}, 3\ns_add_u32 s{T0}, s{T0}, s{T1}\ns_and_b32 s{T1}, s{sIDX}, 7\ns_add_u32 s{T0}, s{T0}, s{T1}")
        k(f"s_mul_i32 s{T0}, s{T0}, {FS}\ns_add_u32 s{T0}, s{T0}, {WS_FH}")
        self.flag_store(T0, 8)
        self.stamp("fh")
        k(f"s_mul_i32 s{T5}, s{sJ}, 276480\ns_add_u32 s{T5}, s{T5}, {WS_W2}")
        k(f"v_mul_u32_u24 v7, {FS}, v1\nv_add_u32 v7, {WS_F1}, v7")
        for i in range(1, 4):
            k(f"v_add_u32 v{7+i}, {64*FS*i}, v7")
        k(f"s_cmp_gt_u32 s{sJOB}, 160\ns_cbranch_scc1 {Lnj}")
        snap = k.snapshot()
        self.sfft()
        k(f"s_branch {Ljoin}")
        k(f"{Lnj}:")
        k.restore(snap)
        self.poll(WS_F1, [(7, 12), (8, 13), (9, 14), (10, 15)], "f1")
        self.stamp("f1")
        self.w2_loads(range(14))
        k(f"{Ljoin}:")
        k.vm = [(i, True) for i, _ in k.vm]
        k.lg = []

    def sfft(self):
        k = self.k
        o = self.opt
        DAT, F64, F32, ACT, TW1, TW2 = 16, 48, 96, 120, 152, 184
        ACX = TW1
        k(f"s_and_b32 s{T0}, s{sWAVE}, 1\ns_mul_i32 s{T0}, s{T0}, 12288\ns_add_u32 s{T0}, s{T0}, {TAB_F64}")
        for i in range(12):
            if i % 4 == 0 and i:
                k(f"s_add_u32 s{T0}, s{T0}, 4096")
            k.vmem(f"buffer_load_dwordx4 {V(F64+4*i,4)}, v6, s[{sTAB}:{sTAB+3}], s{T0} offen offset:{(i%4)*1024}")
        k(f"s_movk_i32 s{T0}, {TAB_F32}")
        for i in range(6):
            if i == 4:
                k(f"s_add_u32 s{T0}, s{T0}, 4096")
            k.vmem(f"buffer_load_dwordx4 {V(F32+4*i,4)}, v6, s[{sTAB}:{sTAB+3}], s{T0} offen offset:{(i%4)*1024}")
        self.pi_v(216, 4, 217)
        k(f"s_and_b32 s{T0}, s{sWAVE}, 1\ns_lshl_b32 s{T0}, s{T0}, 5")
        k(f"v_add_u32 v217, s{T0}, v216\nv_cvt_f32_u32 v217, v217\nv_mul_f32 v217, {fl(1/2048)}, v217")
        k(f"v_cvt_f32_u32 v218, v216\nv_mul_f32 v218, {fl(1/2048)}, v218")
        k(f"v_lshlrev_b32 v219, 3, v3\nv_cvt_f32_u32 v220, v219\nv_mul_f32 v220, v220, v217")
        k(f"v_add_u32 v219, s{T0}, v219\nv_cvt_f32_u32 v221, v219\nv_mul_f32 v221, v221, v218")
        k(f"s_mul_i32 s{T1}, s{sJOB}, 2\ns_lshr_b32 s{T2}, s{sWAVE}, 1\ns_add_u32 s{T1}, s{T1}, s{T2}")
        k(f"s_cmp_eq_u32 s{T1}, 0\ns_cselect_b32 s{T2}, 0.5, 1.0\ns_cmp_eq_u32 s{T1}, 320\ns_cselect_b32 s{T2}, 0.5, s{T2}")
        for i in range(16):
            g, r = i >> 2, i & 3
            d = 16 * (g >> 1) + 4 * (g & 1) + r
            k(f"v_fmamk_f32 v222, v217, {fl(float(d))}, v220\nv_fmamk_f32 v223, v218, {fl(float(d))}, v221")
            k(f"v_cos_f32 v{TW1+i}, v222\nv_sin_f32 v{TW1+16+i}, v222\nv_cos_f32 v{TW2+i}, v223\nv_sin_f32 v{TW2+16+i}, v223")
        for i in range(32):
            k(f"v_mul_f32 v{TW2+i}, s{T2}, v{TW2+i}")
        k(f"v_lshrrev_b32 v217, 3, v1\nv_and_b32 v218, 3, v217\nv_lshrrev_b32 v219, 2, v217\nv_lshl_add_u32 v218, v219, 3, v218")
        k(f"s_mov_b32 s{T3}, {8*PFB}\nv_mul_lo_u32 v218, v218, s{T3}")
        k(f"s_bfe_u32 s{T3}, s{sJOB}, 0x30001\nv_lshrrev_b32 v219, 1, v217\nv_and_b32 v220, 7, v1\nv_xor_b32 v219, v219, v220\nv_xor_b32 v219, s{T3}, v219")
        k(f"s_lshl_b32 s{T3}, s{sJOB}, 7\ns_mul_i32 s{T4}, s{sWAVE}, {2*PFB}\ns_add_u32 s{T3}, s{T3}, s{T4}\ns_add_u32 s{T3}, s{T3}, {WS_PF}")
        k(f"v_lshl_add_u32 v224, v219, 4, v218\nv_xor_b32 v219, 4, v219\nv_lshl_add_u32 v225, v219, 4, v218")
        k(f"v_add_u32 v224, s{T3}, v224\nv_add_u32 v225, s{T3}, v225")
        k(f"s_lshr_b32 s{T3}, s{sWAVE}, 1\ns_lshl_b32 s{T3}, s{T3}, 2\ns_and_b32 s{T4}, s{sWAVE}, 1")
        k(f"v_bfe_u32 v217, v1, 1, 3\nv_xor_b32 v217, s{T3}, v217\nv_lshlrev_b32 v218, 7, v4\nv_add_u32 v218, {L_INB}, v218")
        k(f"v_lshl_add_u32 v219, v217, 4, v218\nv_lshl_add_u32 v219, v3, 12, v219")
        k(f"s_lshl_b32 s{T6}, s{T4}, 14\nv_add_u32 v226, s{T6}, v219\nv_xor_b32 v227, 16, v226")
        k(f"s_xor_b32 s{T6}, s{T6}, 16384\nv_add_u32 v228, s{T6}, v219\nv_xor_b32 v229, 16, v228")
        k(f"v_xor_b32 v217, 2, v217\nv_xor_b32 v217, v3, v217\nv_lshl_add_u32 v230, v217, 4, v218\ns_lshl_b32 s{T6}, s{T4}, 12\nv_add_u32 v230, s{T6}, v230")
        self.stamp("sset")
        self.poll(WS_F1, [(7, 12), (8, 13), (9, 14), (10, 15)], "f1")
        self.stamp("f1")
        k(f"s_lshl_b32 s{T3}, s{sWAVE}, 13")
        for n in range(8):
            a = n & 3
            k(f"s_mov_b32 s{T4}, {(8*(16*(a>>1)+4*(a&1)) + (n>>2))*PFB}")
            k(f"s_add_u32 m0, s{T3}, {L_INB + n*1024}")
            t_in = k.vmem(f"buffer_load_dwordx4 v{224+(a&1)}, s[{sWS}:{sWS+3}], s{T4} offen sc1 lds")
        self.w2_loads(range(o["NPRE"]))
        k.wait_vm(t_in)
        k("s_barrier")
        self.stamp("inbox")
        toks = []
        for tau in range(4):
            for part in range(2):
                toks.append(k.ds(f"ds_read_b128 {V(DAT+16*part+4*tau,4)}, v{226+2*(tau>>1)+part} offset:{(tau&1)*8192}"))
        Fr, Fi, NFi = F64, F64 + 16, F64 + 32
        R, Im = V(ACT, 16), V(ACT + 16, 16)
        for tau in range(4):
            k.wait_lg(toks[2 * tau])
            k(f"v_mfma_f32_32x32x16_bf16 {R}, {V(DAT+4*tau,4)}, {V(Fr+4*tau,4)}, {'0' if tau == 0 else R}")
            k(f"v_mfma_f32_32x32x16_bf16 {Im}, {V(DAT+4*tau,4)}, {V(Fi+4*tau,4)}, {'0' if tau == 0 else Im}")
            k.wait_lg(toks[2 * tau + 1])
            k(f"v_mfma_f32_32x32x16_bf16 {R}, {V(DAT+16+4*tau,4)}, {V(NFi+4*tau,4)}, {R}")
            k(f"v_mfma_f32_32x32x16_bf16 {Im}, {V(DAT+16+4*tau,4)}, {V(Fr+4*tau,4)}, {Im}")
        tw = [k.ds(f"ds_read_b128 {V(DAT+16+4*g,4)}, v230 offset:{g*8192}") for g in range(4)]

        def cmul(src, c0, sgn, dst):
            for p in range(8):
                re, im, c, s = V(src + 2 * p, 2), V(src + 16 + 2 * p, 2), V(c0 + 2 * p, 2), V(c0 + 16 + 2 * p, 2)
                n1 = "" if sgn > 0 else " neg_lo:[1,0,0] neg_hi:[1,0,0]"
                n2 = " neg_lo:[1,0,0] neg_hi:[1,0,0]" if sgn > 0 else ""
                k(f"v_pk_mul_f32 v[216:217], {re}, {c}\nv_pk_mul_f32 v[218:219], {im}, {c}")
                k(f"v_pk_fma_f32 v[216:217], {im}, {s}, v[216:217]{n1}\nv_pk_fma_f32 v[218:219], {re}, {s}, v[218:219]{n2}")
                k(f"v_cvt_pk_bf16_f32 v{dst+p}, v216, v217\nv_cvt_pk_bf16_f32 v{dst+8+p}, v218, v219")
        cmul(ACT, TW1, +1, DAT)
        fr, fi, nfi = F32, F32 + 8, F32 + 16
        XR, XI = V(ACX, 16), V(ACX + 16, 16)
        first = True
        for t in range(2):
            for (dat, cre, cim) in ((DAT, fr, fi), (DAT + 8, nfi, fr)):
                k(f"v_mfma_f32_32x32x16_bf16 {XR}, {V(cre+4*t,4)}, {V(dat+4*t,4)}, {'0' if first else XR}")
                k(f"v_mfma_f32_32x32x16_bf16 {XI}, {V(cim+4*t,4)}, {V(dat+4*t,4)}, {'0' if first else XI}")
                first = False
        k.wait_lg(tw[-1])
        for i in range(16):
            k(f"v_lshlrev_b32 v{ACT+i}, 16, v{DAT+16+i}\nv_and_b32 v{ACT+16+i}, 0xffff0000, v{DAT+16+i}")
        cmul(ACX, ACT, -1, DAT)
        first = True
        for t in range(2):
            for (dat, cre, cim) in ((DAT, fr, nfi), (DAT + 8, fi, fr)):
                k(f"v_mfma_f32_32x32x16_bf16 {R}, {V(dat+4*t,4)}, {V(cre+4*t,4)}, {'0' if first else R}")
                k(f"v_mfma_f32_32x32x16_bf16 {Im}, {V(dat+4*t,4)}, {V(cim+4*t,4)}, {'0' if first else Im}")
                first = False
        k(f"s_lshl_b32 s{T3}, s{sWAVE}, 12\ns_add_u32 s{T3}, s{T3}, {L_EXC}\nv_add_u32 v220, s{T3}, v6\nv_xor_b32 v221, 4096, v220")
        cmul(ACT, TW2, -1, DAT)
        for q in range(4):
            k.ds(f"ds_write_b128 v220, {V(DAT+4*q,4)} offset:{1024*q}")
        first = True
        for t in range(2):
            for (dat, cre, cim) in ((DAT, Fr, NFi), (DAT + 8, Fi, Fr)):
                k(f"v_mfma_f32_32x32x16_bf16 {XR}, {V(cre+4*t,4)}, {V(dat+4*t,4)}, {'0' if first else XR}")
                k(f"v_mfma_f32_32x32x16_bf16 {XI}, {V(cim+4*t,4)}, {V(dat+4*t,4)}, {'0' if first else XI}")
                if first:
                    k.drain_lg()
                    k("s_barrier")
                    for q in range(4):
                        k.ds(f"ds_read_b128 {V(DAT+16+4*q,4)}, v221 offset:{1024*q}")
                first = False
        self.pi_v(222, 4, 223)
        k(f"s_and_b32 s{T3}, s{sJOB}, 1\ns_bfe_u32 s{T4}, s{sJOB}, 0x10002\ns_lshl_b32 s{T4}, s{T4}, 1\ns_or_b32 s{T3}, s{T3}, s{T4}")
        k(f"s_and_b32 s{T4}, s{sWAVE}, 1\ns_lshl_b32 s{T4}, s{T4}, 1\ns_xor_b32 s{T3}, s{T3}, s{T4}\ns_lshl_b32 s{T3}, s{T3}, 5")
        k(f"s_lshr_b32 s{T4}, s{sWAVE}, 1\ns_mul_i32 s{T4}, s{T4}, {ZSTU}\ns_add_u32 s{T4}, s{T4}, {L_ZST}")
        k(f"v_mul_u32_u24 v222, 272, v222\nv_lshl_add_u32 v222, v3, 4, v222\nv_add_u32 v222, s{T4}, v222")
        k(f"s_xor_b32 s{T6}, s{T3}, 32\nv_add_u32 v223, s{T6}, v222\nv_add_u32 v222, s{T3}, v222")
        k.drain_lg()
        for t in range(2):
            for (dat, cre, cim) in ((DAT + 16, Fr, NFi), (DAT + 24, Fi, Fr)):
                k(f"v_mfma_f32_32x32x16_bf16 {XR}, {V(cre+8+4*t,4)}, {V(dat+4*t,4)}, {XR}")
                k(f"v_mfma_f32_32x32x16_bf16 {XI}, {V(cim+8+4*t,4)}, {V(dat+4*t,4)}, {XI}")
        k(f"s_and_b32 s{T3}, s{sWAVE}, 1\ns_mul_i32 s{T6}, s{T3}, {16*272}\ns_add_u32 s{T4}, s{T4}, s{T6}")
        k(f"v_lshrrev_b32 v220, 4, v1\nv_mul_u32_u24 v220, 272, v220\nv_and_b32 v221, 15, v1\nv_lshl_add_u32 v220, v221, 4, v220\nv_add_u32 v220, s{T4}, v220")
        k(f"s_lshr_b32 s{T4}, s{sWAVE}, 1\ns_mul_i32 s{T4}, s{T4}, 160\ns_add_u32 s{T4}, s{T4}, s{sJOB}\ns_lshl_b32 s{T4}, s{T4}, 13")
        k(f"s_cmp_eq_u32 s{sJOB}, 160\ns_cselect_b32 s{T4}, 128, s{T4}\ns_lshl_b32 s{T3}, s{T3}, 12\ns_add_u32 s{T4}, s{T4}, s{T3}\ns_add_u32 s{T4}, s{T4}, {WS_Z}")
        k(f"s_mul_i32 s{T1}, s{sJOB}, 2\ns_lshr_b32 s{T2}, s{sWAVE}, 1\ns_add_u32 s{T1}, s{T1}, s{T2}")
        k(f"s_cmp_eq_u32 s{T1}, 0\ns_cselect_b32 s{sM}, 0x00ff00ff, -1\ns_cmp_eq_u32 s{T1}, 320\ns_cselect_b32 s{sM}, 0x00ff00ff, s{sM}\ns_mov_b32 s{sM+1}, s{sM}")
        k(f"s_cmp_eq_u32 s{T1}, 321\ns_cselect_b32 s{T4}, {WS_SIZE}, s{T4}")
        for part in range(2):
            for gg in range(2):
                for j in range(4):
                    r = ACX + 16 * part + 8 * gg + 2 * j
                    k(f"v_cvt_pk_bf16_f32 v{DAT+8*part+4*gg+j}, v{r}, v{r+1}")
                k.ds(f"ds_write_b128 v{222+gg}, {V(DAT+8*part+4*gg,4)} offset:{128*part}")
        k.drain_lg()
        k("s_barrier")
        toks = [k.ds(f"ds_read_b128 {V(DAT+16+4*n,4)}, v220 offset:{4*272*n}") for n in range(4)]
        for n in range(4):
            k.wait_lg(toks[n])
            k(f"s_mov_b64 exec, s[{sM}:{sM+1}]")
            t_z = k.vmem(f"buffer_store_dwordx4 {V(DAT+16+4*n,4)}, v6, s[{sWS}:{sWS+3}], s{T4} offen offset:{1024*n} sc1")
            k("s_mov_b64 exec, -1")
        self.stamp("zst")
        self.w2_loads(range(o["NPRE"], 14))
        k.wait_vm(t_z)
        k("s_barrier")
        k(f"s_mul_i32 s{T0}, s{sJOB}, {FS}\ns_add_u32 s{T0}, s{T0}, {WS_FZ}")
        self.flag_store(T0, 8)
        self.stamp("fz")

    def tail(self):
        k = self.k
        ACC, HB, XR_, EO, ZB = 16, 96, 160, 172, 192
        k(f"s_lshr_b32 s{T0}, s{sRB2}, 1\ns_lshl_b32 s{T0}, s{T0}, 4\nv_and_b32 v7, 15, v1\nv_add_u32 v7, s{T0}, v7\nv_mul_u32_u24 v7, {FS}, v7\nv_add_u32 v7, {WS_FH}, v7")
        k(f"s_lshl_b32 s{T0}, s{sWAVE}, 9\ns_add_u32 s{T0}, s{T0}, s{sRB2}\ns_mul_i32 s{T0}, s{T0}, 1280\ns_mul_i32 s{T1}, s{sJ}, 80\ns_add_u32 s{T0}, s{T0}, s{T1}")
        k(f"v_and_b32 v10, 15, v1\nv_mul_u32_u24 v11, 40960, v10\nv_add_u32 v11, s{T0}, v11\nv_lshrrev_b32 v12, 4, v1\nv_lshl_add_u32 v8, v12, 3, v11")
        k(f"v_and_b32 v13, 1, v12\nv_lshl_add_u32 v9, v13, 3, v11\nv_lshrrev_b32 v13, 1, v12\nv_mul_u32_u24 v13, 640, v13\nv_add3_u32 v9, v9, v13, 64")
        offs = (0, 32, 640, 672, 0)
        k(f"s_lshl_b32 s{T0}, s{sRB2}, 6\ns_lshl_b32 s{T1}, s{sWAVE}, 4\ns_add_u32 s{T0}, s{T0}, s{T1}\ns_lshl_b32 s{T0}, s{T0}, 3\ns_add_u32 s{T0}, s{T0}, {WS_ST}")
        k(f"v_lshlrev_b32 v10, 3, v10")
        k.vmem(f"buffer_load_dword v170, v10, s[{sWS}:{sWS+3}], s{T0} offen sc1")
        for b in range(5):
            k.vmem(f"buffer_load_dwordx2 {V(XR_+2*b,2)}, v{9 if b == 4 else 8}, s[{sX}:{sX+3}], 0 offen offset:{offs[b]}")
        self.poll(WS_FH, [(7, 12)], "fh")
        self.stamp("fhok")
        for nb in range(4):
            k(f"s_add_u32 s{T0}, s{sWAVE}, {nb}\ns_and_b32 s{T0}, s{T0}, 3\ns_lshl_b32 s{T5}, s{sRB2}, 2\ns_add_u32 s{T0}, s{T0}, s{T5}")
            k(f"s_mul_i32 s{T0}, s{T0}, 55296\ns_lshl_b32 s{T5}, s{sWAVE}, 10\ns_add_u32 s{T0}, s{T0}, s{T5}\ns_add_u32 s{T0}, s{T0}, {WS_H}")
            k(f"v_add_u32 v{10+nb}, s{T0}, v6")
        k(f"s_cmp_ge_u32 s{sWAVE}, 2\ns_cselect_b32 s{T6}, 12, 13\ns_lshl_b32 s{T6}, s{T6}, 12")
        th = {}

        def hload(i):
            out = []
            for nb in range(4):
                def f(nb=nb):
                    if nb == 0 and i < 13:
                        k(f"s_mov_b32 s{T0}, {i*4096}")
                    th[i] = k.vmem(f"buffer_load_dwordx4 {V(HB+16*(i&3)+4*nb,4)}, v{10+nb}, s[{sWS}:{sWS+3}], s{T0 if i < 13 else T6} offen sc1")
                out.append(f)
            return out
        for i in range(3):
            for f in hload(i):
                f()
        k(f"v_add_u32 v14, {L_G}, v6")
        for i in range(14):
            fill = []
            if i + 3 < 14:
                fill += hload(i + 3)
            if 1 <= i <= 12:
                for b in range(5):
                    q = 5 * (i - 1) + b
                    fill.append(lambda q=q: k.ds(f"ds_read_b128 {A(4*q,4)}, v14 offset:{1024*q}"))
            k.wait_vm(th[i])
            n = 0
            for nb in range(4):
                for b in range(5):
                    D = V(ACC + 20 * nb + 4 * b, 4)
                    k(f"v_mfma_f32_16x16x32_bf16 {D}, {self.w2reg(i,b)}, {V(HB+16*(i&3)+4*nb,4)}, {'0' if i == 0 else D}")
                    n += 1
                    if n % 2 == 0 and fill:
                        fill.pop(0)()
            assert not fill
        self.stamp("g2")
        k(f"v_mul_u32_u24 v7, {FS}, v1\nv_add_u32 v7, {WS_FZ}, v7\nv_add_u32 v10, {64*FS}, v7\nv_add_u32 v11, 128, v1\nv_min_u32 v11, 160, v11\nv_mul_u32_u24 v11, {FS}, v11\nv_add_u32 v11, {WS_FZ}, v11")
        self.poll(WS_FZ, [(7, 12), (10, 13), (11, 14)], "fz")
        self.stamp("fzok")
        k(f"s_lshl_b32 s{T0}, s{sRB2}, 8\ns_lshl_b32 s{T1}, s{sWAVE}, 15\ns_add_u32 s{T0}, s{T0}, s{T1}\ns_add_u32 s{T0}, s{T0}, {WS_Z}")
        k(f"v_lshrrev_b32 v7, 4, v1\nv_lshlrev_b32 v7, 13, v7\nv_and_b32 v10, 15, v1\nv_lshl_add_u32 v7, v10, 4, v7\nv_add_u32 v7, s{T0}, v7")
        k(f"s_lshl_b32 s{T1}, s{sWAVE}, 10")
        tz = []
        for ks in range(20):
            k(f"s_mov_b32 s{T0}, {ks*16*8192}\ns_add_u32 m0, s{T1}, {L_Z + ks*4096}")
            tz.append(k.vmem(f"buffer_load_dwordx4 v7, s[{sWS}:{sWS+3}], s{T0} offen sc1 lds"))
        L = k.lab("L_gen")
        k(f"s_cmp_lg_u32 s{sC}, 0\ns_cbranch_scc1 {L}\ns_mov_b32 s{T0}, {WS_GEN}")
        self.flag_store(T0, 10)
        k(f"{L}:")
        k.drain_lg()
        k("s_barrier")
        for nb in range(1, 4):
            k(f"s_add_u32 s{T0}, s{sWAVE}, {nb}\ns_and_b32 s{T0}, s{T0}, 3\ns_mul_i32 s{T0}, s{T0}, 15360\ns_add_u32 s{T0}, s{T0}, {L_RED + (nb-1)*5120}")
            k(f"v_add_u32 v10, s{T0}, v6")
            for b in range(5):
                k.ds(f"ds_write_b128 v10, {V(ACC+20*nb+4*b,4)} offset:{1024*b}")
        k(f"s_mul_i32 s{T0}, s{sWAVE}, 15360\ns_add_u32 s{T0}, s{T0}, {L_RED}\nv_add_u32 v10, s{T0}, v6")
        k.drain_lg()
        k("s_barrier")
        toks = [k.ds(f"ds_read_b128 {V(HB+4*q,4)}, v10 offset:{1024*q}") for q in range(15)]
        k("v_and_b32 v11, 0xffff0000, v170\nv_rcp_f32 v11, v11")
        k(f"v_mul_f32 v12, {fl(-math.log2(math.e))}, v11\nv_mul_f32 v11, {fl(2.0/(640*2048))}, v11")
        k(f"v_lshrrev_b32 v13, 4, v1\nv_bfe_u32 v14, v1, 2, 2\nv_lshlrev_b32 v15, 10, v13\nv_lshl_add_u32 v15, v14, 7, v15")
        k(f"v_lshrrev_b32 v14, 1, v14\nv_and_b32 v13, 1, v13\nv_lshl_or_b32 v14, v13, 1, v14\nv_xor_b32 v14, s{sWAVE}, v14\nv_lshl_add_u32 v15, v14, 5, v15")
        k(f"v_and_b32 v13, 3, v1\nv_lshl_add_u32 v15, v13, 3, v15\nv_add_u32 v14, {L_Z}, v15\nv_add_u32 v15, {L_Z + 40960}, v15")
        for s_ in range(3):
            for b in range(5):
                k.wait_lg(toks[5 * s_ + b])
                for r in range(0, 4, 2):
                    k(f"v_pk_add_f32 {V(ACC+4*b+r,2)}, {V(ACC+4*b+r,2)}, {V(HB+20*s_+4*b+r,2)}")
        for i in range(20):
            k(f"v_mul_f32 v{HB+i}, v12, v{ACC+i}")
        for i in range(20):
            k(f"v_exp_f32 v{HB+i}, v{HB+i}")
            k(f"v_mul_f32 v{ACC+i}, v11, v{ACC+i}")
        for i in range(20):
            k(f"v_add_f32 v{HB+i}, 1.0, v{HB+i}")
        for i in range(20):
            k(f"v_rcp_f32 v{HB+i}, v{HB+i}")
        for i in range(20):
            k(f"v_mul_f32 v{ACC+i}, v{ACC+i}, v{HB+i}")
        for i in range(10):
            k(f"v_lshlrev_b32 v{HB+2*i}, 16, v{XR_+i}\nv_and_b32 v{HB+2*i+1}, 0xffff0000, v{XR_+i}")
        self.stamp("silu")
        CH = 5

        def zread(ks):
            base, off = (14, ks * 4096) if ks < 10 else (15, (ks - 10) * 4096)
            return [k.ds(f"ds_read_b64_tr_b16 {V(ZB+4*(ks&3)+2*jj,2)}, v{base} offset:{off+512*jj}") for jj in range(2)][-1]
        tk = {}
        for c in range(20 // CH):
            k.wait_vm(tz[c * CH + CH - 1])
            k("s_barrier")
            for ks in range(c * CH, min(c * CH + 3, c * CH + CH)):
                tk[ks] = zread(ks)
            for ks in range(c * CH, c * CH + CH):
                k.wait_lg(tk[ks])
                P = ks // 10
                for blk in range(3):
                    d = EO + (16 if blk == 2 else 8 * P + 4 * blk)
                    first = (ks % 10 == 0) if blk < 2 else ks == 0
                    k(f"v_mfma_f32_16x16x32_bf16 {V(d,4)}, {A(4*(3*ks+blk),4)}, {V(ZB+4*(ks&3),4)}, {'0' if first else V(d,4)}")
                if ks + 3 < c * CH + CH:
                    tk[ks + 3] = zread(ks + 3)
        self.stamp("idft")
        for b in range(5):
            for r in range(0, 4, 2):
                if b < 4:
                    e, o_ = V(EO + 4 * (b & 1) + r, 2), V(EO + 8 + 4 * (b & 1) + r, 2)
                    k(f"v_pk_add_f32 v[10:11], {e}, {o_}" + (" neg_lo:[0,1] neg_hi:[0,1]" if b >= 2 else ""))
                    src = "v[10:11]"
                else:
                    src = V(EO + 16 + r, 2)
                k(f"v_pk_fma_f32 v[10:11], {src}, {V(ACC+4*b+r,2)}, {V(HB+4*b+r,2)}")
                k(f"v_cvt_pk_bf16_f32 v{XR_+2*b+r//2}, v10, v11")
            k.vmem(f"buffer_store_dwordx2 {V(XR_+2*b,2)}, v{9 if b == 4 else 8}, s[{sOUT}:{sOUT+3}], 0 offen offset:{offs[b]}")

    def build(self):
        k = self.k
        self.startup()
        self.phase1_setup()
        self.stamp("setup")
        self.phase1()
        if self.stop == "p1":
            k.drain_vm()
        else:
            Ln, Lg = k.lab("L_narrow"), k.lab("L_g1done")
            k(f"s_cmp_eq_u32 s{sWIDE}, 0\ns_cbranch_scc1 {Ln}")
            snap = k.snapshot()
            tch = dict(self.t_chunk)
            self.gemm1(4)
            k(f"s_branch {Lg}")
            k(f"{Ln}:")
            k.restore(snap)
            self.t_chunk = tch
            self.gemm1(3)
            k(f"{Lg}:")
            if self.stop == "g1":
                k.drain_vm()
            else:
                self.middle()
                if self.stop == "mid":
                    k.drain_vm()
                else:
                    self.tail()
        self.finish()
        body = k.text()
        hdr = open("recurrent_scan__spectral_gfnet__dense_activation_relu__prompt.s.ref").read().split("; Override launch")[0]
        s = hdr + f"; @launch grid=(256,1,1) block=(256,1,1) lds={LDS_BYTES}\n"
        s += f'.amdgcn_target "amdgcn-amd-amdhsa--gfx950"\n.text\n.globl {KN}\n.p2align 8\n.type {KN},@function\n{KN}:\n'
        s += body
        s += ".p2align 8\n.type tab_data,@object\ntab_data:\n"
        for f in tables():
            u = bf16(f).reshape(-1).view(np.uint32)
            for i in range(0, 256, 8):
                s += ".long " + ",".join("0x%x" % x for x in u[i:i + 8]) + "\n"
        s += f"tab_end:\n.size tab_data, {TAB_BYTES}\n"
        s += f""".section .rodata,"a"
.p2align 6
.amdhsa_kernel {KN}
  .amdhsa_next_free_vgpr 512
  .amdhsa_next_free_sgpr 102
  .amdhsa_accum_offset 256
  .amdhsa_group_segment_fixed_size 0
  .amdhsa_kernarg_size 72
  .amdhsa_user_sgpr_count 2
  .amdhsa_user_sgpr_kernarg_segment_ptr 1
  .amdhsa_system_sgpr_workgroup_id_x 1
.end_amdhsa_kernel
"""
        return s


if __name__ == "__main__":
    out = sys.argv[1] if len(sys.argv) > 1 else "k.s"
    stop = sys.argv[2] if len(sys.argv) > 2 and sys.argv[2] != "-" else None
    g = Gen(stop=stop, stamps=(len(sys.argv) > 3 and sys.argv[3] == "1"))
    open(out, "w").write(g.build())
    print("written", out, "nops inserted", fix_hazards.total, "stamps", g.stn)
```

```python
import re, struct


def f2u(x):
    return struct.unpack("<I", struct.pack("<f", x))[0]


def fl(x):
    return "0x%08x" % f2u(x)


def V(n, c=1):
    return f"v{n}" if c == 1 else f"v[{n}:{n+c-1}]"


def A(n, c=1):
    return f"a{n}" if c == 1 else f"a[{n}:{n+c-1}]"


def S(n, c=1):
    return f"s{n}" if c == 1 else f"s[{n}:{n+c-1}]"


class Tok:
    pass


def cost_of(line):
    mn = line.split(None, 1)[0]
    if mn.endswith(":"):
        return 0
    if mn.startswith("v_mfma"):
        return 32 if "32x32" in mn else 16
    if mn.startswith(("v_exp_", "v_log_", "v_rcp_", "v_rsq_", "v_sqrt_", "v_sin_", "v_cos_")):
        return 8
    if mn == "s_barrier":
        return 30
    return 4


class K:
    def __init__(self):
        self.units = []
        self.stack = []
        self.nlab = 0
        self.depth = 0
        self.lastvm = None

    def _add(self, ops):
        if self.depth and self.units and self.open:
            self.units[-1].extend(ops)
        else:
            self.units.append(list(ops))
            self.open = True

    def atomic(self):
        k = self

        class C:
            def __enter__(s):
                if k.depth == 0:
                    k.open = False
                k.depth += 1

            def __exit__(s, *a):
                k.depth -= 1
        return C()

    def __call__(self, s=""):
        ops = [("i", l.strip()) for l in s.split("\n") if l.strip()]
        if ops:
            self._add(ops)

    def lab(self, base="L"):
        self.nlab += 1
        return f"{base}{self.nlab}"

    def vmem(self, s, opt=False):
        t = Tok()
        self._add([("vm", s, t, opt)])
        self.lastvm = t
        return t

    def ds(self, s, opt=False):
        t = Tok()
        self._add([("ds", s, t, opt)])
        return t

    def wait_vm(self, tok, est=0):
        self._add([("wvm", tok, est)])

    def wait_lg(self, tok, est=0):
        self._add([("wlg", tok, est)])

    def drain_vm(self, est=0):
        self._add([("dvm", None, est)])

    def drain_lg(self, est=0):
        self._add([("dlg", None, est)])

    def last_vm(self):
        return self.lastvm

    def fn(self, f):
        self._add([("fn", f)])

    def snapshot(self):
        box = {}
        self.fn(lambda st: box.update(vm=list(st["vm"]), lg=list(st["lg"])))
        return box

    def restore(self, box, vm=True, lg=True):
        def f(st):
            if vm:
                st["vm"] = list(box["vm"])
            if lg:
                st["lg"] = list(box["lg"])
        self.fn(f)

    def all_opt(self):
        self.fn(lambda st: st.update(vm=[(t, True) for t, _ in st["vm"]]))

    def clear_vm(self):
        self.fn(lambda st: st.update(vm=[]))

    def clear_lg(self):
        self.fn(lambda st: st.update(lg=[]))

    def begin(self):
        assert self.depth == 0
        self.stack.append(self.units)
        self.units = []

    def end(self):
        u = self.units
        self.units = self.stack.pop()
        return u

    def put(self, units):
        self.units.extend(units)

    @staticmethod
    def ucost(u):
        c = 0
        for op in u:
            if op[0] in ("i", "vm", "ds"):
                c += cost_of(op[1])
            elif op[0] in ("wvm", "wlg", "dvm", "dlg"):
                c += 4 + op[2]
        return c

    def weave(self, main, fill, start=0, interval=None, tail=True):
        fill = list(fill)
        tot = self.stream_cost(main)
        if interval is None:
            interval = max(tot - start, 1) / (len(fill) + 0.5) if fill else 1
        t_issue = 0
        t_mf = 0
        nxt = start
        for u in main:
            while fill and t_issue >= nxt:
                f = fill.pop(0)
                self.units.append(f)
                t_issue += self.ucost(f)
                nxt += interval
            self.units.append(u)
            t_issue, t_mf = self._adv(u, t_issue, t_mf)
        if tail:
            self.units.extend(fill)
            fill = []
        return fill

    @staticmethod
    def _adv(u, t, tm):
        for op in u:
            if op[0] in ("i", "vm", "ds"):
                c = cost_of(op[1])
                if op[1].startswith("v_mfma"):
                    t = max(t, tm)
                    tm = t + c
                    t += 8
                else:
                    t += c
            elif op[0] in ("wvm", "wlg", "dvm", "dlg"):
                t += 4 + op[2]
        return t, tm

    def stream_cost(self, units):
        t = tm = 0
        for u in units:
            t, tm = self._adv(u, t, tm)
        return max(t, tm)

    def lines(self):
        st = dict(vm=[], lg=[])
        out = []
        seen = set()
        for u in self.units:
            for op in u:
                kd = op[0]
                if kd == "i":
                    out.append(op[1])
                elif kd == "vm":
                    out.append(op[1])
                    st["vm"].append((op[2], op[3]))
                    seen.add(id(op[2]))
                elif kd == "ds":
                    out.append(op[1])
                    st["lg"].append((op[2], op[3]))
                    seen.add(id(op[2]))
                elif kd in ("wvm", "wlg"):
                    key, nm, mx = ("vm", "vmcnt", 63) if kd == "wvm" else ("lg", "lgkmcnt", 15)
                    ids = [t for t, _ in st[key]]
                    p = next((i for i, t in enumerate(ids) if t is op[1]), None)
                    if p is None:
                        assert id(op[1]) in seen, "wait on an operation that was not issued yet: " + " | ".join(out[-5:])
                        continue
                    n = min(sum(1 for _, o in st[key][p + 1:] if not o), mx)
                    out.append(f"s_waitcnt {nm}({n})")
                    st[key] = st[key][p + 1:]
                elif kd == "dvm":
                    out.append("s_waitcnt vmcnt(0)")
                    st["vm"] = []
                elif kd == "dlg":
                    out.append("s_waitcnt lgkmcnt(0)")
                    st["lg"] = []
                elif kd == "fn":
                    op[1](st)
        return out

    def text(self, align=True, defs=""):
        L = fix_hazards(self.lines())
        if align:
            L = align8(L, defs)
        return "\n".join(L) + "\n"


_REG = re.compile(r"(?<![\w.])([vas])(?:(\d+)|\[(\d+):(\d+)\])")
TRANS = ("v_exp_", "v_log_", "v_rcp_", "v_rsq_", "v_sqrt_", "v_sin_", "v_cos_")


def regs(op):
    out = []
    for m in _REG.finditer(op):
        k = m.group(1)
        if m.group(2) is not None:
            out.append((k, int(m.group(2))))
        else:
            out += [(k, i) for i in range(int(m.group(3)), int(m.group(4)) + 1)]
    if re.search(r"\bvcc\b", op):
        out += [("s", 106), ("s", 107)]
    if re.search(r"\bm0\b", op):
        out.append(("s", 124))
    if re.search(r"\bexec\b", op):
        out += [("s", 126), ("s", 127)]
    return out


class I:
    def __init__(self, text):
        self.text = text
        t = text.split(";")[0].strip()
        self.label = None
        self.kind = "other"
        self.w = set()
        self.r = set()
        self.states = 1
        self.target = None
        self.uncond = False
        self.end = False
        if t.endswith(":"):
            self.label = t[:-1]
            self.kind = "label"
            self.states = 0
            return
        if t.startswith("."):
            self.kind = "dir"
            self.states = 0
            return
        p = t.split(None, 1)
        mn = p[0]
        self.mn = mn
        ops = [o.strip() for o in p[1].split(",")] if len(p) > 1 else []
        ops2 = []
        depth = 0
        for o in ops:
            if depth > 0:
                ops2[-1] += "," + o
            else:
                ops2.append(o)
            depth += o.count("[") - o.count("]")
        ops = ops2
        self.ops = ops
        if mn == "s_nop":
            self.states = int(ops[0], 0) + 1
            self.kind = "nop"
        elif mn == "s_endpgm":
            self.end = True
        elif mn == "s_branch":
            self.target = ops[0]
            self.uncond = True
        elif mn.startswith("s_cbranch"):
            self.target = ops[0]
        elif mn.startswith("v_mfma"):
            self.kind = "mfma"
            self.passes = 8 if "32x32x16" in mn else 4 if "16x16x32" in mn else None
            assert self.passes, mn
            self.D = set(regs(ops[0]))
            self.AB = set(regs(ops[1])) | set(regs(ops[2]))
            self.C = set(regs(ops[3]))
            self.w = self.D
            self.r = self.AB | self.C
        elif mn.startswith("v_"):
            self.kind = "valu"
            self.trans = mn.startswith(TRANS)
            self.dpp = "_dpp" in mn or "row_" in t or "quad_perm" in t
            self.perml = mn.startswith("v_permlane")
            self.rdlane = mn.startswith("v_readlane") or mn.startswith("v_readfirstlane")
            self.w = set(regs(ops[0]))
            srcs = ops[1:]
            if mn.startswith(("v_add_co", "v_addc_co", "v_sub_co", "v_subb_co")):
                self.w |= set(regs(ops[1]))
                srcs = ops[2:]
            for o in srcs:
                self.r |= set(regs(o))
            if mn.startswith(("v_fmac", "v_dot2c", "v_pk_fmac")) or self.dpp:
                self.r |= set(regs(ops[0]))
            if self.perml:
                self.w |= set(regs(ops[1]))
                self.r |= set(regs(ops[0]))
        elif mn.startswith("buffer_") or mn.startswith("global_"):
            self.kind = "vmem"
            self.lds = bool(re.search(r"\blds\b", t))
            self.store = "store" in mn or "atomic" in mn
            self.wide = self.store and ("x4" in mn or "x3" in mn)
            if self.lds or mn in ("buffer_inv", "buffer_wbl2"):
                for o in ops:
                    self.r |= set(regs(o))
                self.r.add(("s", 124))
                self.data = set()
            elif self.store:
                for o in ops:
                    self.r |= set(regs(o))
                self.data = set(regs(ops[0]))
            else:
                self.w = set(regs(ops[0]))
                for o in ops[1:]:
                    self.r |= set(regs(o))
                self.data = set()
        elif mn.startswith("ds_"):
            self.kind = "ds"
            if "read" in mn or "permute" in mn or "swizzle" in mn:
                self.w = set(regs(ops[0]))
                for o in ops[1:]:
                    self.r |= set(regs(o))
            else:
                for o in ops:
                    self.r |= set(regs(o))
        elif mn.startswith("s_"):
            self.kind = "salu"
            if ops and not mn.startswith(("s_cmp", "s_waitcnt", "s_barrier", "s_sleep", "s_setprio", "s_bitcmp")):
                self.w = set(regs(ops[0]))
                for o in ops[1:]:
                    self.r |= set(regs(o))
                if "saveexec" in mn:
                    self.w |= {("s", 126), ("s", 127)}
            else:
                for o in ops:
                    self.r |= set(regs(o))


def isv(x):
    return x[0] in "va"


def need(p, c):
    n = 0
    if p.kind == "valu":
        wv = {x for x in p.w if isv(x)}
        ws = {x for x in p.w if x[0] == "s"}
        if c.kind == "mfma" and wv & c.r:
            n = max(n, 2)
        if c.kind == "valu":
            if wv & c.r:
                if c.rdlane:
                    n = max(n, 1)
                if c.dpp or c.perml:
                    n = max(n, 2)
                if p.trans and not c.trans:
                    n = max(n, 1)
            if ws & c.r:
                n = max(n, 4 if c.rdlane else 2)
        if c.kind in ("vmem",) and ws & c.r:
            n = max(n, 5)
        if c.kind in ("vmem", "ds") and p.trans and wv & c.r:
            n = max(n, 1)
        if c.kind == "salu" and ws & c.r:
            n = max(n, 1)
    elif p.kind == "mfma":
        big = 12 if p.passes == 8 else 8
        if c.kind in ("valu", "vmem", "ds") and p.D & (c.r | c.w):
            n = max(n, big)
        if c.kind == "valu" and p.C & c.w:
            n = max(n, 7 if p.passes == 8 else 3)
        if c.kind == "mfma":
            if p.D & c.AB:
                n = max(n, big)
            if p.D & c.C and not (p.D == c.C and p.passes == c.passes):
                n = max(n, big - 2)
            if p.D & c.D and not (p.D == c.C and p.passes == c.passes):
                n = max(n, big - 2)
    elif p.kind == "vmem":
        if p.wide and p.data & c.w:
            n = max(n, 2 if c.kind == "valu" else 1)
    elif p.kind == "salu":
        if ("s", 124) in p.w and c.kind == "vmem" and c.lds:
            n = max(n, 1)
    return n


def fix_hazards(lines):
    ins = [I(t) for t in lines]
    total = 0
    while True:
        labels = {x.label: i for i, x in enumerate(ins) if x.label}
        ins_at = {}
        for i, p in enumerate(ins):
            if p.kind not in ("valu", "mfma", "vmem", "salu"):
                continue
            if p.kind == "vmem" and not p.wide:
                continue
            if p.kind == "salu" and ("s", 124) not in p.w:
                continue
            lim = 12 if p.kind == "mfma" else 5
            stack = [(i + 1, 0)]
            if p.target:
                stack.append((labels[p.target], 0))
            seen = {}
            while stack:
                j, d = stack.pop()
                while j < len(ins) and d < lim:
                    if seen.get(j, 99) <= d:
                        break
                    seen[j] = d
                    c = ins[j]
                    if c.kind not in ("label", "dir", "nop"):
                        n = need(p, c)
                        if n > d:
                            ins_at[j] = max(ins_at.get(j, 0), n - d)
                    if c.end:
                        break
                    d += c.states
                    if c.target:
                        stack.append((labels[c.target], d))
                        if c.uncond:
                            break
                    j += 1
        if not ins_at:
            break
        out = []
        last = -100
        for j, c in enumerate(ins):
            if j in ins_at and j - last > 12:
                out.append(I(f"s_nop {ins_at[j]-1}"))
                total += ins_at[j]
                last = j
            out.append(c)
        ins = out
    fix_hazards.total = total
    return [x.text for x in ins]


import subprocess, tempfile, os
_NOPROM = ("v_readfirstlane", "v_readlane", "v_permlane", "v_fmamk", "v_fmaak", "v_accvgpr", "v_swap", "v_nop")


def sizes_of(lines, extra_defs=""):
    src = extra_defs + "\n".join(lines) + "\n"
    with tempfile.NamedTemporaryFile("w", suffix=".s", delete=False) as f:
        f.write(src)
    r = subprocess.run(["llvm-mc", "-triple", "amdgcn-amd-amdhsa", "-mcpu=gfx950", "-show-encoding", f.name],
                       capture_output=True, text=True)
    os.unlink(f.name)
    assert r.returncode == 0, r.stderr[:2000]
    enc = [len(m.group(1).split(",")) for m in re.finditer(r"encoding: \[([^\]]*)\]", r.stdout)]
    out = []
    it = iter(enc)
    for l in lines:
        out.append(0 if l.endswith(":") or l.startswith(".") else next(it))
    return out


def align8(lines, extra_defs="", nop_min=6):
    sz = sizes_of(lines, extra_defs)
    out = []
    osz = []
    run_start = 0
    pos = 0
    stats = dict(prom=0, nop=0, left=0)
    n = len(lines)
    for i, (l, s) in enumerate(zip(lines, sz)):
        if s == 8 and pos % 8 == 4:
            cand = None
            p = pos
            for j in range(len(out) - 1, run_start - 1, -1):
                p -= osz[j]
                mn = out[j].split(None, 1)[0]
                if osz[j] == 4 and mn.startswith("v_") and not mn.startswith(_NOPROM) and not mn.endswith(("_e64", "_dpp")):
                    if p % 8 == 0:
                        cand = j
                        break
                    if cand is None:
                        cand = j
            if cand is not None:
                mn, rest = out[cand].split(None, 1)
                out[cand] = mn.replace("_e32", "") + "_e64 " + rest
                osz[cand] = 8
                pos += 4
                stats["prom"] += 1
            else:
                run = 0
                for j in range(i, n):
                    if sz[j] == 8:
                        run += 1
                    elif sz[j] == 4:
                        break
                if run >= nop_min:
                    out.append("s_nop 0")
                    osz.append(4)
                    pos += 4
                    stats["nop"] += 1
                else:
                    stats["left"] += 1
        out.append(l)
        osz.append(s)
        pos += s
        if s == 8:
            run_start = len(out)
    align8.stats = stats
    return out
```

```python
import math, sys
import numpy as np
from kf import *

KN = "recurrent_scan__spectral_gfnet__dense_activation_relu__prompt_kernel"

WS_GEN = 0
FS = 16
WS_F1 = 0x1000
WS_FH = 0x3000
WS_FZ = 0x5000
WS_ST = 0x10000
PFB = 161 * 128
WS_PF = 0x100000
WS_W2 = 0x700000
WS_H = 0xA00000
WS_Z = 0x1200000
WS_STAMP = 0x2000000
WS_SIZE = 268435456

SLOT = 32768
L_OUT = 98304
L_XN = 119040
L_RP = 129280
L_CT = 139520
L_CS = 61440
L_G = 0
L_RED = 0
L_Z = 65536
L_INB = 0
L_EXC = 98304
L_ZST = 114688
ZSTU = 32 * 272
LDS_BYTES = 163840

sX, sWS, sWR, sWI, sW1, sW2, sOUT, sTAB = 4, 8, 12, 16, 20, 24, 28, 32
sWAVE, sC, sXCD, sIDX, sTAG, sRB, sU0, sWIDE, sJOB, sRB2, sJ, sROT = range(36, 48)
T0, T1, T2, T3, T4, T5, T6, T7 = range(48, 56)
sPOLL = 56
sEX = 58
sST = 60
sM = 62
sWROW = 64
sBID = 64
sHB = 68
F0, F1_, F2, F3, F4, F5, sW2B, sR2 = range(72, 80)
sNS = 57
sSTAMP = 80

SPIN_MAX = 200000


def pi_(m):
    return (m & ~12) | ((m & 4) << 1) | ((m & 8) >> 1)


def bf16(x):
    u = np.asarray(x, dtype=np.float32).view(np.uint32).astype(np.uint64)
    return (((u + 0x7FFF + ((u >> 16) & 1)) >> 16) & 0xFFFF).astype(np.uint16)


def tables():
    fr = []
    for part in range(2):
        for t in range(3):
            f = np.zeros((64, 8))
            for l in range(64):
                n, h = l & 31, l >> 5
                f1, e1 = n >> 1, n & 1
                for j in range(8):
                    Q = 4 * t + 2 * h + (j >> 2)
                    if Q >= 10 or n >= 22 or Q // 5 != e1:
                        continue
                    d1 = 4 * (Q % 5) + (j & 3)
                    th = 2 * math.pi * ((d1 * f1) % 20) / 20
                    f[l, j] = math.cos(th) if part == 0 else -math.sin(th)
            fr.append(f)
    for kind in range(3):
        for t in range(2):
            f = np.zeros((64, 8))
            for l in range(64):
                a = pi_(l & 31)
                for j in range(8):
                    b = 16 * t + 8 * (l >> 5) + j
                    th = 2 * math.pi * ((a * b) % 32) / 32
                    f[l, j] = [math.cos(th), -math.sin(th), math.sin(th)][kind]
            fr.append(f)
    for hb in range(2):
        for kind in range(3):
            for tau in range(4):
                t = tau ^ (2 * hb)
                f = np.zeros((64, 8))
                for l in range(64):
                    a = 32 * hb + pi_(l & 31)
                    for j in range(8):
                        b = 16 * t + 8 * (l >> 5) + j
                        th = 2 * math.pi * ((a * b) % 64) / 64
                        f[l, j] = [math.cos(th), -math.sin(th), math.sin(th)][kind]
                fr.append(f)
    return fr


def lane_table():
    t = np.zeros((4, 64, 16), np.uint32)
    for w in range(4):
        for l in range(64):
            h, n = l >> 5, l & 31
            f2 = pi_(n)
            for p in range(6):
                f1 = 4 * (p >> 1) + 2 * h + (p & 1)
                f = f1 + 20 * f2
                U = 322
                if f1 <= 10 and f <= 320:
                    U = f
                elif 1 <= f1 <= 9:
                    U = 640 - f
                line = U >> 1
                for part in range(2):
                    t[w, l, 6 * part + p] = L_OUT + line * 128 + ((4 * (U & 1) + part) ^ ((line >> 1) & 7)) * 16 + 4 * w
            t[w, l, 12] = 0x80008000 if f2 > 15 else 0
            t[w, l, 13] = L_XN + 2560 * w + 1280 * h + 8 * n
            kk, c, G = (l >> 2) & 3, l & 3, (l >> 4) & 1
            b = L_XN + 2560 * w + kk * 64 + (16 * G + 8 * (c & 1) + 4 * (c >> 1)) * 2
            t[w, l, 14] = b + 512 * h
            t[w, l, 15] = b
    return t.reshape(4, 64, 4, 4).transpose(0, 2, 1, 3).copy()


TAB_F20, TAB_F32, TAB_F64, TAB_LC = 0, 6 * 1024, 12 * 1024, 36 * 1024
TAB_BYTES = 52 * 1024


class Gen:
    def __init__(self, stop=None, stamps=False, **opt):
        self.k = K()
        self.stop = stop
        self.stamps = stamps
        self.nst = 0
        self.stn = []
        self.opt = dict(FLAG_AT=2, ROT=1, P1DMA=2, P1START=0, F1AT=5, FZAT=8, NV0=4, NV=2, HD=4)
        self.opt.update(opt)

    def stamp(self, name):
        if not self.stamps:
            return
        k = self.k
        if name in self.stn:
            i = self.stn.index(name)
        else:
            i = len(self.stn)
            self.stn.append(name)
        assert sSTAMP + i <= 101
        with k.atomic():
            k(f"{'s_memtime' if self.stamps == 'cyc' else 's_memrealtime'} s[{sST}:{sST+1}]")
            k.drain_lg()
            k(f"s_mov_b32 s{sSTAMP+i}, s{sST}")

    def pi_v(self, d, s, t):
        k = self.k
        k(f"v_and_b32 v{d}, 0x13, v{s}")
        k(f"v_bfe_u32 v{t}, v{s}, 2, 1")
        k(f"v_lshl_or_b32 v{d}, v{t}, 3, v{d}")
        k(f"v_bfe_u32 v{t}, v{s}, 3, 1")
        k(f"v_lshl_or_b32 v{d}, v{t}, 2, v{d}")

    def poll_issue(self, regs):
        k = self.k
        return [k.vmem(f"buffer_load_dword v{dr}, v{ar}, s[{sWS}:{sWS+3}], 0 offen sc1") for ar, dr in regs][-1]

    def poll_check(self, regs, tok):
        k = self.k
        L, Ld = k.lab("L_poll"), k.lab("L_polld")
        with k.atomic():
            k.wait_vm(tok)
            k(f"s_mov_b32 s{sPOLL}, 0")
            k(f"{L}:")
            for i, (ar, dr) in enumerate(regs):
                if i == 0:
                    k(f"v_cmp_ne_u32 vcc, s{sTAG}, v{dr}")
                else:
                    k(f"v_cmp_ne_u32 s[{sM}:{sM+1}], s{sTAG}, v{dr}")
                    k(f"s_or_b64 vcc, vcc, s[{sM}:{sM+1}]")
            k(f"s_add_u32 s{sPOLL}, s{sPOLL}, 1")
            k("s_cmp_eq_u64 vcc, 0")
            k(f"s_cbranch_scc1 {Ld}")
            for ar, dr in regs:
                k(f"buffer_load_dword v{dr}, v{ar}, s[{sWS}:{sWS+3}], 0 offen sc1")
            k("s_waitcnt vmcnt(0)")
            k(f"s_cmp_lt_u32 s{sPOLL}, {SPIN_MAX}")
            k(f"s_cbranch_scc1 {L}")
            k(f"{Ld}:")

    def flag_store(self, pre, sreg, vtmp):
        k = self.k
        L = k.lab("L_fs")
        with k.atomic():
            k(f"s_cmp_lg_u32 s{sWAVE}, 0")
            k(f"s_cbranch_scc1 {L}")
            k(pre)
            k(f"v_mov_b32 v{vtmp}, s{sTAG}")
            k(f"v_mov_b32 v{vtmp+1}, 0")
            k("s_mov_b64 exec, 1")
            k.vmem(f"buffer_store_dword v{vtmp}, v{vtmp+1}, s[{sWS}:{sWS+3}], s{sreg} offen sc1", opt=True)
            k("s_mov_b64 exec, -1")
            k(f"{L}:")

    def finish(self):
        k = self.k
        k("L_fin:")
        if self.stamps:
            self.stamp("end")
            k(f"s_cmp_lg_u32 s{sWAVE}, 0\ns_cbranch_scc1 L_end")
            k(f"s_lshl_b32 s{T0}, s2, 8\ns_add_u32 s{T0}, s{T0}, {WS_STAMP}\nv_mov_b32 v2, 0")
            k("s_mov_b64 exec, 1")
            for i in range(len(self.stn)):
                k(f"v_mov_b32 v3, s{sSTAMP+i}")
                k(f"buffer_store_dword v3, v2, s[{sWS}:{sWS+3}], s{T0} offen offset:{4*i}")
        k("L_end:")
        k("s_endpgm")

    def startup(self):
        k = self.k
        o = self.opt
        if self.stamps:
            for i in range(sSTAMP, 102):
                k(f"s_mov_b32 s{i}, 0")
        self.stamp("start")
        k("s_cmp_ge_u32 s2, 256\ns_cbranch_scc1 L_end")
        k(f"s_load_dwordx2 s[{sX}:{sX+1}], s[0:1], 0")
        k(f"s_load_dwordx2 s[{sWS}:{sWS+1}], s[0:1], 64")
        k(f"s_load_dwordx2 s[{sWR}:{sWR+1}], s[0:1], 8")
        k(f"s_load_dwordx2 s[{sWI}:{sWI+1}], s[0:1], 16")
        k(f"s_load_dwordx2 s[{sW1}:{sW1+1}], s[0:1], 32")
        k(f"s_load_dwordx2 s[{sW2}:{sW2+1}], s[0:1], 40")
        k(f"s_load_dwordx2 s[{sOUT}:{sOUT+1}], s[0:1], 48")
        k(f"v_lshrrev_b32 v2, 6, v0\nv_and_b32 v1, 63, v0")
        k(f"s_and_b32 s{sXCD}, s2, 7\ns_lshr_b32 s{sIDX}, s2, 3")
        k(f"v_readfirstlane_b32 s{sWAVE}, v2")
        k(f"s_lshl_b32 s{sC}, s{sXCD}, 5\ns_add_u32 s{sC}, s{sC}, s{sIDX}")
        k(f"s_and_b32 s{T0}, s{sC}, 7\ns_lshl_b32 s{T0}, s{T0}, 3\ns_lshl_b32 s{T1}, s{sWAVE}, 1\ns_add_u32 s{T0}, s{T0}, s{T1}")
        k(f"s_lshl_b32 s{T0}, s{T0}, 5\ns_lshr_b32 s{T1}, s{sC}, 3\ns_add_u32 s{T0}, s{T0}, s{T1}\ns_mul_i32 s{T0}, s{T0}, 1280")
        k("v_lshrrev_b32 v3, 5, v1")
        k("v_and_b32 v4, 31, v1")
        k("v_mul_u32_u24 v5, 40960, v3\nv_lshl_add_u32 v5, v4, 3, v5")
        k(f"s_mov_b32 s{sX+2}, 2621440\ns_mov_b32 s{sX+3}, 0x20000")
        k(f"s_getpc_b64 s[{sTAB}:{sTAB+1}]\nL_pc:\ns_add_u32 s{sTAB}, s{sTAB}, tab_data-L_pc\ns_addc_u32 s{sTAB+1}, s{sTAB+1}, 0")
        k(f"s_mov_b32 s{sTAB+2}, {TAB_BYTES}\ns_mov_b32 s{sTAB+3}, 0x20000")
        k("v_lshlrev_b32 v6, 4, v1")
        k(f"s_mul_i32 s{T1}, s{sWAVE}, 3072")
        k("s_waitcnt lgkmcnt(0)")
        self.t_x = [k.vmem(f"buffer_load_dwordx2 v[{10+2*i}:{11+2*i}], v5, s[{sX}:{sX+3}], s{T0} offen offset:{256*i}") for i in range(5)]
        k(f"s_load_dword s{sTAG}, s[{sWS}:{sWS+1}], {WS_GEN}")
        k(f"s_sub_u32 s{T4}, s{sTAB}, tab_data-{KN}\ns_subb_u32 s{T4+1}, s{sTAB+1}, 0")
        k(f"s_mov_b32 s{T4+2}, tab_end-{KN}\ns_mov_b32 s{T4+3}, 0x20000")
        k(f"s_lshl_b32 s{T2}, s{sIDX}, 2\ns_add_u32 s{T2}, s{T2}, s{sWAVE}\ns_lshl_b32 s{T2}, s{T2}, 7\nv_lshlrev_b32 v7, 14, v1")
        with k.atomic():
            k("s_mov_b64 exec, 0x7f")
            k.vmem(f"buffer_load_dword v5, v7, s[{T4}:{T4+3}], s{T2} offen")
            k("s_mov_b64 exec, -1")
        k(f"s_add_u32 m0, s{T1}, {L_CT}")
        for i in range(3):
            self.t_c = k.vmem(f"buffer_load_dwordx4 v6, s[{sTAB}:{sTAB+3}], s{T1} offen offset:{i*1024} lds")
        k(f"s_lshl_b32 s{T1}, s{sWAVE}, 12\ns_add_u32 s{T1}, s{T1}, {TAB_LC}")
        for i in range(4):
            self.t_lc = k.vmem(f"buffer_load_dwordx4 {V(208+4*i,4)}, v6, s[{sTAB}:{sTAB+3}], s{T1} offen offset:{i*1024}")
        k(f"s_mov_b32 s{sWS+2}, {WS_SIZE}\ns_mov_b32 s{sWS+3}, 0x20000")
        for s_, n in ((sWR, 2048 * 642), (sWI, 2048 * 642), (sW1, 640 * 3456), (sW2, 1728 * 1280), (sOUT, 2621440)):
            k(f"s_mov_b32 s{s_+2}, {n}\ns_mov_b32 s{s_+3}, 0x20000")
        self.stamp("iss0")

    def role_loads(self):
        k = self.k
        Lw3, Lj = k.lab("L_w3"), k.lab("L_rj")
        with k.atomic():
            k(f"s_cmp_eq_u32 s{sWAVE}, 3\ns_cbranch_scc1 {Lw3}")
            k(f"s_and_b32 s{T1}, s{sC}, 1\ns_lshl_b32 s{T1}, s{T1}, 5\ns_lshr_b32 s{T2}, s{sC}, 3\ns_add_u32 s{T1}, s{T1}, s{T2}")
            k(f"s_bfe_u32 s{T2}, s{sC}, 0x10002\ns_lshl_b32 s{T2}, s{T2}, 10\ns_add_u32 s{T1}, s{T1}, s{T2}")
            k(f"s_bfe_u32 s{T2}, s{sC}, 0x10001\ns_lshl_b32 s{T2}, s{T2}, 8\ns_add_u32 s{T1}, s{T1}, s{T2}")
            k(f"s_mul_i32 s{sWROW}, s{T1}, 642")
            for i in range(1, 8):
                k(f"s_add_u32 s{sWROW+i}, s{sWROW}, {(8*(i>>2)+(i&3))*64*642}")
            k("v_min_u32 v7, 160, v0\nv_lshlrev_b32 v7, 2, v7\nv_min_u32 v7, 638, v7")
            for i in range(8):
                k.vmem(f"buffer_load_dword v{224+2*i}, v7, s[{sWR}:{sWR+3}], s{sWROW+i} offen", opt=(i >= 5))
                k.vmem(f"buffer_load_dword v{225+2*i}, v7, s[{sWI}:{sWI+3}], s{sWROW+i} offen", opt=(i >= 5))
            k(f"s_branch {Lj}")
            k(f"{Lw3}:")
            k(f"s_mul_i32 s{T3}, s{sC}, 10240")
            for n in range(10):
                if n % 4 == 0:
                    k(f"s_add_u32 s{T2}, s{T3}, {n*1024}\ns_mov_b32 m0, {L_RP + n*1024}")
                k.vmem(f"buffer_load_dwordx4 v6, s[{sW2}:{sW2+3}], s{T2} offen offset:{(n%4)*1024} lds", opt=True)
            k(f"{Lj}:")
        self.t_role = k.last_vm()

    def geometry(self):
        k = self.k
        o = self.opt
        k(f"s_lshr_b32 s{T1}, s{sXCD}, 1\ns_lshl_b32 s{sRB}, s{T1}, 2\ns_lshr_b32 s{T2}, s{sIDX}, 3\ns_add_u32 s{sRB}, s{sRB}, s{T2}")
        k(f"s_lshl_b32 s{sRB2}, s{T1}, 3\ns_lshr_b32 s{T3}, s{sIDX}, 2\ns_add_u32 s{sRB2}, s{sRB2}, s{T3}")
        k(f"s_and_b32 s{T3}, s{sXCD}, 1\ns_lshl_b32 s{sJ}, s{T3}, 2\ns_and_b32 s{T4}, s{sIDX}, 3\ns_add_u32 s{sJ}, s{sJ}, s{T4}")
        k(f"s_and_b32 s{T4}, s{sIDX}, 7")
        k(f"s_mul_i32 s{T5}, s{T4}, 3\ns_add_u32 s{T5}, s{T5}, 3\ns_mul_i32 s{T6}, s{T3}, 27\ns_add_u32 s{T5}, s{T5}, s{T6}")
        k(f"s_cmp_eq_u32 s{T5}, 39\ns_cselect_b32 s{T5}, 27, s{T5}")
        k(f"s_lshl_b32 s{T6}, s{T4}, 2\ns_mul_i32 s{T7}, s{T3}, 30\ns_add_u32 s{T6}, s{T6}, s{T7}")
        k(f"s_cmp_lt_u32 s{T4}, 3\ns_cselect_b32 s{sU0}, s{T6}, s{T5}\ns_cselect_b32 s{sWIDE}, 1, 0")
        k(f"s_mul_i32 s{T5}, s{sXCD}, 20\ns_mul_i32 s{T6}, s{T2}, 5\ns_add_u32 s{T5}, s{T5}, s{T6}\ns_add_u32 s{T5}, s{T5}, s{T4}\ns_sub_u32 s{sJOB}, s{T5}, 3")
        k(f"s_cmp_eq_u32 s{sC}, 0\ns_cselect_b32 s{sJOB}, 160, s{sJOB}")
        k(f"s_mul_i32 s{sW2B}, s{sJ}, 276480\ns_mul_i32 s{T5}, s{sWAVE}, 5120\ns_add_u32 s{sW2B}, s{sW2B}, s{T5}\ns_add_u32 s{sW2B}, s{sW2B}, {WS_W2}")
        k(f"s_cmp_ge_u32 s{sWAVE}, 2\ns_cselect_b32 s{sNS}, 13, 14")
        k(f"s_and_b32 s{T5}, s{sIDX}, 3\ns_mul_i32 s{sR2}, s{T5}, {o.get('ROT2', 3)}")
        if o["ROT"]:
            k(f"s_lshl_b32 s{T5}, s{T3}, 3\ns_add_u32 s{T5}, s{T5}, s{T4}\ns_mul_i32 s{T6}, s{sRB}, 3\ns_add_u32 s{T5}, s{T5}, s{T6}")
            k(f"s_mul_i32 s{T6}, s{T5}, 6554\ns_lshr_b32 s{T6}, s{T6}, 16\ns_mul_i32 s{T6}, s{T6}, 10\ns_sub_u32 s{sROT}, s{T5}, s{T6}")
        else:
            k(f"s_mov_b32 s{sROT}, 0")
        k(f"s_lshl_b32 s{T5}, s{sRB}, 1\ns_lshr_b32 s{T6}, s{sWAVE}, 1\ns_add_u32 s{T5}, s{T5}, s{T6}\ns_and_b32 s{T6}, s{sWAVE}, 1\ns_lshl_b32 s{T6}, s{T6}, 10")
        k(f"s_add_u32 s{T5}, s{T5}, s{T6}\ns_mul_i32 s{T5}, s{T5}, 1280")
        k("v_lshrrev_b32 v7, 3, v1\nv_mul_u32_u24 v8, 40960, v7\nv_lshrrev_b32 v9, 4, v1\nv_and_b32 v2, 7, v1\nv_xor_b32 v9, v9, v2")
        k(f"v_lshl_add_u32 v152, v9, 4, v8\nv_add_u32 v152, s{T5}, v152\nv_xor_b32 v153, 64, v152")
        k(f"s_lshr_b32 s{T5}, s{sU0}, 1\ns_lshl_b32 s{T5}, s{T5}, 7\ns_mul_i32 s{T6}, s{sWAVE}, {16*3456}\ns_add_u32 s{T5}, s{T5}, s{T6}")
        k("v_mul_u32_u24 v8, 3456, v7\nv_bfe_u32 v9, v1, 4, 1\nv_lshlrev_b32 v9, 2, v9\nv_xor_b32 v9, v9, v2")
        k(f"v_lshl_add_u32 v154, v9, 4, v8\nv_add_u32 v154, s{T5}, v154")
        k(f"s_lshl_b32 s{F3}, s{sWAVE}, 12\ns_lshl_b32 s{F4}, s{sWAVE}, 11")
        self.t_chunk = {}

    def dma_chunk(self, c):
        k = self.k
        slot = (c % 5) * SLOT
        k.begin()
        for n in range(8):
            with k.atomic():
                if n == 0:
                    k(f"s_add_u32 s{F0}, s{sROT}, {c}\ns_cmp_ge_u32 s{F0}, 10\ns_cselect_b32 s{F1_}, 10, 0\ns_sub_u32 s{F0}, s{F0}, s{F1_}")
                    k(f"s_lshl_b32 s{F1_}, s{F0}, 7\ns_mul_i32 s{F2}, s{F0}, {64*3456}")
                if n & 1 == 0:
                    m = n >> 1
                    if m:
                        k(f"s_add_u32 s{F1_}, s{F1_}, 327680")
                    k(f"s_add_u32 m0, s{F3}, {slot + m*1024}")
                    self.t_chunk[c] = k.vmem(f"buffer_load_dwordx4 v{152+(m&1)}, s[{sX}:{sX+3}], s{F1_} offen lds")
                else:
                    m = n >> 1
                    L, rg = m & 1, m >> 1
                    k(f"s_add_u32 m0, s{F4}, {slot + 16384 + L*8192 + rg*1024}")
                    k(f"s_add_u32 s{F0}, s{F2}, {rg*8*3456 + L*128}")
                    self.t_chunk[c] = k.vmem(f"buffer_load_dwordx4 v154, s[{sW1}:{sW1+3}], s{F0} offen lds")
        return k.end()

    def setup_a(self):
        k = self.k
        k("v_lshrrev_b32 v7, 1, v4\nv_cvt_f32_u32 v7, v7")
        k(f"v_mul_f32 v7, {fl(1/640)}, v7")
        k("v_lshlrev_b32 v8, 3, v3\nv_cvt_f32_u32 v8, v8\nv_mul_f32 v8, v8, v7")
        for i in range(16):
            g, r = i >> 2, i & 3
            d = 16 * (g >> 1) + 4 * (g & 1) + r
            k(f"v_fmamk_f32 v9, v7, {fl(float(d))}, v8")
            k(f"v_cos_f32 v{84+i}, v9")
            k(f"v_sin_f32 v{100+i}, v9")
        k(f"v_add_u32 v121, {L_CT}, v6")

    def setup_b(self):
        k = self.k
        k.begin()
        k(f"s_lshl_b32 s{T0}, s{sWAVE}, 12")
        k("v_bfe_u32 v7, v1, 1, 3\nv_xor_b32 v7, v7, v3\nv_lshlrev_b32 v7, 4, v7\nv_lshl_add_u32 v7, v4, 7, v7")
        k(f"v_add_u32 v128, s{T0}, v7")
        for t in range(1, 4):
            k(f"v_xor_b32 v{128+t}, {32*t}, v128")
        k("v_bfe_u32 v7, v1, 2, 2\nv_lshl_add_u32 v7, v3, 3, v7\nv_lshlrev_b32 v7, 7, v7")
        k("v_bfe_u32 v8, v1, 3, 1\nv_lshl_or_b32 v7, v8, 6, v7\nv_bfe_u32 v8, v1, 4, 1\nv_lshl_or_b32 v7, v8, 5, v7")
        k("v_and_b32 v8, 1, v1\nv_lshl_or_b32 v7, v8, 4, v7\nv_bfe_u32 v8, v1, 1, 1\nv_lshl_or_b32 v7, v8, 3, v7")
        k(f"s_add_u32 s{T1}, s{sWIDE}, 3\ns_and_b32 s{T2}, s{sU0}, 1")
        for bi in range(4):
            k(f"s_add_u32 s{T3}, s{sWAVE}, {bi}\ns_cmp_ge_u32 s{T3}, s{T1}\ns_cselect_b32 s{T4}, s{T1}, 0\ns_sub_u32 s{T3}, s{T3}, s{T4}")
            k(f"s_cmp_ge_u32 s{T3}, s{T1}\ns_cselect_b32 s{T4}, s{T1}, 0\ns_sub_u32 s{T3}, s{T3}, s{T4}")
            k(f"s_mov_b32 s{sBID+bi}, s{T3}\ns_add_u32 s{T3}, s{T3}, s{T2}\ns_and_b32 s{T4}, s{T3}, 1\ns_lshl_b32 s{T4}, s{T4}, 6\ns_lshr_b32 s{T3}, s{T3}, 1\ns_lshl_b32 s{T3}, s{T3}, 13")
            k(f"s_add_u32 s{T3}, s{T3}, 16384\nv_xor_b32 v8, s{T4}, v7\nv_add_u32 v{132+bi}, s{T3}, v8")
        for i in range(8):
            k(f"v_add_u32 v{136+i}, 0x10000, v{128+i}\nv_add_u32 v{144+i}, 0x20000, v{128+i}")
        k("v_lshrrev_b32 v7, 4, v1\nv_xor_b32 v7, v7, v1\nv_and_b32 v7, 1, v7\nv_cmp_eq_u32 vcc, 0, v7\nv_mov_b32 v8, 0x3f803f80\ns_nop 0\nv_cndmask_b32 v124, 0, v8, vcc")
        k("v_mov_b32 v125, v124\nv_mov_b32 v126, v124\nv_mov_b32 v127, v124")
        return k.end()

    def reduce32(self, r, t):
        k = self.k
        for sh in (8, 4, 2, 1):
            k(f"v_add_f32_dpp v{r}, v{r}, v{r} row_ror:{sh} row_mask:0xf bank_mask:0xf")
        k(f"v_mov_b32 v{t}, v{r}")
        k(f"v_permlane16_swap_b32 v{t}, v{r}")
        k(f"v_add_f32 v{r}, v{r}, v{t}")

    def phase1(self):
        k = self.k
        k.drain_lg()
        k(f"s_mul_i32 s{sTAG}, s{sTAG}, 1664525\ns_add_u32 s{sTAG}, s{sTAG}, 1013904223")
        k.wait_vm(self.t_x[-1])
        self.stamp("x")
        k.begin()
        for i in range(10):
            k(f"v_lshlrev_b32 v{20+2*i}, 16, v{10+i}\nv_and_b32 v{21+2*i}, 0xffff0000, v{10+i}")
        k("v_pk_add_f32 v[8:9], v[20:21], v[22:23]\nv_pk_add_f32 v[10:11], v[24:25], v[26:27]")
        for i in range(4, 10, 2):
            k(f"v_pk_add_f32 v[8:9], v[8:9], v[{20+2*i}:{21+2*i}]\nv_pk_add_f32 v[10:11], v[10:11], v[{22+2*i}:{23+2*i}]")
        k("v_pk_add_f32 v[8:9], v[8:9], v[10:11]\nv_add_f32 v8, v8, v9")
        self.reduce32(8, 9)
        k(f"v_mul_f32 v8, {fl(1/640)}, v8")
        for i in range(10):
            k(f"v_pk_add_f32 v[{20+2*i}:{21+2*i}], v[{20+2*i}:{21+2*i}], v[8:9] op_sel_hi:[1,0] neg_lo:[0,1] neg_hi:[0,1]")
        k("v_pk_mul_f32 v[10:11], v[20:21], v[20:21]\nv_pk_mul_f32 v[12:13], v[22:23], v[22:23]")
        for i in range(2, 10, 2):
            k(f"v_pk_fma_f32 v[10:11], v[{20+2*i}:{21+2*i}], v[{20+2*i}:{21+2*i}], v[10:11]")
            k(f"v_pk_fma_f32 v[12:13], v[{22+2*i}:{23+2*i}], v[{22+2*i}:{23+2*i}], v[12:13]")
        k("v_pk_add_f32 v[10:11], v[10:11], v[12:13]\nv_add_f32 v10, v10, v11")
        with k.atomic():
            k.wait_vm(self.t_lc)
            k("s_barrier")
        for i in range(12):
            tc = k.ds(f"ds_read_b128 {A(4*i,4)}, v121 offset:{1024*i}")
        self.reduce32(10, 11)
        k(f"v_mul_f32 v10, {fl(1/640)}, v10")
        k("v_cvt_pk_bf16_f32 v12, v8, v10")
        k("v_and_b32 v13, 0xffff0000, v12")
        k(f"v_add_f32 v13, {fl(1e-5)}, v13\nv_cvt_pk_bf16_f32 v13, v13, v13\nv_and_b32 v13, 0xffff0000, v13")
        k("v_sqrt_f32 v13, v13\nv_lshlrev_b32 v15, 16, v12\nv_cvt_pk_bf16_f32 v13, v13, v13\nv_and_b32 v13, 0xffff0000, v13")
        k("v_rcp_f32 v14, v13\nv_sub_f32 v15, v8, v15")
        k("v_mul_f32 v15, v15, v14")
        for i in range(10):
            k(f"v_pk_fma_f32 v[{20+2*i}:{21+2*i}], v[{20+2*i}:{21+2*i}], v[14:15], v[14:15] op_sel:[0,0,1] op_sel_hi:[1,0,1]")
            if i & 1:
                k(f"v_cvt_pk_bf16_f32 v{39+i}, v{18+2*i}, v{19+2*i}\nv_cvt_pk_bf16_f32 v{40+i}, v{20+2*i}, v{21+2*i}")
                tw = k.ds(f"ds_write_b64 v221, v[{39+i}:{40+i}] offset:{128*(i-1)}")
        k("v_and_b32 v12, 0xffff, v12\nv_or_b32 v12, v12, v13")
        k(f"v_mov_b32 v13, s{sTAG}")
        k(f"s_lshl_b32 s{T0}, s{sC}, 6\ns_lshl_b32 s{T1}, s{sWAVE}, 4\ns_add_u32 s{T0}, s{T0}, s{T1}\ns_add_u32 s{T0}, s{T0}, {WS_ST}")
        k("v_lshlrev_b32 v2, 3, v3")
        k.wait_lg(tw, est=40)
        toks = []
        for t in range(3):
            for jj in range(2):
                ar = 222 if t < 2 else 223
                toks.append(k.ds(f"ds_read_b64_tr_b16 v[{40+4*t+2*jj}:{41+4*t+2*jj}], v{ar} offset:{t*1024+jj*256}"))
        with k.atomic():
            k("s_mov_b32 exec_lo, 1\ns_mov_b32 exec_hi, 1")
            k.vmem(f"buffer_store_dwordx2 v[12:13], v2, s[{sWS}:{sWS+3}], s{T0} offen sc1")
            k("s_mov_b64 exec, -1")
        for t in range(3):
            k.wait_lg(toks[2 * t + 1], est=(60 if t == 0 else 0))
            for part in range(2):
                D = V(52 + 16 * part, 16)
                k(f"v_mfma_f32_32x32x16_bf16 {D}, {V(40+4*t,4)}, {A(12*part+4*t,4)}, {'0' if t == 0 else D}")
        self.stamp("dst1")
        self.cmul(52, 84, +1, 160, 8)
        Fr, Fi, NFi = 24, 32, 40
        first = True
        for t in range(2):
            for (dat, cre, cim) in ((160, Fr, Fi), (168, NFi, Fr)):
                k(f"v_mfma_f32_32x32x16_bf16 {V(176,16)}, {V(dat+4*t,4)}, {A(cre+4*t,4)}, {'0' if first else V(176,16)}")
                k(f"v_mfma_f32_32x32x16_bf16 {V(192,16)}, {V(dat+4*t,4)}, {A(cim+4*t,4)}, {'0' if first else V(192,16)}")
                first = False
        main = k.end()
        fill = []
        for c in range(self.opt["P1DMA"]):
            fill += self.dma_chunk(c)
        k.weave(main, fill, start=self.opt["P1START"])
        Lj = k.lab("L_rjb")
        k.wait_vm(self.t_role)
        with k.atomic():
            k(f"s_cmp_eq_u32 s{sWAVE}, 3\ns_cbranch_scc1 {Lj}")
            k("v_cmp_gt_u32 vcc, 160, v0\nv_mov_b32 v2, 0x07060302\nv_mov_b32 v7, 0x05040100\nv_cndmask_b32 v7, v2, v7, vcc")
            k(f"v_min_u32 v8, 161, v0\nv_bfe_u32 v9, v8, 1, 3\nv_lshlrev_b32 v9, 4, v9\nv_lshl_add_u32 v8, v8, 7, v9\nv_add_u32 v8, {L_OUT}, v8")
            for q, lc in enumerate((2, 3, 6, 7)):
                for r in range(4):
                    i = 4 * (q & 1) + r
                    k(f"v_perm_b32 v{240+4*q+r}, v{225+2*i}, v{224+2*i}, v{7 if q < 2 else 2}")
                k(f"v_xor_b32 v9, {16*lc}, v8")
                k.ds(f"ds_write_b128 v9, {V(240+4*q,4)}", opt=True)
            k(f"{Lj}:")
        for p in range(6):
            r0 = 4 * (p >> 1) + 2 * (p & 1)
            k(f"v_cvt_pk_bf16_f32 v{8+(p&1)*2}, v{176+r0}, v{177+r0}\nv_cvt_pk_bf16_f32 v{9+(p&1)*2}, v{192+r0}, v{193+r0}")
            k(f"v_xor_b32 v{9+(p&1)*2}, v220, v{9+(p&1)*2}")
            k.ds(f"ds_write_b32 v{208+p}, v{8+(p&1)*2}")
            k.ds(f"ds_write_b32 v{214+p}, v{9+(p&1)*2}")
        k(f"v_lshlrev_b32 v2, 4, v0\nv_add_u32 v7, {L_OUT}, v2")
        k(f"s_mul_i32 s{T0}, s{sC}, {PFB}\ns_add_u32 s{T0}, s{T0}, {WS_PF}")
        k("v_lshrrev_b32 v8, 4, v1\nv_bfe_u32 v9, v1, 2, 2\nv_mul_u32_u24 v9, 1280, v9\nv_mul_u32_u24 v10, 80, v8")
        k(f"v_and_b32 v11, 1, v1\nv_lshl_add_u32 v10, v11, 3, v10\nv_add3_u32 v10, v10, v9, 0\nv_bfe_u32 v9, v1, 1, 1")
        k(f"s_mov_b32 s{T1}, 276480\nv_mul_lo_u32 v8, v8, s{T1}\nv_and_b32 v11, 15, v1\nv_lshl_add_u32 v8, v11, 4, v8")
        k(f"s_lshr_b32 s{T1}, s{sC}, 2\ns_mul_i32 s{T1}, s{T1}, 5120\ns_and_b32 s{T2}, s{sC}, 3\ns_lshl_b32 s{T2}, s{T2}, 8\ns_add_u32 s{T1}, s{T1}, s{T2}\ns_add_u32 s{T1}, s{T1}, {WS_W2}")
        k(f"s_cmp_ge_u32 s{sC}, 216\ns_cselect_b32 s{T1}, {WS_SIZE}, s{T1}")
        for i in range(3):
            k(f"s_add_u32 s{T2}, s{sWAVE}, {4*i}\ns_cmp_ge_u32 s{T2}, 5\ns_cselect_b32 s{T3}, 1, 0\ns_mul_i32 s{T4}, s{T3}, 5\ns_sub_u32 s{T4}, s{T2}, s{T4}")
            k(f"s_mul_i32 s{T6}, s{T3}, {4*276480}\ns_lshl_b32 s{T7}, s{T4}, 10\ns_add_u32 s{T6}, s{T6}, s{T7}\ns_add_u32 s{sHB+i}, s{T6}, s{T1}")
            if i == 2:
                k(f"s_cmp_ge_u32 s{T2}, 10\ns_cselect_b32 s{sHB+i}, {WS_SIZE}, s{sHB+i}")
            k(f"s_and_b32 s{T6}, s{T4}, 1\ns_lshl_b32 s{T6}, s{T6}, 5\ns_bfe_u32 s{T7}, s{T4}, 0x10001\ns_mul_i32 s{T7}, s{T7}, 640\ns_add_u32 s{T6}, s{T6}, s{T7}")
            k(f"s_cmp_eq_u32 s{T4}, 4\ns_cselect_b32 s{T6}, 64, s{T6}\ns_cselect_b32 s{T7}, 640, 16\ns_mul_i32 s{T3}, s{T3}, 320\ns_add_u32 s{T6}, s{T6}, s{T3}\ns_add_u32 s{T6}, s{T6}, {L_RP}")
            k(f"v_mad_u32_u24 v{12+i}, v9, s{T7}, v10\nv_add_u32 v{12+i}, s{T6}, v{12+i}")
        k.drain_lg()
        k("s_barrier")
        self.stamp("out")
        toks = [k.ds(f"ds_read_b128 {V(160+4*i,4)}, v7 offset:{4096*i}") for i in range(6)]
        tr = [k.ds(f"ds_read_b64_tr_b16 {V(184+4*i+2*jj,2)}, v{12+i} offset:{5120*jj}") for i in range(3) for jj in range(2)]
        for i in range(6):
            k.wait_lg(toks[i])
            with k.atomic():
                if i == 5:
                    L = k.lab("L_o6")
                    k(f"s_cmp_lg_u32 s{sWAVE}, 0\ns_cbranch_scc1 {L}\ns_mov_b64 exec, 0xff")
                k.vmem(f"buffer_store_dwordx4 {V(160+4*i,4)}, v2, s[{sWS}:{sWS+3}], s{T0} offen sc1", opt=(i == 5))
                if i == 5:
                    k(f"s_mov_b64 exec, -1\n{L}:")
                else:
                    k(f"s_add_u32 s{T0}, s{T0}, 4096")
        for i in range(3):
            k.wait_lg(tr[2 * i + 1])
            self.t_out = k.vmem(f"buffer_store_dwordx4 {V(184+4*i,4)}, v8, s[{sWS}:{sWS+3}], s{sHB+i} offen sc1")
        self.stamp("p1done")

    def cmul(self, src, c0, sgn, dst, t):
        k = self.k
        n1 = "" if sgn > 0 else " neg_lo:[1,0,0] neg_hi:[1,0,0]"
        n2 = " neg_lo:[1,0,0] neg_hi:[1,0,0]" if sgn > 0 else ""
        for p in range(8):
            re, im, c, s = V(src + 2 * p, 2), V(src + 16 + 2 * p, 2), V(c0 + 2 * p, 2), V(c0 + 16 + 2 * p, 2)
            q = t + 4 * (p & 1)
            k(f"v_pk_mul_f32 {V(q,2)}, {re}, {c}")
            k(f"v_pk_mul_f32 {V(q+2,2)}, {im}, {c}")
            k(f"v_pk_fma_f32 {V(q,2)}, {im}, {s}, {V(q,2)}{n1}")
            k(f"v_pk_fma_f32 {V(q+2,2)}, {re}, {s}, {V(q+2,2)}{n2}")
            k(f"v_cvt_pk_bf16_f32 v{dst+p}, v{q}, v{q+1}")
            k(f"v_cvt_pk_bf16_f32 v{dst+8+p}, v{q+2}, v{q+3}")

    TW1, TW2, F64, F32 = 160, 192, 184, 232

    def sfft_setup(self):
        k = self.k
        TW1, TW2 = self.TW1, self.TW2
        k.begin()
        k(f"v_lshrrev_b32 v2, 3, v1\nv_and_b32 v5, 3, v2\nv_lshrrev_b32 v7, 2, v2\nv_lshl_add_u32 v5, v7, 3, v5")
        k(f"s_mov_b32 s{T3}, {8*PFB}\nv_mul_lo_u32 v5, v5, s{T3}")
        k(f"s_bfe_u32 s{T3}, s{sJOB}, 0x30001\nv_lshrrev_b32 v7, 1, v2\nv_and_b32 v2, 7, v1\nv_xor_b32 v7, v7, v2\nv_xor_b32 v7, s{T3}, v7")
        k(f"s_lshl_b32 s{T3}, s{sJOB}, 7\ns_mul_i32 s{T4}, s{sWAVE}, {2*PFB}\ns_add_u32 s{T3}, s{T3}, s{T4}\ns_add_u32 s{T3}, s{T3}, {WS_PF}")
        k(f"v_add_u32 v5, s{T3}, v5\nv_lshl_add_u32 v224, v7, 4, v5\nv_xor_b32 v7, 4, v7\nv_lshl_add_u32 v225, v7, 4, v5")
        self.pi_v(2, 4, 5)
        k(f"s_and_b32 s{T0}, s{sWAVE}, 1\ns_lshl_b32 s{T0}, s{T0}, 5")
        k(f"v_add_u32 v5, s{T0}, v2\nv_cvt_f32_u32 v5, v5\nv_mul_f32 v5, {fl(1/2048)}, v5")
        k(f"v_cvt_f32_u32 v2, v2\nv_mul_f32 v2, {fl(1/2048)}, v2")
        k(f"v_lshlrev_b32 v7, 3, v3\nv_cvt_f32_u32 v155, v7\nv_mul_f32 v155, v155, v5")
        k(f"v_add_u32 v7, s{T0}, v7\nv_cvt_f32_u32 v157, v7\nv_mul_f32 v157, v157, v2")
        k(f"s_lshr_b32 s{T1}, s{sWAVE}, 1\ns_lshl_b32 s{T1}, s{T1}, 8\ns_or_b32 s{T1}, s{T1}, s{sJOB}\ns_cmp_eq_u32 s{T1}, 0\ns_cselect_b32 s{T2}, 0.5, 1.0\ns_cmp_eq_u32 s{T1}, 160\ns_cselect_b32 s{T2}, 0.5, s{T2}")
        for i in range(16):
            g, r = i >> 2, i & 3
            d = 16 * (g >> 1) + 4 * (g & 1) + r
            k(f"v_fmamk_f32 v7, v5, {fl(float(d))}, v155")
            k(f"v_fmamk_f32 v231, v2, {fl(float(d))}, v157")
            k(f"v_cos_f32 v{TW1+i}, v7")
            k(f"v_sin_f32 v{TW1+16+i}, v7")
            k(f"v_cos_f32 v{TW2+i}, v231")
            k(f"v_sin_f32 v{TW2+16+i}, v231")
        for i in range(32):
            k(f"v_mul_f32 v{TW2+i}, s{T2}, v{TW2+i}")
        k(f"s_lshr_b32 s{T3}, s{sWAVE}, 1\ns_lshl_b32 s{T3}, s{T3}, 2\ns_and_b32 s{T4}, s{sWAVE}, 1")
        k(f"v_bfe_u32 v2, v1, 1, 3\nv_xor_b32 v2, s{T3}, v2\nv_lshlrev_b32 v5, 7, v4\nv_add_u32 v5, {L_INB}, v5")
        k(f"v_lshl_add_u32 v7, v2, 4, v5\nv_lshl_add_u32 v7, v3, 12, v7")
        k(f"s_lshl_b32 s{T3}, s{T4}, 14\nv_add_u32 v226, s{T3}, v7\nv_xor_b32 v227, 16, v226")
        k(f"s_xor_b32 s{T3}, s{T3}, 16384\nv_add_u32 v228, s{T3}, v7\nv_xor_b32 v229, 16, v228")
        k(f"v_xor_b32 v2, 2, v2\nv_xor_b32 v2, v3, v2\nv_lshl_add_u32 v230, v2, 4, v5\ns_lshl_b32 s{T3}, s{T4}, 12\nv_add_u32 v230, s{T3}, v230")
        return k.end()

    def sfft_consts(self):
        k = self.k
        k.begin()
        for i in range(18):
            with k.atomic():
                if i == 0:
                    k(f"s_and_b32 s{F5}, s{sWAVE}, 1\ns_mul_i32 s{F5}, s{F5}, 12288\ns_add_u32 s{F5}, s{F5}, {TAB_F64}")
                elif i in (4, 8, 16):
                    k(f"s_add_u32 s{F5}, s{F5}, 4096")
                elif i == 12:
                    k(f"s_movk_i32 s{F5}, {TAB_F32}")
                self.t_sc = k.vmem(f"buffer_load_dwordx4 {A(self.F64+4*i,4)}, v6, s[{sTAB}:{sTAB+3}], s{F5} offen offset:{(i%4)*1024}")
        return k.end()

    def gen_g(self):
        k = self.k
        k.begin()
        D, P, R2, R26, B = 112, 116, 122, 128, 136
        k(f"s_mul_i32 s{T0}, s{sJ}, 40\nv_and_b32 v158, 15, v1\nv_add_u32 v159, s{T0}, v158\nv_cvt_f32_u32 v{D}, v159\nv_add_f32 v{D+1}, 0x41800000, v{D}")
        k(f"v_and_b32 v159, 7, v158\nv_lshrrev_b32 v158, 3, v158\nv_mul_u32_u24 v158, 320, v158\nv_add3_u32 v159, v159, v158, s{T0}\nv_add_u32 v159, 32, v159\nv_cvt_f32_u32 v{D+2}, v159")
        k(f"s_and_b32 s{T0}, s{sWAVE}, 1\ns_mul_i32 s{T0}, s{T0}, 160\ns_lshr_b32 s{T1}, s{sWAVE}, 1\ns_add_u32 s{T0}, s{T0}, s{T1}")
        k(f"v_lshrrev_b32 v158, 4, v1\nv_lshl_add_u32 v158, v158, 3, s{T0}\nv_cvt_f32_u32 v{D+3}, v158")
        k(f"s_mul_i32 s{T0}, s{sWAVE}, 15360\ns_add_u32 s{T0}, s{T0}, {L_G}\nv_add_u32 v134, s{T0}, v6")
        for blk in range(3):
            k(f"v_mul_f32 v158, 0.5, v{D+blk}\nv_fract_f32 v158, v158\nv_mul_f32 v{D+blk}, {fl(1/640)}, v{D+blk}")
            k(f"v_cos_f32 v158, v158\nv_mul_f32 v159, v{D+3}, v{D+blk}\nv_cvt_pk_bf16_f32 v{160+blk}, 1.0, v158")
            k(f"v_fract_f32 v159, v159\nv_add_f32 v158, v{D+blk}, v{D+blk}\nv_mul_f32 v135, {fl(26.0)}, v{D+blk}")
            k(f"v_cos_f32 v{P+2*blk}, v159")
            k(f"v_sin_f32 v{P+2*blk+1}, -v159")
            k(f"v_cos_f32 v{R2+2*blk}, v158")
            k(f"v_sin_f32 v{R2+2*blk+1}, -v158")
            k(f"v_cos_f32 v{R26+2*blk}, v135")
            k(f"v_sin_f32 v{R26+2*blk+1}, -v135")
        for ks in range(5):
            for jd in range(4):
                for blk in range(3):
                    b = (B if ks & 1 == 0 else 172) + 4 * blk
                    p = V(P + 2 * blk, 2)
                    k(f"v_cvt_pk_bf16_f32 v{b+jd}, v{P+2*blk}, v{P+2*blk+1}")
                    if not (ks == 4 and jd == 3):
                        r = V((R2 if jd < 3 else R26) + 2 * blk, 2)
                        t = V(164 + 2 * blk, 2)
                        k(f"v_pk_mul_f32 {t}, {p}, {r} op_sel_hi:[1,0]")
                        k(f"v_pk_fma_f32 {p}, {p}, {r}, {t} op_sel:[1,1,0] op_sel_hi:[0,1,1] neg_lo:[1,0,0]")
                    if jd == 3:
                        if ks == 0:
                            k(f"v_cmp_eq_f32 vcc, 0, v{D+3}\ns_nop 1\nv_cndmask_b32 v{b}, v{b}, v{160+blk}, vcc")
                        k.ds(f"ds_write_b128 v134, {V(b,4)} offset:{1024*(3*ks+blk)}")
        return k.end()

    def w2reg(self, i, b):
        q = 5 * i + b
        return A(4 * q, 4) if q < 64 else V(232 + 4 * (q - 64), 4)

    def w2_loads(self, steps):
        k = self.k
        k.begin()
        for i in steps:
            for b in range(5):
                with k.atomic():
                    if b == 0:
                        k(f"s_add_u32 s{F5}, s{sR2}, {i}\ns_cmp_ge_u32 s{F5}, 14\ns_cselect_b32 s{F2}, 14, 0\ns_sub_u32 s{F5}, s{F5}, s{F2}")
                        k(f"s_cmp_ge_u32 s{F5}, s{sNS}\ns_mul_i32 s{F5}, s{F5}, {4*5120}\ns_cselect_b32 s{F5}, {WS_SIZE}, s{F5}\ns_add_u32 s{F5}, s{F5}, s{sW2B}")
                    if b == 4:
                        k(f"s_add_u32 s{F5}, s{F5}, 4096")
                    k.vmem(f"buffer_load_dwordx4 {self.w2reg(i,b)}, v6, s[{sWS}:{sWS+3}], s{F5} offen offset:{(b&3)*1024} sc1")
        return k.end()

    def gemm1(self, nb, job):
        k = self.k
        o = self.opt
        F1R = [(8, 12), (9, 13), (10, 14), (11, 15)]

        def cap(f):
            k.begin()
            f()
            return k.end()
        tok = {}

        def reads(c, t, bs):
            slot = c % 5
            st, off0 = slot // 2, (slot % 2) * SLOT
            out = []
            for bi in range(nb):
                k.begin()
                if bi == 0:
                    k.ds(f"ds_read_b128 {V(112+4*bs,4)}, v{128+8*st+t} offset:{off0}")
                for jj in range(2):
                    tok[c, t, bi] = k.ds(f"ds_read_b64_tr_b16 {V(80+16*bs+4*bi+2*jj,2)}, v{132+8*st+bi} offset:{off0 + t*2048 + jj*512}")
                out.append(k.end())
            return out

        vq = []
        for c in range(o["P1DMA"], 10):
            vq += [(max(0, c - 3) if c >= 5 else 0, u) for u in self.dma_chunk(c)]

        def f1i():
            with k.atomic():
                k(f"v_mul_u32_u24 v8, {FS}, v1\nv_add_u32 v8, {WS_F1}, v8")
                for i in range(1, 4):
                    k(f"v_add_u32 v{8+i}, {64*FS*i}, v8")
                self.t_f1 = self.poll_issue(F1R)

        def fs():
            with k.atomic():
                k(f"s_lshl_b32 s{F0}, s{sRB}, 7\ns_lshl_b32 s{F5}, s{sWAVE}, 5\ns_add_u32 s{F0}, s{F0}, s{F5}\ns_lshl_b32 s{F0}, s{F0}, 3")
                k(f"s_add_u32 s{F0}, s{F0}, {WS_ST}\nv_lshlrev_b32 v156, 3, v4\nv_add_u32 v156, s{F0}, v156")
                self.t_st = k.vmem(f"buffer_load_dwordx2 v[158:159], v156, s[{sWS}:{sWS+3}], 0 offen sc1")
        pos = len(vq) - 8 * o.get("F1BACK", 1)
        vq[pos:pos] = [(vq[pos][0], u) for u in cap(f1i) + cap(fs)]
        late = []
        if job:
            late += cap(self.inbox_dma)
            vq += [(0, u) for u in self.sfft_consts()]
        npre = o.get("W2PREJ", 2) if job else o.get("W2PRE", 5)
        late += self.w2_loads(range(npre))

        def epi_addr():
            k(f"s_lshl_b32 s{T0}, s{sWAVE}, 7\ns_add_u32 s{T0}, s{T0}, {L_CS}")
            k(f"v_lshrrev_b32 v2, 4, v1\nv_lshlrev_b32 v2, 4, v2\nv_and_b32 v5, 1, v1\nv_lshl_or_b32 v2, v5, 6, v2\nv_add_u32 v2, s{T0}, v2")
            k(f"s_lshl_b32 s{T0}, s{sRB}, 3\ns_lshl_b32 s{T1}, s{sWAVE}, 1\ns_add_u32 s{T0}, s{T0}, s{T1}\ns_mul_i32 s{T0}, s{T0}, 55296")
            k(f"s_lshl_b32 s{T1}, s{sU0}, 10\ns_add_u32 s{T0}, s{T0}, s{T1}\ns_add_u32 s{T0}, s{T0}, {WS_H}")
            k("v_bfe_u32 v7, v1, 4, 1\nv_mul_u32_u24 v7, 55296, v7\nv_and_b32 v5, 15, v1\nv_lshl_add_u32 v7, v5, 4, v7\nv_lshl_add_u32 v7, v3, 8, v7")
            k(f"v_lshlrev_b32 v5, 4, v3\nv_add_u32 v5, {L_CS}, v5")
            for bi in range(nb):
                k(f"s_lshl_b32 s{T2}, s{sBID+bi}, 10\ns_add_u32 s{sHB+bi}, s{T2}, s{T0}\ns_lshl_b32 s{sBID+bi}, s{sBID+bi}, 7")
        chore = (self.sfft_setup() if job else []) + cap(epi_addr)
        nchore = len(chore)

        k.wait_vm(self.t_chunk[0])
        k("s_barrier")
        for g in reads(0, 0, 0):
            k.put(g)
        step = 0
        done_f1 = False
        for c in range(10):
            for t in range(4):
                bs = step & 1
                rd = [[] for _ in range(nb)]
                extra = []
                it = c
                if t < 3:
                    rd = reads(c, t + 1, bs ^ 1)
                elif c < 9:
                    it = c + 1
                    k.wait_vm(self.t_chunk[c + 1])
                    if c + 1 == o["FLAG_AT"]:
                        k.wait_vm(self.t_out)
                    k("s_barrier")
                    self.stamp(f"B{c+1}") if c + 1 in (1, 4, 7) else None
                    rd = reads(c + 1, 0, bs ^ 1)
                    if c + 1 == o["FLAG_AT"]:
                        extra += cap(lambda: self.flag_store(f"s_mul_i32 s{F0}, s{sC}, {FS}\ns_add_u32 s{F0}, s{F0}, {WS_F1}", F0, 8))
                    if c + 1 == o.get("F1CHK", 7):
                        extra += cap(lambda: self.poll_check(F1R, self.t_f1))
                        done_f1 = True
                nv = o["NV0"] if c < 2 else o["NV"] if not done_f1 else o.get("NVL", 2)
                vm = []
                if done_f1 and not extra and job:
                    while len(vm) < nv and len(late) > 5 * npre:
                        vm.append(late.pop(0))
                while len(vm) < nv and vq and vq[0][0] <= it:
                    vm.append(vq.pop(0)[1])
                if done_f1 and not extra:
                    while len(vm) < nv and late:
                        vm.append(late.pop(0))
                want = nchore * (step + 1) // 39
                ch = []
                while chore and nchore - len(chore) < want:
                    ch.append(chore.pop(0))
                gaps = [list(x) for x in rd]
                for i, u in enumerate(vm):
                    gaps[nb - 1 - (len(vm) - 1 - i) * nb // max(len(vm), 2) if len(vm) <= nb else i * nb // len(vm)].append(u)
                gaps[nb - 1] = extra + gaps[nb - 1]
                last = 0
                for u in ch:
                    gi = min(range(last, nb), key=lambda g: sum(k.ucost(x) for x in gaps[g]) - (8 if g == 0 else 0))
                    last = gi
                    gaps[gi].append(u)
                for bi in range(nb):
                    D = V(16 + 16 * bi, 16)
                    k.wait_lg(tok[c, t, bi])
                    k(f"v_mfma_f32_32x32x16_bf16 {D}, {V(80+16*bs+4*bi,4)}, {V(112+4*bs,4)}, {'0' if step == 0 else D}")
                    if bi == 0:
                        k(f"v_mfma_f32_16x16x32_bf16 v[120:123], {V(80+16*bs,4)}, v[124:127], {'0' if step == 0 else 'v[120:123]'}")
                    k.put(gaps[bi])
                step += 1
        assert not chore and done_f1
        rest = [u for _, u in vq] + late
        self.stamp("g1mm")
        with k.atomic():
            k("s_mov_b32 exec_lo, 0x00030003\ns_mov_b32 exec_hi, 0x00030003")
            k.ds("ds_write_b128 v2, v[120:123]")
            k("s_mov_b64 exec, -1")
        for bi in range(nb):
            k(f"v_add_u32 v{9+bi}, s{sBID+bi}, v5")
        L, Ld = k.lab("L_st"), k.lab("L_std")
        with k.atomic():
            k.wait_vm(self.t_st)
            k(f"s_mov_b32 s{sPOLL}, 0")
            k(f"{L}:")
            k(f"v_cmp_ne_u32 vcc, s{sTAG}, v159")
            k(f"s_add_u32 s{sPOLL}, s{sPOLL}, 1")
            k(f"s_cmp_eq_u64 vcc, 0\ns_cbranch_scc1 {Ld}")
            k(f"buffer_load_dwordx2 v[158:159], v156, s[{sWS}:{sWS+3}], 0 offen sc1")
            k("s_waitcnt vmcnt(0)")
            k(f"s_cmp_lt_u32 s{sPOLL}, {SPIN_MAX}\ns_cbranch_scc1 {L}")
            k(f"{Ld}:")
        k("v_lshlrev_b32 v158, 16, v158")
        k.drain_lg()
        k("s_barrier")
        toks = {}

        def csr(bi):
            toks[bi] = [k.ds(f"ds_read_b128 {V(112+16*(bi&1)+4*g,4)}, v{9+bi} offset:{32*g}") for g in range(4)]
        csr(0)
        csr(1)
        for bi in range(nb):
            cb = 112 + 16 * (bi & 1)
            pk = 80 + 8 * bi
            for gg in range(2):
                k.wait_lg(toks[bi][2 * gg + 1])
                for r in range(0, 8, 2):
                    i = 8 * gg + r
                    k(f"v_pk_fma_f32 {V(16+16*bi+i,2)}, v[158:159], {V(cb+i,2)}, {V(16+16*bi+i,2)} op_sel_hi:[0,1,1] neg_lo:[1,0,0] neg_hi:[1,0,0]")
                for r in range(0, 8, 2):
                    i = 8 * gg + r
                    k(f"v_cvt_pk_bf16_f32 v{pk+i//2}, v{16+16*bi+i}, v{17+16*bi+i}")
                for r in range(0, 8, 2):
                    i = 8 * gg + r
                    k(f"v_pk_max_i16 v{pk+i//2}, v{pk+i//2}, 0")
                self.t_h = k.vmem(f"buffer_store_dwordx4 {V(pk+4*gg,4)}, v7, s[{sWS}:{sWS+3}], s{sHB+bi} offen offset:{512*gg} sc1")
            if bi + 2 < nb:
                csr(bi + 2)
        self.stamp("g1done")
        return npre, rest

    def fh_store(self):
        pre = f"s_lshl_b32 s{T0}, s{sRB}, 4\ns_and_b32 s{T1}, s{sXCD}, 1\ns_lshl_b32 s{T1}, s{T1}, 3\ns_add_u32 s{T0}, s{T0}, s{T1}\ns_and_b32 s{T1}, s{sIDX}, 7\ns_add_u32 s{T0}, s{T0}, s{T1}\n"
        pre += f"s_mul_i32 s{T0}, s{T0}, {FS}\ns_add_u32 s{T0}, s{T0}, {WS_FH}"
        self.flag_store(pre, T0, 8)
        self.stamp("fh")

    def middle_nojob(self, npre, rest):
        k = self.k
        o = self.opt
        rest = rest + self.w2_loads(range(npre, 14))
        left = k.weave(self.gen_g(), rest, interval=o.get("W2I", 80), tail=False)
        n1 = o.get("WFH", 4)
        k.put(left[:n1])
        k.wait_vm(self.t_h)
        k.drain_lg()
        k("s_barrier")
        self.fh_store()
        k.put(left[n1:])

    def middle_job(self, npre, rest):
        k = self.k
        o = self.opt
        k.put(rest)
        pre = self.w2_loads(range(npre, 9))
        left = self.sfft_body(pre)
        post = left + self.w2_loads(range(9, 14))
        left = k.weave(self.gen_g(), post, interval=o.get("W2I", 80), tail=False)
        n1 = o.get("WFZ", 4)
        k.put(left[:n1])
        k.wait_vm(self.t_z)
        k.drain_lg()
        k("s_barrier")
        self.flag_store(f"s_mul_i32 s{T0}, s{sJOB}, {FS}\ns_add_u32 s{T0}, s{T0}, {WS_FZ}", T0, 8)
        self.stamp("fz")
        k.put(left[n1:])

    def inbox_dma(self):
        k = self.k
        for n in range(8):
            a = n & 3
            with k.atomic():
                if n == 0:
                    k(f"s_lshl_b32 s{F5}, s{sWAVE}, 13")
                k(f"s_add_u32 m0, s{F5}, {L_INB + n*1024}")
                k(f"s_mov_b32 s{F0}, {(8*(16*(a>>1)+4*(a&1)) + (n>>2))*PFB}")
                self.t_in = k.vmem(f"buffer_load_dwordx4 v{224+(a&1)}, s[{sWS}:{sWS+3}], s{F0} offen sc1 lds")

    def sfft_body(self, fill):
        k = self.k
        o = self.opt
        DAT, ACT, ACX, TM = 16, 48, 80, 112
        TW1, TW2, F64, F32 = self.TW1, self.TW2, self.F64, self.F32
        k.wait_vm(self.t_in)
        k.wait_vm(self.t_sc)
        k("s_barrier")
        self.stamp("inbox")
        k.begin()
        toks = []
        for tau in range(4):
            for part in range(2):
                toks.append(k.ds(f"ds_read_b128 {V(DAT+16*part+4*tau,4)}, v{226+2*(tau>>1)+part} offset:{(tau&1)*8192}"))
        Fr, Fi, NFi = F64, F64 + 16, F64 + 32
        R, Im = V(ACT, 16), V(ACT + 16, 16)
        for tau in range(4):
            k.wait_lg(toks[2 * tau], est=(60 if tau == 0 else 0))
            k(f"v_mfma_f32_32x32x16_bf16 {R}, {V(DAT+4*tau,4)}, {A(Fr+4*tau,4)}, {'0' if tau == 0 else R}")
            k(f"v_mfma_f32_32x32x16_bf16 {Im}, {V(DAT+4*tau,4)}, {A(Fi+4*tau,4)}, {'0' if tau == 0 else Im}")
            k.wait_lg(toks[2 * tau + 1])
            k(f"v_mfma_f32_32x32x16_bf16 {R}, {V(DAT+16+4*tau,4)}, {A(NFi+4*tau,4)}, {R}")
            k(f"v_mfma_f32_32x32x16_bf16 {Im}, {V(DAT+16+4*tau,4)}, {A(Fr+4*tau,4)}, {Im}")
        tw = [k.ds(f"ds_read_b128 {V(DAT+16+4*g,4)}, v230 offset:{g*8192}") for g in range(4)]
        k(f"s_lshl_b32 s{T3}, s{sWAVE}, 12\ns_add_u32 s{T3}, s{T3}, {L_EXC}\nv_add_u32 v120, s{T3}, v6\nv_xor_b32 v121, 4096, v120")
        self.cmul(ACT, TW1, +1, DAT, TM)
        fr, fi, nfi = F32, F32 + 8, F32 + 16
        XR, XI = V(ACX, 16), V(ACX + 16, 16)
        fst = True
        k.wait_lg(tw[-1])
        un = [f"v_lshlrev_b32 v{ACT+i}, 16, v{DAT+16+i}\nv_and_b32 v{ACT+16+i}, 0xffff0000, v{DAT+16+i}" for i in range(16)]
        for t in range(2):
            for (dat, cre, cim) in ((DAT, fr, fi), (DAT + 8, nfi, fr)):
                k(f"v_mfma_f32_32x32x16_bf16 {XR}, {A(cre+4*t,4)}, {V(dat+4*t,4)}, {'0' if fst else XR}")
                k(un.pop(0)), k(un.pop(0))
                k(f"v_mfma_f32_32x32x16_bf16 {XI}, {A(cim+4*t,4)}, {V(dat+4*t,4)}, {'0' if fst else XI}")
                k(un.pop(0)), k(un.pop(0))
                fst = False
        self.cmul(ACX, ACT, -1, DAT, TM)
        k.begin()
        self.pi_v(122, 4, 123)
        k(f"s_and_b32 s{T3}, s{sJOB}, 1\ns_bfe_u32 s{T4}, s{sJOB}, 0x10002\ns_lshl_b32 s{T4}, s{T4}, 1\ns_or_b32 s{T3}, s{T3}, s{T4}")
        k(f"s_and_b32 s{T4}, s{sWAVE}, 1\ns_lshl_b32 s{T4}, s{T4}, 1\ns_xor_b32 s{T3}, s{T3}, s{T4}\ns_lshl_b32 s{T3}, s{T3}, 5")
        k(f"s_lshr_b32 s{T4}, s{sWAVE}, 1\ns_mul_i32 s{T4}, s{T4}, {ZSTU}\ns_add_u32 s{T4}, s{T4}, {L_ZST}")
        k(f"v_mul_u32_u24 v122, 272, v122\nv_lshl_add_u32 v122, v3, 4, v122\nv_add_u32 v122, s{T4}, v122")
        k(f"s_xor_b32 s{T6}, s{T3}, 32\nv_add_u32 v123, s{T6}, v122\nv_add_u32 v122, s{T3}, v122")
        k(f"s_and_b32 s{T3}, s{sWAVE}, 1\ns_mul_i32 s{T6}, s{T3}, {16*272}\ns_add_u32 s{T4}, s{T4}, s{T6}")
        k(f"v_lshrrev_b32 v124, 4, v1\nv_mul_u32_u24 v124, 272, v124\nv_and_b32 v125, 15, v1\nv_lshl_add_u32 v124, v125, 4, v124\nv_add_u32 v124, s{T4}, v124")
        k(f"s_lshr_b32 s{T4}, s{sWAVE}, 1\ns_mul_i32 s{T4}, s{T4}, 160\ns_add_u32 s{T4}, s{T4}, s{sJOB}\ns_lshl_b32 s{T4}, s{T4}, 13")
        k(f"s_cmp_eq_u32 s{sJOB}, 160\ns_cselect_b32 s{T4}, 128, s{T4}\ns_lshl_b32 s{T3}, s{T3}, 12\ns_add_u32 s{T4}, s{T4}, s{T3}\ns_add_u32 s{T4}, s{T4}, {WS_Z}")
        k(f"s_mul_i32 s{T1}, s{sJOB}, 2\ns_lshr_b32 s{T2}, s{sWAVE}, 1\ns_add_u32 s{T1}, s{T1}, s{T2}")
        k(f"s_cmp_eq_u32 s{T1}, 0\ns_cselect_b32 s{sEX}, 0x00ff00ff, -1\ns_cmp_eq_u32 s{T1}, 320\ns_cselect_b32 s{sEX}, 0x00ff00ff, s{sEX}\ns_mov_b32 s{sEX+1}, s{sEX}")
        k(f"s_cmp_eq_u32 s{T1}, 321\ns_cselect_b32 s{T4}, {WS_SIZE}, s{T4}")
        ad = k.end()
        fst = True
        for t in range(2):
            for (dat, cre, cim) in ((DAT, fr, nfi), (DAT + 8, fi, fr)):
                k(f"v_mfma_f32_32x32x16_bf16 {R}, {V(dat+4*t,4)}, {A(cre+4*t,4)}, {'0' if fst else R}")
                k.put(ad[:2]); ad = ad[2:]
                k(f"v_mfma_f32_32x32x16_bf16 {Im}, {V(dat+4*t,4)}, {A(cim+4*t,4)}, {'0' if fst else Im}")
                k.put(ad[:1]); ad = ad[1:]
                fst = False
        k.put(ad)
        self.cmul(ACT, TW2, -1, DAT, TM)
        for q in range(4):
            k.ds(f"ds_write_b128 v120, {V(DAT+4*q,4)} offset:{1024*q}")
        n = 0
        for t in range(2):
            for (dat, cre, cim) in ((DAT, Fr, NFi), (DAT + 8, Fi, Fr)):
                k(f"v_mfma_f32_32x32x16_bf16 {XR}, {A(cre+4*t,4)}, {V(dat+4*t,4)}, {'0' if n == 0 else XR}")
                k(f"v_mfma_f32_32x32x16_bf16 {XI}, {A(cim+4*t,4)}, {V(dat+4*t,4)}, {'0' if n == 0 else XI}")
                if n == 1:
                    with k.atomic():
                        k.drain_lg()
                        k.wait_vm(self.t_h)
                        k("s_barrier")
                    for q in range(4):
                        k.ds(f"ds_read_b128 {V(DAT+16+4*q,4)}, v121 offset:{1024*q}")
                    if not o.get("FHE"):
                        self.fh_store()
                n += 1
        k.drain_lg()
        for t in range(2):
            for (dat, cre, cim) in ((DAT + 16, Fr, NFi), (DAT + 24, Fi, Fr)):
                k(f"v_mfma_f32_32x32x16_bf16 {XR}, {A(cre+8+4*t,4)}, {V(dat+4*t,4)}, {XR}")
                k(f"v_mfma_f32_32x32x16_bf16 {XI}, {A(cim+8+4*t,4)}, {V(dat+4*t,4)}, {XI}")
        main = k.end()
        left = k.weave(main, fill, start=o.get("SFS", 100), interval=o.get("SFI", 110), tail=False)
        for part in range(2):
            for gg in range(2):
                for j in range(4):
                    r = ACX + 16 * part + 8 * gg + 2 * j
                    k(f"v_cvt_pk_bf16_f32 v{DAT+8*part+4*gg+j}, v{r}, v{r+1}")
                k.ds(f"ds_write_b128 v{122+gg}, {V(DAT+8*part+4*gg,4)} offset:{128*part}")
        k.drain_lg()
        k("s_barrier")
        toks = [k.ds(f"ds_read_b128 {V(DAT+16+4*n,4)}, v124 offset:{4*272*n}") for n in range(4)]
        for n in range(4):
            k.wait_lg(toks[n])
            with k.atomic():
                k(f"s_mov_b64 exec, s[{sEX}:{sEX+1}]")
                self.t_z = k.vmem(f"buffer_store_dwordx4 {V(DAT+16+4*n,4)}, v6, s[{sWS}:{sWS+3}], s{T4} offen offset:{1024*n} sc1")
                k("s_mov_b64 exec, -1")
        self.stamp("zst")
        return left

    def tail(self):
        k = self.k
        o = self.opt
        ACC, HB, XR_, EO, ZB = 16, 96, 196, 160, 180
        HD = o['HD']
        NBUF = HD + 1
        k(f"s_lshr_b32 s{T0}, s{sRB2}, 1\ns_lshl_b32 s{T0}, s{T0}, 4\nv_and_b32 v7, 15, v1\nv_add_u32 v7, s{T0}, v7\nv_mul_u32_u24 v7, {FS}, v7\nv_add_u32 v7, {WS_FH}, v7")
        tfh = self.poll_issue([(7, 14)])
        k(f"s_lshl_b32 s{T0}, s{sWAVE}, 9\ns_add_u32 s{T0}, s{T0}, s{sRB2}\ns_mul_i32 s{T0}, s{T0}, 1280\ns_mul_i32 s{T1}, s{sJ}, 80\ns_add_u32 s{T0}, s{T0}, s{T1}")
        k(f"v_and_b32 v10, 15, v1\nv_mul_u32_u24 v11, 40960, v10\nv_add_u32 v11, s{T0}, v11\nv_lshrrev_b32 v12, 4, v1\nv_lshl_add_u32 v8, v12, 3, v11")
        k(f"v_and_b32 v13, 1, v12\nv_lshl_add_u32 v9, v13, 3, v11\nv_lshrrev_b32 v13, 1, v12\nv_mul_u32_u24 v13, 640, v13\nv_add3_u32 v9, v9, v13, 64")
        offs = (0, 32, 640, 672, 0)
        k(f"v_lshlrev_b32 v5, 3, v10")
        for nb in range(4):
            k(f"s_add_u32 s{T0}, s{sWAVE}, {nb}\ns_and_b32 s{T0}, s{T0}, 3\ns_lshl_b32 s{T5}, s{sRB2}, 2\ns_add_u32 s{T0}, s{T0}, s{T5}")
            k(f"s_mul_i32 s{T0}, s{T0}, 55296\ns_lshl_b32 s{T5}, s{sWAVE}, 10\ns_add_u32 s{T0}, s{T0}, s{T5}\ns_add_u32 s{T0}, s{T0}, {WS_H}")
            k(f"v_add_u32 v{10+nb}, s{T0}, v6")
        k(f"v_mul_u32_u24 v208, {FS}, v1\nv_add_u32 v208, {WS_FZ}, v208\nv_add_u32 v209, {64*FS}, v208\nv_add_u32 v210, 128, v1\nv_min_u32 v210, 160, v210\nv_mul_u32_u24 v210, {FS}, v210\nv_add_u32 v210, {WS_FZ}, v210")
        k(f"s_lshl_b32 s{T0}, s{sRB2}, 8\ns_lshl_b32 s{T1}, s{sWAVE}, 15\ns_add_u32 s{T0}, s{T0}, s{T1}\ns_add_u32 s{T0}, s{T0}, {WS_Z}")
        k(f"v_lshrrev_b32 v211, 4, v1\nv_lshlrev_b32 v211, 13, v211\nv_and_b32 v2, 15, v1\nv_lshl_add_u32 v211, v2, 4, v211\nv_add_u32 v211, s{T0}, v211")
        k(f"v_lshrrev_b32 v2, 4, v1\nv_bfe_u32 v212, v1, 2, 2\nv_lshlrev_b32 v213, 10, v2\nv_lshl_add_u32 v213, v212, 7, v213")
        k(f"v_lshrrev_b32 v212, 1, v212\nv_and_b32 v2, 1, v2\nv_lshl_or_b32 v212, v2, 1, v212\nv_xor_b32 v212, s{sWAVE}, v212\nv_lshl_add_u32 v213, v212, 5, v213")
        k(f"v_and_b32 v2, 3, v1\nv_lshl_add_u32 v213, v2, 3, v213\nv_add_u32 v212, {L_Z}, v213\nv_add_u32 v213, {L_Z + 40960}, v213")
        k(f"v_add_u32 v214, {L_G}, v6")
        k(f"s_lshl_b32 s{F3}, s{sWAVE}, 10")
        self.poll_check([(7, 14)], tfh)
        self.stamp("fhok")
        th = {}

        def cap(f):
            k.begin()
            f()
            return k.end()

        def hload(i):
            k.begin()
            for nb in range(4):
                with k.atomic():
                    if nb == 0:
                        k(f"s_add_u32 s{F0}, s{sR2}, {i}\ns_cmp_ge_u32 s{F0}, 14\ns_cselect_b32 s{F2}, 14, 0\ns_sub_u32 s{F0}, s{F0}, s{F2}")
                        k(f"s_cmp_ge_u32 s{F0}, s{sNS}\ns_cselect_b32 s{F0}, 0, s{F0}\ns_lshl_b32 s{F0}, s{F0}, 12")
                    th[i] = k.vmem(f"buffer_load_dwordx4 {V(HB+16*(i%NBUF)+4*nb,4)}, v{10+nb}, s[{sWS}:{sWS+3}], s{F0} offen sc1")
            return k.end()
        for i in range(HD):
            k.put(hload(i))
        FZR = [(208, 215), (209, 216), (210, 217)]
        tz = []

        def zd():
            for ks in range(20):
                with k.atomic():
                    k(f"s_add_u32 m0, s{F3}, {L_Z + ks*4096}\ns_mov_b32 s{F1_}, {ks*16*8192}")
                    tz.append(k.vmem(f"buffer_load_dwordx4 v211, s[{sWS}:{sWS+3}], s{F1_} offen sc1 lds"))
        zq = cap(zd)

        def xres():
            with k.atomic():
                k(f"s_lshl_b32 s{T0}, s{sRB2}, 6\ns_lshl_b32 s{T1}, s{sWAVE}, 4\ns_add_u32 s{T0}, s{T0}, s{T1}\ns_lshl_b32 s{T0}, s{T0}, 3\ns_add_u32 s{T0}, s{T0}, {WS_ST}")
                k.vmem(f"buffer_load_dword v206, v5, s[{sWS}:{sWS+3}], s{T0} offen sc1")
            for b in range(5):
                self.t_xr = k.vmem(f"buffer_load_dwordx2 {V(XR_+2*b,2)}, v{9 if b == 4 else 8}, s[{sX}:{sX+3}], 0 offen offset:{offs[b]}")
        xq = cap(xres)
        FZ = o["FZAT"]
        for i in range(14):
            fill = []
            if i + HD < 14:
                fill += hload(i + HD)
            if 1 <= i <= 6:
                fill.append(xq.pop(0))
            if i == FZ:
                fill += cap(lambda: setattr(self, "t_fz", self.poll_issue(FZR)))
            if i == FZ + 2:
                fill = cap(lambda: self.poll_check(FZR, self.t_fz)) + fill
            if i >= FZ + 2:
                nz = o.get('NZ', 5)
                fill += zq[:nz]
                zq = zq[nz:]
            rd = []
            if 1 <= i <= 12:
                rd = cap(lambda: [k.ds(f"ds_read_b128 {A(4*q,4)}, v214 offset:{1024*q}") for q in range(5 * (i - 1), 5 * i)])
            k.wait_vm(th[i])
            pos = {}
            for n_, u in enumerate(fill):
                pos.setdefault(1 + n_ * 19 // max(len(fill), 1), []).append(u)
            for n_, u in enumerate(rd):
                pos.setdefault(2 + 4 * n_, []).append(u)
            n = 0
            for nb in range(4):
                for b in range(5):
                    D = V(ACC + 20 * nb + 4 * b, 4)
                    k(f"v_mfma_f32_16x16x32_bf16 {D}, {self.w2reg(i,b)}, {V(HB+16*(i%NBUF)+4*nb,4)}, {'0' if i == 0 else D}")
                    n += 1
                    k.put(pos.pop(n, []))
            assert not pos
        self.stamp("g2")
        L = k.lab("L_gen")
        with k.atomic():
            k(f"s_cmp_lg_u32 s{sC}, 0\ns_cbranch_scc1 {L}")
            self.flag_store(f"s_mov_b32 s{T0}, {WS_GEN}", T0, 10)
            k(f"{L}:")
        for nb in range(1, 4):
            k(f"s_add_u32 s{T0}, s{sWAVE}, {nb}\ns_and_b32 s{T0}, s{T0}, 3\ns_mul_i32 s{T0}, s{T0}, 15360\ns_add_u32 s{T0}, s{T0}, {L_RED + (nb-1)*5120}")
            k(f"v_add_u32 v{10+nb}, s{T0}, v6")
        k(f"s_mul_i32 s{T0}, s{sWAVE}, 15360\ns_add_u32 s{T0}, s{T0}, {L_RED}\nv_add_u32 v10, s{T0}, v6")
        k.put(zq)

        def zread(ks):
            base, off = (212, ks * 4096) if ks < 10 else (213, (ks - 10) * 4096)
            return [k.ds(f"ds_read_b64_tr_b16 {V(ZB+4*(ks&3)+2*jj,2)}, v{base} offset:{off+512*jj}") for jj in range(2)][-1]

        def idft(k0, k1, valu, per):
            tk = {}
            for ks in range(k0, k0 + 3):
                tk[ks] = zread(ks)
            for ks in range(k0, k1):
                k.wait_lg(tk[ks])
                P = ks // 10
                for blk in range(3):
                    d = EO + (16 if blk == 2 else 8 * P + 4 * blk)
                    first = (ks % 10 == 0) if blk < 2 else ks == 0
                    k(f"v_mfma_f32_16x16x32_bf16 {V(d,4)}, {A(4*(3*ks+blk),4)}, {V(ZB+4*(ks&3),4)}, {'0' if first else V(d,4)}")
                    if blk == 0 and ks + 3 < k1:
                        tk[ks + 3] = zread(ks + 3)
                    else:
                        k.put(valu[:per])
                        del valu[:per]
            k.put(valu)
        k.wait_vm(tz[9])
        k.drain_lg()
        k("s_barrier")
        self.stamp("red0")
        k.begin()
        for nb in range(1, 4):
            for b in range(5):
                k.ds(f"ds_write_b128 v{10+nb}, {V(ACC+20*nb+4*b,4)} offset:{1024*b}")
        idft(0, 10, k.end(), 1)
        k("v_and_b32 v14, 0xffff0000, v206\nv_rcp_f32 v14, v14")
        for i in range(10):
            k(f"v_lshlrev_b32 v{ACC+20+2*i}, 16, v{XR_+i}\nv_and_b32 v{ACC+21+2*i}, 0xffff0000, v{XR_+i}")
        k(f"v_mul_f32 v15, {fl(-math.log2(math.e))}, v14\nv_mul_f32 v14, {fl(2.0/(640*2048))}, v14")
        k.wait_vm(tz[19])
        k.drain_lg()
        k("s_barrier")
        self.stamp("red")
        toks = [k.ds(f"ds_read_b128 {V(HB+4*q,4)}, v10 offset:{1024*q}") for q in range(15)]
        k.begin()
        for s_ in range(3):
            for i in range(20):
                k(f"v_add_f32 v{ACC+i}, v{ACC+i}, v{HB+20*s_+i}")
        idft(10, 20, k.end(), 3)
        for i in range(0, 20, 2):
            k(f"v_pk_mul_f32 {V(HB+i,2)}, {V(ACC+i,2)}, v[14:15] op_sel:[0,1] op_sel_hi:[1,1]")
        for i in range(20):
            k(f"v_exp_f32 v{HB+i}, v{HB+i}")
        for i in range(0, 20, 2):
            k(f"v_pk_mul_f32 {V(ACC+i,2)}, {V(ACC+i,2)}, v[14:15] op_sel_hi:[1,0]")
        for i in range(0, 20, 2):
            k(f"v_pk_add_f32 {V(HB+i,2)}, {V(HB+i,2)}, 1.0 op_sel_hi:[1,0]")
        for i in range(20):
            k(f"v_rcp_f32 v{HB+i}, v{HB+i}")
        for i in range(0, 20, 2):
            k(f"v_pk_mul_f32 {V(ACC+i,2)}, {V(ACC+i,2)}, {V(HB+i,2)}")
        self.stamp("idft")
        for b in range(5):
            for r in range(0, 4, 2):
                t = 10 + r
                if b < 4:
                    e, o_ = V(EO + 4 * (b & 1) + r, 2), V(EO + 8 + 4 * (b & 1) + r, 2)
                    k(f"v_pk_add_f32 {V(t,2)}, {e}, {o_}" + (" neg_lo:[0,1] neg_hi:[0,1]" if b >= 2 else ""))
                    src = V(t, 2)
                else:
                    src = V(EO + 16 + r, 2)
                k(f"v_pk_fma_f32 {V(t,2)}, {src}, {V(ACC+4*b+r,2)}, {V(ACC+20+4*b+r,2)}")
                k(f"v_cvt_pk_bf16_f32 v{XR_+2*b+r//2}, v{t}, v{t+1}")
            k.vmem(f"buffer_store_dwordx2 {V(XR_+2*b,2)}, v{9 if b == 4 else 8}, s[{sOUT}:{sOUT+3}], 0 offen offset:{offs[b]}")

    def build(self):
        k = self.k
        self.startup()
        self.setup_a()
        self.role_loads()
        self.geometry()
        k.put(self.setup_b())
        self.stamp("setup")
        self.phase1()
        Ln, Lw, Lg = k.lab("L_narrow"), k.lab("L_widejob"), k.lab("L_join")
        k(f"s_cmp_eq_u32 s{sWIDE}, 0\ns_cbranch_scc1 {Ln}")
        k(f"s_cmp_eq_u32 s{sC}, 0\ns_cbranch_scc1 {Lw}")
        snap = k.snapshot()
        tch = dict(self.t_chunk)
        self.middle_nojob(*self.gemm1(4, False))
        k(f"s_branch {Lg}")
        k(f"{Lw}:")
        k.restore(snap)
        self.t_chunk = dict(tch)
        self.middle_job(*self.gemm1(4, True))
        k(f"s_branch {Lg}")
        k(f"{Ln}:")
        k.restore(snap)
        self.t_chunk = dict(tch)
        self.middle_job(*self.gemm1(3, True))
        k(f"{Lg}:")
        k.all_opt()
        k.clear_lg()
        self.tail()
        self.finish()
        body = k.text(self.opt.get('ALIGN', 1), f'{KN}:\n.set tab_data, {KN}+0x12340\n.set tab_end, {KN}+0x23450\n')
        hdr = open("recurrent_scan__spectral_gfnet__dense_activation_relu__prompt.s.ref").read().split("; Override launch")[0]
        s = hdr + f"; @launch grid=(256,1,1) block=(256,1,1) lds={LDS_BYTES}\n"
        s += f'.amdgcn_target "amdgcn-amd-amdhsa--gfx950"\n.text\n.globl {KN}\n.p2align 8\n.type {KN},@function\n{KN}:\n'
        s += body
        s += ".p2align 8\n.type tab_data,@object\ntab_data:\n"
        for f in tables():
            u = bf16(f).reshape(-1).view(np.uint32)
            for i in range(0, 256, 8):
                s += ".long " + ",".join("0x%x" % x for x in u[i:i + 8]) + "\n"
        u = lane_table().reshape(-1)
        for i in range(0, len(u), 8):
            s += ".long " + ",".join("0x%x" % x for x in u[i:i + 8]) + "\n"
        s += f"tab_end:\n.size tab_data, {TAB_BYTES}\n"
        s += f""".section .rodata,"a"
.p2align 6
.amdhsa_kernel {KN}
  .amdhsa_next_free_vgpr 512
  .amdhsa_next_free_sgpr 102
  .amdhsa_accum_offset 256
  .amdhsa_group_segment_fixed_size 0
  .amdhsa_kernarg_size 72
  .amdhsa_user_sgpr_count 2
  .amdhsa_user_sgpr_kernarg_segment_ptr 1
  .amdhsa_system_sgpr_workgroup_id_x 1
.end_amdhsa_kernel
"""
        return s


if __name__ == "__main__":
    out = sys.argv[1] if len(sys.argv) > 1 else "k.s"
    stop = sys.argv[2] if len(sys.argv) > 2 and sys.argv[2] != "-" else None
    g = Gen(stop=stop, stamps=(len(sys.argv) > 3 and sys.argv[3] == "1"))
    open(out, "w").write(g.build())
    print("written", out, "nops inserted", fix_hazards.total, "align", getattr(align8, "stats", None), "stamps", g.stn)
```

```python
import math, sys
import numpy as np
from kf import *

KN = "recurrent_scan__spectral_gfnet__dense_activation_relu__prompt_kernel"

WS_GEN = 0
FS = 16
WS_F1 = 0x1000
WS_FH = 0x3000
WS_FZ = 0x5000
WS_ST = 0x10000
PFB = 161 * 128
WS_PF = 0x100000
WS_W2 = 0x700000
WS_H = 0xA00000
WS_Z = 0x1200000
WS_STAMP = 0x2000000
WS_SIZE = 268435456

SLOT = 32768
L_OUT = 98304
L_XN = 119040
L_RP = 129280
L_CT = 139520
L_CS = 61440
L_G = 0
L_RED = 0
L_Z = 65536
L_INB = 0
L_EXC = 98304
L_ZST = 114688
ZSTU = 32 * 272
LDS_BYTES = 163840

sX, sWS, sWR, sWI, sW1, sW2, sOUT, sTAB = 4, 8, 12, 16, 20, 24, 28, 32
sWAVE, sC, sXCD, sIDX, sTAG, sRB, sU0, sWIDE, sJOB, sRB2, sJ, sROT = range(36, 48)
T0, T1, T2, T3, T4, T5, T6, T7 = range(48, 56)
sPOLL = 56
sEX = 58
sST = 60
sM = 62
sWROW = 64
sBID = 96
sHB = 68
F0, F1_, F2, F3, F4, F5, sW2B, sR2 = range(72, 80)
sNS = 57
F6, F7 = 2, 3
sSTAMP = 80

SPIN_MAX = 200000


def pi_(m):
    return (m & ~12) | ((m & 4) << 1) | ((m & 8) >> 1)


def bf16(x):
    u = np.asarray(x, dtype=np.float32).view(np.uint32).astype(np.uint64)
    return (((u + 0x7FFF + ((u >> 16) & 1)) >> 16) & 0xFFFF).astype(np.uint16)


def tables():
    fr = []
    for part in range(2):
        for t in range(3):
            f = np.zeros((64, 8))
            for l in range(64):
                n, h = l & 31, l >> 5
                f1, e1 = n >> 1, n & 1
                for j in range(8):
                    Q = 4 * t + 2 * h + (j >> 2)
                    if Q >= 10 or n >= 22 or Q // 5 != e1:
                        continue
                    d1 = 4 * (Q % 5) + (j & 3)
                    th = 2 * math.pi * ((d1 * f1) % 20) / 20
                    f[l, j] = math.cos(th) if part == 0 else -math.sin(th)
            fr.append(f)
    for kind in range(3):
        for t in range(2):
            f = np.zeros((64, 8))
            for l in range(64):
                a = pi_(l & 31)
                for j in range(8):
                    b = 16 * t + 8 * (l >> 5) + j
                    th = 2 * math.pi * ((a * b) % 32) / 32
                    f[l, j] = [math.cos(th), -math.sin(th), math.sin(th)][kind]
            fr.append(f)
    for hb in range(2):
        for kind in range(3):
            for tau in range(4):
                t = tau ^ (2 * hb)
                f = np.zeros((64, 8))
                for l in range(64):
                    a = 32 * hb + pi_(l & 31)
                    for j in range(8):
                        b = 16 * t + 8 * (l >> 5) + j
                        th = 2 * math.pi * ((a * b) % 64) / 64
                        f[l, j] = [math.cos(th), -math.sin(th), math.sin(th)][kind]
                fr.append(f)
    return fr


def lane_table():
    t = np.zeros((4, 64, 16), np.uint32)
    for w in range(4):
        for l in range(64):
            h, n = l >> 5, l & 31
            f2 = pi_(n)
            for p in range(6):
                f1 = 4 * (p >> 1) + 2 * h + (p & 1)
                f = f1 + 20 * f2
                U = 322
                if f1 <= 10 and f <= 320:
                    U = f
                elif 1 <= f1 <= 9:
                    U = 640 - f
                line = U >> 1
                for part in range(2):
                    t[w, l, 6 * part + p] = L_OUT + line * 128 + ((4 * (U & 1) + part) ^ ((line >> 1) & 7)) * 16 + 4 * w
            t[w, l, 12] = 0x80008000 if f2 > 15 else 0
            t[w, l, 13] = L_XN + 2560 * w + 1280 * h + 8 * n
            kk, c, G = (l >> 2) & 3, l & 3, (l >> 4) & 1
            b = L_XN + 2560 * w + kk * 64 + (16 * G + 8 * (c & 1) + 4 * (c >> 1)) * 2
            t[w, l, 14] = b + 512 * h
            t[w, l, 15] = b
    return t.reshape(4, 64, 4, 4).transpose(0, 2, 1, 3).copy()


TAB_F20, TAB_F32, TAB_F64, TAB_LC = 0, 6 * 1024, 12 * 1024, 36 * 1024
TAB_BYTES = 52 * 1024


class Gen:
    def __init__(self, stop=None, stamps=False, **opt):
        self.k = K()
        self.stop = stop
        self.stamps = stamps
        self.nst = 0
        self.stn = []
        self.opt = dict(FLAG_AT=2, ROT=1, P1DMA=2, P1START=0, F1AT=5, FZAT=8, NV0=4, NV=2, HD=4)
        self.opt.update(opt)

    def stamp(self, name):
        if not self.stamps:
            return
        k = self.k
        if name in self.stn:
            i = self.stn.index(name)
        else:
            i = len(self.stn)
            self.stn.append(name)
        assert sSTAMP + i <= 95
        with k.atomic():
            k(f"{'s_memtime' if self.stamps == 'cyc' else 's_memrealtime'} s[{sST}:{sST+1}]")
            k.drain_lg()
            k(f"s_mov_b32 s{sSTAMP+i}, s{sST}")

    def pi_v(self, d, s, t):
        k = self.k
        k(f"v_and_b32 v{d}, 0x13, v{s}")
        k(f"v_bfe_u32 v{t}, v{s}, 2, 1")
        k(f"v_lshl_or_b32 v{d}, v{t}, 3, v{d}")
        k(f"v_bfe_u32 v{t}, v{s}, 3, 1")
        k(f"v_lshl_or_b32 v{d}, v{t}, 2, v{d}")

    def poll_issue(self, regs):
        k = self.k
        return [k.vmem(f"buffer_load_dword v{dr}, v{ar}, s[{sWS}:{sWS+3}], 0 offen sc1") for ar, dr in regs][-1]

    def poll_check(self, regs, tok):
        k = self.k
        L, Ld = k.lab("L_poll"), k.lab("L_polld")
        with k.atomic():
            k.wait_vm(tok)
            k(f"s_mov_b32 s{sPOLL}, 0")
            k(f"{L}:")
            for i, (ar, dr) in enumerate(regs):
                if i == 0:
                    k(f"v_cmp_ne_u32 vcc, s{sTAG}, v{dr}")
                else:
                    k(f"v_cmp_ne_u32 s[{sM}:{sM+1}], s{sTAG}, v{dr}")
                    k(f"s_or_b64 vcc, vcc, s[{sM}:{sM+1}]")
            k(f"s_add_u32 s{sPOLL}, s{sPOLL}, 1")
            k("s_cmp_eq_u64 vcc, 0")
            k(f"s_cbranch_scc1 {Ld}")
            for ar, dr in regs:
                k(f"buffer_load_dword v{dr}, v{ar}, s[{sWS}:{sWS+3}], 0 offen sc1")
            k("s_waitcnt vmcnt(0)")
            k(f"s_cmp_lt_u32 s{sPOLL}, {SPIN_MAX}")
            k(f"s_cbranch_scc1 {L}")
            k(f"{Ld}:")

    def flag_store(self, pre, sreg, vtmp):
        k = self.k
        L = k.lab("L_fs")
        with k.atomic():
            k(f"s_cmp_lg_u32 s{sWAVE}, 0")
            k(f"s_cbranch_scc1 {L}")
            k(pre)
            k(f"v_mov_b32 v{vtmp}, s{sTAG}")
            k(f"v_mov_b32 v{vtmp+1}, 0")
            k("s_mov_b64 exec, 1")
            k.vmem(f"buffer_store_dword v{vtmp}, v{vtmp+1}, s[{sWS}:{sWS+3}], s{sreg} offen sc1", opt=True)
            k("s_mov_b64 exec, -1")
            k(f"{L}:")

    def finish(self):
        k = self.k
        k("L_fin:")
        if self.stamps:
            self.stamp("end")
            k(f"s_cmp_lg_u32 s{sWAVE}, 0\ns_cbranch_scc1 L_end")
            k(f"s_lshl_b32 s{T0}, s{sIDX}, 3\ns_add_u32 s{T0}, s{T0}, s{sXCD}\ns_lshl_b32 s{T0}, s{T0}, 8\ns_add_u32 s{T0}, s{T0}, {WS_STAMP}\nv_mov_b32 v2, 0")
            k("s_mov_b64 exec, 1")
            for i in range(len(self.stn)):
                k(f"v_mov_b32 v3, s{sSTAMP+i}")
                k(f"buffer_store_dword v3, v2, s[{sWS}:{sWS+3}], s{T0} offen offset:{4*i}")
        k("L_end:")
        k("s_endpgm")

    def startup(self):
        k = self.k
        o = self.opt
        if self.stamps:
            for i in range(sSTAMP, 96):
                k(f"s_mov_b32 s{i}, 0")
        self.stamp("start")
        k("s_cmp_ge_u32 s2, 256\ns_cbranch_scc1 L_end")
        k(f"s_load_dwordx2 s[{sX}:{sX+1}], s[0:1], 0")
        k(f"s_load_dwordx2 s[{sWS}:{sWS+1}], s[0:1], 64")
        k(f"s_load_dwordx2 s[{sWR}:{sWR+1}], s[0:1], 8")
        k(f"s_load_dwordx2 s[{sWI}:{sWI+1}], s[0:1], 16")
        k(f"s_load_dwordx2 s[{sW1}:{sW1+1}], s[0:1], 32")
        k(f"s_load_dwordx2 s[{sW2}:{sW2+1}], s[0:1], 40")
        k(f"s_load_dwordx2 s[{sOUT}:{sOUT+1}], s[0:1], 48")
        k(f"v_lshrrev_b32 v2, 6, v0\nv_and_b32 v1, 63, v0")
        k(f"s_and_b32 s{sXCD}, s2, 7\ns_lshr_b32 s{sIDX}, s2, 3")
        k(f"v_readfirstlane_b32 s{sWAVE}, v2")
        k(f"s_lshl_b32 s{sC}, s{sXCD}, 5\ns_add_u32 s{sC}, s{sC}, s{sIDX}")
        k(f"s_and_b32 s{T0}, s{sC}, 7\ns_lshl_b32 s{T0}, s{T0}, 3\ns_lshl_b32 s{T1}, s{sWAVE}, 1\ns_add_u32 s{T0}, s{T0}, s{T1}")
        k(f"s_lshl_b32 s{T0}, s{T0}, 5\ns_lshr_b32 s{T1}, s{sC}, 3\ns_add_u32 s{T0}, s{T0}, s{T1}\ns_mul_i32 s{T0}, s{T0}, 1280")
        k("v_lshrrev_b32 v3, 5, v1")
        k("v_and_b32 v4, 31, v1")
        k("v_mul_u32_u24 v5, 40960, v3\nv_lshl_add_u32 v5, v4, 3, v5")
        k(f"s_mov_b32 s{sX+2}, 2621440\ns_mov_b32 s{sX+3}, 0x20000")
        k(f"s_getpc_b64 s[{sTAB}:{sTAB+1}]\nL_pc:\ns_add_u32 s{sTAB}, s{sTAB}, tab_data-L_pc\ns_addc_u32 s{sTAB+1}, s{sTAB+1}, 0")
        k(f"s_mov_b32 s{sTAB+2}, {TAB_BYTES}\ns_mov_b32 s{sTAB+3}, 0x20000")
        k("v_lshlrev_b32 v6, 4, v1")
        k(f"s_mul_i32 s{T1}, s{sWAVE}, 3072")
        k("s_waitcnt lgkmcnt(0)")
        self.t_x = [k.vmem(f"buffer_load_dwordx2 v[{10+2*i}:{11+2*i}], v5, s[{sX}:{sX+3}], s{T0} offen offset:{256*i}") for i in range(5)]
        k(f"s_load_dword s{sTAG}, s[{sWS}:{sWS+1}], {WS_GEN}")
        k(f"s_sub_u32 s{T4}, s{sTAB}, tab_data-{KN}\ns_subb_u32 s{T4+1}, s{sTAB+1}, 0")
        k(f"s_mov_b32 s{T4+2}, tab_end-{KN}\ns_mov_b32 s{T4+3}, 0x20000")
        k(f"s_lshl_b32 s{T2}, s{sIDX}, 2\ns_add_u32 s{T2}, s{T2}, s{sWAVE}\ns_lshl_b32 s{T2}, s{T2}, 7\nv_lshlrev_b32 v7, 14, v1")
        with k.atomic():
            k("s_mov_b64 exec, 0x7f")
            k.vmem(f"buffer_load_dword v5, v7, s[{T4}:{T4+3}], s{T2} offen")
            k("s_mov_b64 exec, -1")
        k(f"s_add_u32 m0, s{T1}, {L_CT}")
        for i in range(3):
            self.t_c = k.vmem(f"buffer_load_dwordx4 v6, s[{sTAB}:{sTAB+3}], s{T1} offen offset:{i*1024} lds")
        k(f"s_lshl_b32 s{T1}, s{sWAVE}, 12\ns_add_u32 s{T1}, s{T1}, {TAB_LC}")
        for i in range(4):
            self.t_lc = k.vmem(f"buffer_load_dwordx4 {V(208+4*i,4)}, v6, s[{sTAB}:{sTAB+3}], s{T1} offen offset:{i*1024}")
        k(f"s_mov_b32 s{sWS+2}, {WS_SIZE}\ns_mov_b32 s{sWS+3}, 0x20000")
        for s_, n in ((sWR, 2048 * 642), (sWI, 2048 * 642), (sW1, 640 * 3456), (sW2, 1728 * 1280), (sOUT, 2621440)):
            k(f"s_mov_b32 s{s_+2}, {n}\ns_mov_b32 s{s_+3}, 0x20000")

    def role_loads(self):
        k = self.k
        Lw3, Lj = k.lab("L_w3"), k.lab("L_rj")
        with k.atomic():
            k(f"s_cmp_eq_u32 s{sWAVE}, 3\ns_cbranch_scc1 {Lw3}")
            k(f"s_and_b32 s{T1}, s{sC}, 1\ns_lshl_b32 s{T1}, s{T1}, 5\ns_lshr_b32 s{T2}, s{sC}, 3\ns_add_u32 s{T1}, s{T1}, s{T2}")
            k(f"s_bfe_u32 s{T2}, s{sC}, 0x10002\ns_lshl_b32 s{T2}, s{T2}, 10\ns_add_u32 s{T1}, s{T1}, s{T2}")
            k(f"s_bfe_u32 s{T2}, s{sC}, 0x10001\ns_lshl_b32 s{T2}, s{T2}, 8\ns_add_u32 s{T1}, s{T1}, s{T2}")
            k(f"s_mul_i32 s{sWROW}, s{T1}, 642")
            for i in range(1, 8):
                k(f"s_add_u32 s{sWROW+i}, s{sWROW}, {(8*(i>>2)+(i&3))*64*642}")
            k("v_min_u32 v7, 160, v0\nv_lshlrev_b32 v7, 2, v7\nv_min_u32 v7, 638, v7")
            for i in range(8):
                k.vmem(f"buffer_load_dword v{224+2*i}, v7, s[{sWR}:{sWR+3}], s{sWROW+i} offen", opt=(i >= 5))
                k.vmem(f"buffer_load_dword v{225+2*i}, v7, s[{sWI}:{sWI+3}], s{sWROW+i} offen", opt=(i >= 5))
            k(f"s_branch {Lj}")
            k(f"{Lw3}:")
            k(f"s_mul_i32 s{T3}, s{sC}, 10240")
            for n in range(10):
                if n % 4 == 0:
                    k(f"s_add_u32 s{T2}, s{T3}, {n*1024}\ns_mov_b32 m0, {L_RP + n*1024}")
                k.vmem(f"buffer_load_dwordx4 v6, s[{sW2}:{sW2+3}], s{T2} offen offset:{(n%4)*1024} lds", opt=True)
            k(f"{Lj}:")
        self.t_role = k.last_vm()

    def geometry(self):
        k = self.k
        o = self.opt
        k(f"s_lshr_b32 s{T1}, s{sXCD}, 1\ns_lshl_b32 s{sRB}, s{T1}, 2\ns_lshr_b32 s{T2}, s{sIDX}, 3\ns_add_u32 s{sRB}, s{sRB}, s{T2}")
        k(f"s_lshl_b32 s{sRB2}, s{T1}, 3\ns_lshr_b32 s{T3}, s{sIDX}, 2\ns_add_u32 s{sRB2}, s{sRB2}, s{T3}")
        k(f"s_and_b32 s{T3}, s{sXCD}, 1\ns_lshl_b32 s{sJ}, s{T3}, 2\ns_and_b32 s{T4}, s{sIDX}, 3\ns_add_u32 s{sJ}, s{sJ}, s{T4}")
        k(f"s_and_b32 s{T4}, s{sIDX}, 7")
        k(f"s_mul_i32 s{T5}, s{T4}, 3\ns_add_u32 s{T5}, s{T5}, 3\ns_mul_i32 s{T6}, s{T3}, 27\ns_add_u32 s{T5}, s{T5}, s{T6}")
        k(f"s_cmp_eq_u32 s{T5}, 39\ns_cselect_b32 s{T5}, 27, s{T5}")
        k(f"s_lshl_b32 s{T6}, s{T4}, 2\ns_mul_i32 s{T7}, s{T3}, 30\ns_add_u32 s{T6}, s{T6}, s{T7}")
        k(f"s_cmp_lt_u32 s{T4}, 3\ns_cselect_b32 s{sU0}, s{T6}, s{T5}\ns_cselect_b32 s{sWIDE}, 1, 0")
        k(f"s_mul_i32 s{T5}, s{sXCD}, 20\ns_mul_i32 s{T6}, s{T2}, 5\ns_add_u32 s{T5}, s{T5}, s{T6}\ns_add_u32 s{T5}, s{T5}, s{T4}\ns_sub_u32 s{sJOB}, s{T5}, 3")
        k(f"s_cmp_eq_u32 s{sC}, 0\ns_cselect_b32 s{sJOB}, 160, s{sJOB}")
        k(f"s_mul_i32 s{sW2B}, s{sJ}, 276480\ns_mul_i32 s{T5}, s{sWAVE}, 5120\ns_add_u32 s{sW2B}, s{sW2B}, s{T5}\ns_add_u32 s{sW2B}, s{sW2B}, {WS_W2}")
        k(f"s_cmp_ge_u32 s{sWAVE}, 2\ns_cselect_b32 s{sNS}, 13, 14")
        k(f"s_and_b32 s{T5}, s{sIDX}, 3\ns_mul_i32 s{sR2}, s{T5}, {o.get('ROT2', 3)}")
        if o["ROT"]:
            k(f"s_lshl_b32 s{T5}, s{T3}, 3\ns_add_u32 s{T5}, s{T5}, s{T4}\ns_mul_i32 s{T6}, s{sRB}, 3\ns_add_u32 s{T5}, s{T5}, s{T6}")
            k(f"s_mul_i32 s{T6}, s{T5}, 6554\ns_lshr_b32 s{T6}, s{T6}, 16\ns_mul_i32 s{T6}, s{T6}, 10\ns_sub_u32 s{sROT}, s{T5}, s{T6}")
        else:
            k(f"s_mov_b32 s{sROT}, 0")
        k(f"s_lshl_b32 s{T5}, s{sRB}, 1\ns_lshr_b32 s{T6}, s{sWAVE}, 1\ns_add_u32 s{T5}, s{T5}, s{T6}\ns_and_b32 s{T6}, s{sWAVE}, 1\ns_lshl_b32 s{T6}, s{T6}, 10")
        k(f"s_add_u32 s{T5}, s{T5}, s{T6}\ns_mul_i32 s{T5}, s{T5}, 1280")
        k("v_lshrrev_b32 v7, 3, v1\nv_mul_u32_u24 v8, 40960, v7\nv_lshrrev_b32 v9, 4, v1\nv_and_b32 v2, 7, v1\nv_xor_b32 v9, v9, v2")
        k(f"v_lshl_add_u32 v152, v9, 4, v8\nv_add_u32 v152, s{T5}, v152\nv_xor_b32 v153, 64, v152")
        k(f"v_add_u32 v153, 327680, v153\nv_add_u32 v154, 655360, v152\nv_add_u32 v155, 655360, v153")
        k(f"s_lshr_b32 s{T5}, s{sU0}, 1\ns_lshl_b32 s{T5}, s{T5}, 7\ns_mul_i32 s{T6}, s{sWAVE}, {16*3456}\ns_add_u32 s{T5}, s{T5}, s{T6}")
        k("v_mul_u32_u24 v8, 3456, v7\nv_bfe_u32 v9, v1, 4, 1\nv_lshlrev_b32 v9, 2, v9\nv_xor_b32 v9, v9, v2")
        k(f"v_lshl_add_u32 v156, v9, 4, v8\nv_add_u32 v156, s{T5}, v156\nv_add_u32 v157, {8*3456}, v156")
        k(f"s_lshl_b32 s{F3}, s{sWAVE}, 12\ns_lshl_b32 s{F4}, s{sWAVE}, 11")
        self.t_chunk = {}

    def dma_chunk(self, c):
        k = self.k
        slot = (c % 5) * SLOT
        k.begin()
        for n in range(8):
            with k.atomic():
                if n == 0:
                    k(f"s_add_u32 s{F0}, s{sROT}, {c}\ns_cmp_ge_u32 s{F0}, 10\ns_cselect_b32 s{F1_}, 10, 0\ns_sub_u32 s{F0}, s{F0}, s{F1_}")
                    k(f"s_lshl_b32 s{F1_}, s{F0}, 7\ns_mul_i32 s{F2}, s{F0}, {64*3456}")
                m = n >> 1
                if n & 1 == 0:
                    k(f"s_add_u32 m0, s{F3}, {slot + m*1024}")
                    self.t_chunk[c] = k.vmem(f"buffer_load_dwordx4 v{152+m}, s[{sX}:{sX+3}], s{F1_} offen lds")
                else:
                    L, rg = m & 1, m >> 1
                    k(f"s_add_u32 m0, s{F4}, {slot + 16384 + L*(8192-128) + rg*1024}")
                    self.t_chunk[c] = k.vmem(f"buffer_load_dwordx4 v{156+rg}, s[{sW1}:{sW1+3}], s{F2} offen offset:{128*L} lds")
        return k.end()

    def setup_a(self):
        k = self.k
        k("v_lshrrev_b32 v7, 1, v4\nv_cvt_f32_u32 v7, v7")
        k(f"v_mul_f32 v7, {fl(1/640)}, v7")
        k("v_lshlrev_b32 v8, 3, v3\nv_cvt_f32_u32 v8, v8\nv_mul_f32 v8, v8, v7")
        for i in range(16):
            g, r = i >> 2, i & 3
            d = 16 * (g >> 1) + 4 * (g & 1) + r
            k(f"v_fmamk_f32 v9, v7, {fl(float(d))}, v8")
            k(f"v_cos_f32 v{84+i}, v9")
            k(f"v_sin_f32 v{100+i}, v9")
        k(f"v_add_u32 v121, {L_CT}, v6")

    def setup_b(self):
        k = self.k
        k.begin()
        k(f"s_lshl_b32 s{T0}, s{sWAVE}, 12")
        k("v_bfe_u32 v7, v1, 1, 3\nv_xor_b32 v7, v7, v3\nv_lshlrev_b32 v7, 4, v7\nv_lshl_add_u32 v7, v4, 7, v7")
        k(f"v_add_u32 v128, s{T0}, v7")
        for t in range(1, 4):
            k(f"v_xor_b32 v{128+t}, {32*t}, v128")
        k("v_bfe_u32 v7, v1, 2, 2\nv_lshl_add_u32 v7, v3, 3, v7\nv_lshlrev_b32 v7, 7, v7")
        k("v_bfe_u32 v8, v1, 3, 1\nv_lshl_or_b32 v7, v8, 6, v7\nv_bfe_u32 v8, v1, 4, 1\nv_lshl_or_b32 v7, v8, 5, v7")
        k("v_and_b32 v8, 1, v1\nv_lshl_or_b32 v7, v8, 4, v7\nv_bfe_u32 v8, v1, 1, 1\nv_lshl_or_b32 v7, v8, 3, v7")
        k(f"s_add_u32 s{T1}, s{sWIDE}, 3\ns_and_b32 s{T2}, s{sU0}, 1")
        for bi in range(4):
            k(f"s_add_u32 s{T3}, s{sWAVE}, {bi}\ns_cmp_ge_u32 s{T3}, s{T1}\ns_cselect_b32 s{T4}, s{T1}, 0\ns_sub_u32 s{T3}, s{T3}, s{T4}")
            k(f"s_cmp_ge_u32 s{T3}, s{T1}\ns_cselect_b32 s{T4}, s{T1}, 0\ns_sub_u32 s{T3}, s{T3}, s{T4}")
            k(f"s_mov_b32 s{sBID+bi}, s{T3}\ns_add_u32 s{T3}, s{T3}, s{T2}\ns_and_b32 s{T4}, s{T3}, 1\ns_lshl_b32 s{T4}, s{T4}, 6\ns_lshr_b32 s{T3}, s{T3}, 1\ns_lshl_b32 s{T3}, s{T3}, 13")
            k(f"s_add_u32 s{T3}, s{T3}, 16384\nv_xor_b32 v8, s{T4}, v7\nv_add_u32 v{132+bi}, s{T3}, v8")
        for i in range(8):
            k(f"v_add_u32 v{136+i}, 0x10000, v{128+i}\nv_add_u32 v{144+i}, 0x20000, v{128+i}")
        k("v_lshrrev_b32 v7, 4, v1\nv_xor_b32 v7, v7, v1\nv_and_b32 v7, 1, v7\nv_cmp_eq_u32 vcc, 0, v7\nv_mov_b32 v8, 0x3f803f80\ns_nop 0\nv_cndmask_b32 v124, 0, v8, vcc")
        k("v_mov_b32 v125, v124\nv_mov_b32 v126, v124\nv_mov_b32 v127, v124")
        return k.end()

    def reduce32(self, r, t):
        k = self.k
        for sh in (8, 4, 2, 1):
            k(f"v_add_f32_dpp v{r}, v{r}, v{r} row_ror:{sh} row_mask:0xf bank_mask:0xf")
        k(f"v_mov_b32 v{t}, v{r}")
        k(f"v_permlane16_swap_b32 v{t}, v{r}")
        k(f"v_add_f32 v{r}, v{r}, v{t}")

    def phase1(self):
        k = self.k
        k.drain_lg()
        k(f"s_mul_i32 s{sTAG}, s{sTAG}, 1664525\ns_add_u32 s{sTAG}, s{sTAG}, 1013904223")
        k.wait_vm(self.t_x[-1])
        self.stamp("x")
        k.begin()
        for i in range(10):
            k(f"v_lshlrev_b32 v{20+2*i}, 16, v{10+i}\nv_and_b32 v{21+2*i}, 0xffff0000, v{10+i}")
        k("v_pk_add_f32 v[8:9], v[20:21], v[22:23]\nv_pk_add_f32 v[10:11], v[24:25], v[26:27]")
        for i in range(4, 10, 2):
            k(f"v_pk_add_f32 v[8:9], v[8:9], v[{20+2*i}:{21+2*i}]\nv_pk_add_f32 v[10:11], v[10:11], v[{22+2*i}:{23+2*i}]")
        k("v_pk_add_f32 v[8:9], v[8:9], v[10:11]\nv_add_f32 v8, v8, v9")
        self.reduce32(8, 9)
        k(f"v_mul_f32 v8, {fl(1/640)}, v8")
        for i in range(10):
            k(f"v_pk_add_f32 v[{20+2*i}:{21+2*i}], v[{20+2*i}:{21+2*i}], v[8:9] op_sel_hi:[1,0] neg_lo:[0,1] neg_hi:[0,1]")
        k("v_pk_mul_f32 v[10:11], v[20:21], v[20:21]\nv_pk_mul_f32 v[12:13], v[22:23], v[22:23]")
        for i in range(2, 10, 2):
            k(f"v_pk_fma_f32 v[10:11], v[{20+2*i}:{21+2*i}], v[{20+2*i}:{21+2*i}], v[10:11]")
            k(f"v_pk_fma_f32 v[12:13], v[{22+2*i}:{23+2*i}], v[{22+2*i}:{23+2*i}], v[12:13]")
        k("v_pk_add_f32 v[10:11], v[10:11], v[12:13]\nv_add_f32 v10, v10, v11")
        with k.atomic():
            k.wait_vm(self.t_lc)
            k("s_barrier")
        for i in range(12):
            tc = k.ds(f"ds_read_b128 {A(4*i,4)}, v121 offset:{1024*i}")
        self.reduce32(10, 11)
        k(f"v_mul_f32 v10, {fl(1/640)}, v10")
        k("v_cvt_pk_bf16_f32 v12, v8, v10")
        k("v_and_b32 v13, 0xffff0000, v12")
        k(f"v_add_f32 v13, {fl(1e-5)}, v13\nv_cvt_pk_bf16_f32 v13, v13, v13\nv_and_b32 v13, 0xffff0000, v13")
        k("v_sqrt_f32 v13, v13\nv_lshlrev_b32 v15, 16, v12\nv_cvt_pk_bf16_f32 v13, v13, v13\nv_and_b32 v13, 0xffff0000, v13")
        k("v_rcp_f32 v14, v13\nv_sub_f32 v15, v8, v15")
        k("v_mul_f32 v15, v15, v14")
        for i in range(10):
            k(f"v_pk_fma_f32 v[{20+2*i}:{21+2*i}], v[{20+2*i}:{21+2*i}], v[14:15], v[14:15] op_sel:[0,0,1] op_sel_hi:[1,0,1]")
            if i & 1:
                k(f"v_cvt_pk_bf16_f32 v{39+i}, v{18+2*i}, v{19+2*i}\nv_cvt_pk_bf16_f32 v{40+i}, v{20+2*i}, v{21+2*i}")
                tw = k.ds(f"ds_write_b64 v221, v[{39+i}:{40+i}] offset:{128*(i-1)}")
        k("v_and_b32 v12, 0xffff, v12\nv_or_b32 v12, v12, v13")
        k(f"v_mov_b32 v13, s{sTAG}")
        k(f"s_lshl_b32 s{T0}, s{sC}, 6\ns_lshl_b32 s{T1}, s{sWAVE}, 4\ns_add_u32 s{T0}, s{T0}, s{T1}\ns_add_u32 s{T0}, s{T0}, {WS_ST}")
        k("v_lshlrev_b32 v2, 3, v3")
        k.wait_lg(tw, est=40)
        toks = []
        for t in range(3):
            for jj in range(2):
                ar = 222 if t < 2 else 223
                toks.append(k.ds(f"ds_read_b64_tr_b16 v[{40+4*t+2*jj}:{41+4*t+2*jj}], v{ar} offset:{t*1024+jj*256}"))
        with k.atomic():
            k("s_mov_b32 exec_lo, 1\ns_mov_b32 exec_hi, 1")
            k.vmem(f"buffer_store_dwordx2 v[12:13], v2, s[{sWS}:{sWS+3}], s{T0} offen sc1")
            k("s_mov_b64 exec, -1")
        for t in range(3):
            k.wait_lg(toks[2 * t + 1], est=(60 if t == 0 else 0))
            for part in range(2):
                D = V(52 + 16 * part, 16)
                k(f"v_mfma_f32_32x32x16_bf16 {D}, {V(40+4*t,4)}, {A(12*part+4*t,4)}, {'0' if t == 0 else D}")
        self.cmul(52, 84, +1, 160, 8)
        Fr, Fi, NFi = 24, 32, 40
        first = True
        for t in range(2):
            for (dat, cre, cim) in ((160, Fr, Fi), (168, NFi, Fr)):
                k(f"v_mfma_f32_32x32x16_bf16 {V(176,16)}, {V(dat+4*t,4)}, {A(cre+4*t,4)}, {'0' if first else V(176,16)}")
                k(f"v_mfma_f32_32x32x16_bf16 {V(192,16)}, {V(dat+4*t,4)}, {A(cim+4*t,4)}, {'0' if first else V(192,16)}")
                first = False
        main = k.end()
        fill = []
        for c in range(self.pre_chunks, self.opt["P1DMA"]):
            fill += self.dma_chunk(c)
        k.weave(main, fill, start=self.opt["P1START"])
        Lj = k.lab("L_rjb")
        k.wait_vm(self.t_role)
        with k.atomic():
            k(f"s_cmp_eq_u32 s{sWAVE}, 3\ns_cbranch_scc1 {Lj}")
            k("v_cmp_gt_u32 vcc, 160, v0\nv_mov_b32 v2, 0x07060302\nv_mov_b32 v7, 0x05040100\nv_cndmask_b32 v7, v2, v7, vcc")
            k(f"v_min_u32 v8, 161, v0\nv_bfe_u32 v9, v8, 1, 3\nv_lshlrev_b32 v9, 4, v9\nv_lshl_add_u32 v8, v8, 7, v9\nv_add_u32 v8, {L_OUT}, v8")
            for q, lc in enumerate((2, 3, 6, 7)):
                for r in range(4):
                    i = 4 * (q & 1) + r
                    k(f"v_perm_b32 v{240+4*q+r}, v{225+2*i}, v{224+2*i}, v{7 if q < 2 else 2}")
                k(f"v_xor_b32 v9, {16*lc}, v8")
                k.ds(f"ds_write_b128 v9, {V(240+4*q,4)}", opt=True)
            k(f"{Lj}:")
        for p in range(6):
            r0 = 4 * (p >> 1) + 2 * (p & 1)
            k(f"v_cvt_pk_bf16_f32 v{8+(p&1)*2}, v{176+r0}, v{177+r0}\nv_cvt_pk_bf16_f32 v{9+(p&1)*2}, v{192+r0}, v{193+r0}")
            k(f"v_xor_b32 v{9+(p&1)*2}, v220, v{9+(p&1)*2}")
            k.ds(f"ds_write_b32 v{208+p}, v{8+(p&1)*2}")
            k.ds(f"ds_write_b32 v{214+p}, v{9+(p&1)*2}")
        k(f"v_lshlrev_b32 v2, 4, v0\nv_add_u32 v7, {L_OUT}, v2")
        k(f"s_mul_i32 s{T0}, s{sC}, {PFB}\ns_add_u32 s{T0}, s{T0}, {WS_PF}")
        k("v_lshrrev_b32 v8, 4, v1\nv_bfe_u32 v9, v1, 2, 2\nv_mul_u32_u24 v9, 1280, v9\nv_mul_u32_u24 v10, 80, v8")
        k(f"v_and_b32 v11, 1, v1\nv_lshl_add_u32 v10, v11, 3, v10\nv_add3_u32 v10, v10, v9, 0\nv_bfe_u32 v9, v1, 1, 1")
        k(f"s_mov_b32 s{T1}, 276480\nv_mul_lo_u32 v8, v8, s{T1}\nv_and_b32 v11, 15, v1\nv_lshl_add_u32 v8, v11, 4, v8")
        k(f"s_lshr_b32 s{T1}, s{sC}, 2\ns_mul_i32 s{T1}, s{T1}, 5120\ns_and_b32 s{T2}, s{sC}, 3\ns_lshl_b32 s{T2}, s{T2}, 8\ns_add_u32 s{T1}, s{T1}, s{T2}\ns_add_u32 s{T1}, s{T1}, {WS_W2}")
        k(f"s_cmp_ge_u32 s{sC}, 216\ns_cselect_b32 s{T1}, {WS_SIZE}, s{T1}")
        for i in range(3):
            k(f"s_add_u32 s{T2}, s{sWAVE}, {4*i}\ns_cmp_ge_u32 s{T2}, 5\ns_cselect_b32 s{T3}, 1, 0\ns_mul_i32 s{T4}, s{T3}, 5\ns_sub_u32 s{T4}, s{T2}, s{T4}")
            k(f"s_mul_i32 s{T6}, s{T3}, {4*276480}\ns_lshl_b32 s{T7}, s{T4}, 10\ns_add_u32 s{T6}, s{T6}, s{T7}\ns_add_u32 s{sHB+i}, s{T6}, s{T1}")
            if i == 2:
                k(f"s_cmp_ge_u32 s{T2}, 10\ns_cselect_b32 s{sHB+i}, {WS_SIZE}, s{sHB+i}")
            k(f"s_and_b32 s{T6}, s{T4}, 1\ns_lshl_b32 s{T6}, s{T6}, 5\ns_bfe_u32 s{T7}, s{T4}, 0x10001\ns_mul_i32 s{T7}, s{T7}, 640\ns_add_u32 s{T6}, s{T6}, s{T7}")
            k(f"s_cmp_eq_u32 s{T4}, 4\ns_cselect_b32 s{T6}, 64, s{T6}\ns_cselect_b32 s{T7}, 640, 16\ns_mul_i32 s{T3}, s{T3}, 320\ns_add_u32 s{T6}, s{T6}, s{T3}\ns_add_u32 s{T6}, s{T6}, {L_RP}")
            k(f"v_mad_u32_u24 v{12+i}, v9, s{T7}, v10\nv_add_u32 v{12+i}, s{T6}, v{12+i}")
        k.drain_lg()
        k("s_barrier")
        toks = [k.ds(f"ds_read_b128 {V(160+4*i,4)}, v7 offset:{4096*i}") for i in range(6)]
        tr = [k.ds(f"ds_read_b64_tr_b16 {V(184+4*i+2*jj,2)}, v{12+i} offset:{5120*jj}") for i in range(3) for jj in range(2)]
        for i in range(6):
            k.wait_lg(toks[i])
            with k.atomic():
                if i == 5:
                    L = k.lab("L_o6")
                    k(f"s_cmp_lg_u32 s{sWAVE}, 0\ns_cbranch_scc1 {L}\ns_mov_b64 exec, 0xff")
                k.vmem(f"buffer_store_dwordx4 {V(160+4*i,4)}, v2, s[{sWS}:{sWS+3}], s{T0} offen sc1", opt=(i == 5))
                if i == 5:
                    k(f"s_mov_b64 exec, -1\n{L}:")
                else:
                    k(f"s_add_u32 s{T0}, s{T0}, 4096")
        for i in range(3):
            k.wait_lg(tr[2 * i + 1])
            self.t_out = k.vmem(f"buffer_store_dwordx4 {V(184+4*i,4)}, v8, s[{sWS}:{sWS+3}], s{sHB+i} offen sc1")
        self.stamp("p1done")

    def cmul(self, src, c0, sgn, dst, t):
        k = self.k
        n1 = "" if sgn > 0 else " neg_lo:[1,0,0] neg_hi:[1,0,0]"
        n2 = " neg_lo:[1,0,0] neg_hi:[1,0,0]" if sgn > 0 else ""
        for p in range(8):
            re, im, c, s = V(src + 2 * p, 2), V(src + 16 + 2 * p, 2), V(c0 + 2 * p, 2), V(c0 + 16 + 2 * p, 2)
            q = t + 4 * (p & 1)
            k(f"v_pk_mul_f32 {V(q,2)}, {re}, {c}")
            k(f"v_pk_mul_f32 {V(q+2,2)}, {im}, {c}")
            k(f"v_pk_fma_f32 {V(q,2)}, {im}, {s}, {V(q,2)}{n1}")
            k(f"v_pk_fma_f32 {V(q+2,2)}, {re}, {s}, {V(q+2,2)}{n2}")
            k(f"v_cvt_pk_bf16_f32 v{dst+p}, v{q}, v{q+1}")
            k(f"v_cvt_pk_bf16_f32 v{dst+8+p}, v{q+2}, v{q+3}")

    TW1, TW2, F64, F32 = 160, 192, 184, 232

    def sfft_setup(self):
        k = self.k
        TW1, TW2 = self.TW1, self.TW2
        k.begin()
        k(f"v_lshrrev_b32 v2, 3, v1\nv_and_b32 v5, 3, v2\nv_lshrrev_b32 v7, 2, v2\nv_lshl_add_u32 v5, v7, 3, v5")
        k(f"s_mov_b32 s{T3}, {8*PFB}\nv_mul_lo_u32 v5, v5, s{T3}")
        k(f"s_bfe_u32 s{T3}, s{sJOB}, 0x30001\nv_lshrrev_b32 v7, 1, v2\nv_and_b32 v2, 7, v1\nv_xor_b32 v7, v7, v2\nv_xor_b32 v7, s{T3}, v7")
        k(f"s_lshl_b32 s{T3}, s{sJOB}, 7\ns_mul_i32 s{T4}, s{sWAVE}, {2*PFB}\ns_add_u32 s{T3}, s{T3}, s{T4}\ns_add_u32 s{T3}, s{T3}, {WS_PF}")
        k(f"v_add_u32 v5, s{T3}, v5\nv_lshl_add_u32 v224, v7, 4, v5\nv_xor_b32 v7, 4, v7\nv_lshl_add_u32 v225, v7, 4, v5")
        self.pi_v(2, 4, 5)
        k(f"s_and_b32 s{T0}, s{sWAVE}, 1\ns_lshl_b32 s{T0}, s{T0}, 5")
        k(f"v_add_u32 v5, s{T0}, v2\nv_cvt_f32_u32 v5, v5\nv_mul_f32 v5, {fl(1/2048)}, v5")
        k(f"v_cvt_f32_u32 v2, v2\nv_mul_f32 v2, {fl(1/2048)}, v2")
        k(f"v_lshlrev_b32 v7, 3, v3\nv_cvt_f32_u32 v232, v7\nv_mul_f32 v232, v232, v5")
        k(f"v_add_u32 v7, s{T0}, v7\nv_cvt_f32_u32 v233, v7\nv_mul_f32 v233, v233, v2")
        k(f"s_lshr_b32 s{T1}, s{sWAVE}, 1\ns_lshl_b32 s{T1}, s{T1}, 8\ns_or_b32 s{T1}, s{T1}, s{sJOB}\ns_cmp_eq_u32 s{T1}, 0\ns_cselect_b32 s{T2}, 0.5, 1.0\ns_cmp_eq_u32 s{T1}, 160\ns_cselect_b32 s{T2}, 0.5, s{T2}")
        for i in range(16):
            g, r = i >> 2, i & 3
            d = 16 * (g >> 1) + 4 * (g & 1) + r
            k(f"v_fmamk_f32 v7, v5, {fl(float(d))}, v232")
            k(f"v_fmamk_f32 v234, v2, {fl(float(d))}, v233")
            k(f"v_cos_f32 v{TW1+i}, v7")
            k(f"v_sin_f32 v{TW1+16+i}, v7")
            k(f"v_cos_f32 v{TW2+i}, v234")
            k(f"v_sin_f32 v{TW2+16+i}, v234")
        for i in range(32):
            k(f"v_mul_f32 v{TW2+i}, s{T2}, v{TW2+i}")
        k(f"s_lshr_b32 s{T3}, s{sWAVE}, 1\ns_lshl_b32 s{T3}, s{T3}, 2\ns_and_b32 s{T4}, s{sWAVE}, 1")
        k(f"v_bfe_u32 v2, v1, 1, 3\nv_xor_b32 v2, s{T3}, v2\nv_lshlrev_b32 v5, 7, v4\nv_add_u32 v5, {L_INB}, v5")
        k(f"v_lshl_add_u32 v7, v2, 4, v5\nv_lshl_add_u32 v7, v3, 12, v7")
        k(f"s_lshl_b32 s{T3}, s{T4}, 14\nv_add_u32 v226, s{T3}, v7\nv_xor_b32 v227, 16, v226")
        k(f"s_xor_b32 s{T3}, s{T3}, 16384\nv_add_u32 v228, s{T3}, v7\nv_xor_b32 v229, 16, v228")
        k(f"v_xor_b32 v2, 2, v2\nv_xor_b32 v2, v3, v2\nv_lshl_add_u32 v230, v2, 4, v5\ns_lshl_b32 s{T3}, s{T4}, 12\nv_add_u32 v230, s{T3}, v230")
        return k.end()

    def sfft_consts(self):
        k = self.k
        k.begin()
        for i in range(18):
            with k.atomic():
                if i == 0:
                    k(f"s_and_b32 s{F6}, s{sWAVE}, 1\ns_mul_i32 s{F6}, s{F6}, 12288\ns_add_u32 s{F6}, s{F6}, {TAB_F64}")
                elif i in (4, 8, 16):
                    k(f"s_add_u32 s{F6}, s{F6}, 4096")
                elif i == 12:
                    k(f"s_movk_i32 s{F6}, {TAB_F32}")
                self.t_sc = k.vmem(f"buffer_load_dwordx4 {A(self.F64+4*i,4)}, v6, s[{sTAB}:{sTAB+3}], s{F6} offen offset:{(i%4)*1024}")
        return k.end()

    def gen_g(self):
        k = self.k
        k.begin()
        D, P, R2, R26, B = 112, 116, 122, 128, 136
        k(f"s_mul_i32 s{T0}, s{sJ}, 40\nv_and_b32 v158, 15, v1\nv_add_u32 v159, s{T0}, v158\nv_cvt_f32_u32 v{D}, v159\nv_add_f32 v{D+1}, 0x41800000, v{D}")
        k(f"v_and_b32 v159, 7, v158\nv_lshrrev_b32 v158, 3, v158\nv_mul_u32_u24 v158, 320, v158\nv_add3_u32 v159, v159, v158, s{T0}\nv_add_u32 v159, 32, v159\nv_cvt_f32_u32 v{D+2}, v159")
        k(f"s_and_b32 s{T0}, s{sWAVE}, 1\ns_mul_i32 s{T0}, s{T0}, 160\ns_lshr_b32 s{T1}, s{sWAVE}, 1\ns_add_u32 s{T0}, s{T0}, s{T1}")
        k(f"v_lshrrev_b32 v158, 4, v1\nv_lshl_add_u32 v158, v158, 3, s{T0}\nv_cvt_f32_u32 v{D+3}, v158")
        k(f"s_mul_i32 s{T0}, s{sWAVE}, 15360\ns_add_u32 s{T0}, s{T0}, {L_G}\nv_add_u32 v134, s{T0}, v6")
        for blk in range(3):
            k(f"v_mul_f32 v158, 0.5, v{D+blk}\nv_fract_f32 v158, v158\nv_mul_f32 v{D+blk}, {fl(1/640)}, v{D+blk}")
            k(f"v_cos_f32 v158, v158\nv_mul_f32 v159, v{D+3}, v{D+blk}\nv_cvt_pk_bf16_f32 v{160+blk}, 1.0, v158")
            k(f"v_fract_f32 v159, v159\nv_add_f32 v158, v{D+blk}, v{D+blk}\nv_mul_f32 v135, {fl(26.0)}, v{D+blk}")
            k(f"v_cos_f32 v{P+2*blk}, v159")
            k(f"v_sin_f32 v{P+2*blk+1}, -v159")
            k(f"v_cos_f32 v{R2+2*blk}, v158")
            k(f"v_sin_f32 v{R2+2*blk+1}, -v158")
            k(f"v_cos_f32 v{R26+2*blk}, v135")
            k(f"v_sin_f32 v{R26+2*blk+1}, -v135")
        for ks in range(5):
            for jd in range(4):
                for blk in range(3):
                    b = (B if ks & 1 == 0 else 172) + 4 * blk
                    p = V(P + 2 * blk, 2)
                    k(f"v_cvt_pk_bf16_f32 v{b+jd}, v{P+2*blk}, v{P+2*blk+1}")
                    if not (ks == 4 and jd == 3):
                        r = V((R2 if jd < 3 else R26) + 2 * blk, 2)
                        t = V(164 + 2 * blk, 2)
                        k(f"v_pk_mul_f32 {t}, {p}, {r} op_sel_hi:[1,0]")
                        k(f"v_pk_fma_f32 {p}, {p}, {r}, {t} op_sel:[1,1,0] op_sel_hi:[0,1,1] neg_lo:[1,0,0]")
                    if jd == 3:
                        if ks == 0:
                            k(f"v_cmp_eq_f32 vcc, 0, v{D+3}\ns_nop 1\nv_cndmask_b32 v{b}, v{b}, v{160+blk}, vcc")
                        k.ds(f"ds_write_b128 v134, {V(b,4)} offset:{1024*(3*ks+blk)}")
        return k.end()

    def w2reg(self, i, b):
        q = 5 * i + b
        return A(4 * q, 4) if q < 64 else V(232 + 4 * (q - 64), 4)

    def w2_loads(self, steps):
        k = self.k
        k.begin()
        for i in steps:
            for b in range(5):
                with k.atomic():
                    if b == 0:
                        k(f"s_add_u32 s{F5}, s{sR2}, {i}\ns_cmp_ge_u32 s{F5}, 14\ns_cselect_b32 s{F2}, 14, 0\ns_sub_u32 s{F5}, s{F5}, s{F2}")
                        k(f"s_cmp_ge_u32 s{F5}, s{sNS}\ns_mul_i32 s{F5}, s{F5}, {4*5120}\ns_cselect_b32 s{F5}, {WS_SIZE}, s{F5}\ns_add_u32 s{F5}, s{F5}, s{sW2B}")
                    if b == 4:
                        k(f"s_add_u32 s{F5}, s{F5}, 4096")
                    k.vmem(f"buffer_load_dwordx4 {self.w2reg(i,b)}, v6, s[{sWS}:{sWS+3}], s{F5} offen offset:{(b&3)*1024} sc1")
        return k.end()

    def gemm1(self, nb, job):
        k = self.k
        o = self.opt
        F1R = [(8, 12), (9, 13), (10, 14), (11, 15)]

        def cap(f):
            k.begin()
            f()
            return k.end()
        tok = {}

        def reads(c, t, bs):
            slot = c % 5
            st, off0 = slot // 2, (slot % 2) * SLOT
            out = []
            for bi in range(nb):
                k.begin()
                if bi == 0:
                    k.ds(f"ds_read_b128 {V(112+4*bs,4)}, v{128+8*st+t} offset:{off0}")
                for jj in range(2):
                    tok[c, t, bi] = k.ds(f"ds_read_b64_tr_b16 {V(80+16*bs+4*bi+2*jj,2)}, v{132+8*st+bi} offset:{off0 + t*2048 + jj*512}")
                out.append(k.end())
            return out

        vq = []
        for c in range(o["P1DMA"], 10):
            vq += [(max(0, c - 3) if c >= 5 else 0, u) for u in self.dma_chunk(c)]

        def f1i():
            with k.atomic():
                k(f"v_mul_u32_u24 v8, {FS}, v1\nv_add_u32 v8, {WS_F1}, v8")
                for i in range(1, 4):
                    k(f"v_add_u32 v{8+i}, {64*FS*i}, v8")
                self.t_f1 = self.poll_issue(F1R)

        def fs():
            with k.atomic():
                k(f"s_lshl_b32 s{F0}, s{sRB}, 7\ns_lshl_b32 s{F5}, s{sWAVE}, 5\ns_add_u32 s{F0}, s{F0}, s{F5}\ns_lshl_b32 s{F0}, s{F0}, 3")
                k(f"s_add_u32 s{F0}, s{F0}, {WS_ST}\nv_lshlrev_b32 v231, 3, v4\nv_add_u32 v231, s{F0}, v231")
                self.t_st = k.vmem(f"buffer_load_dwordx2 v[158:159], v231, s[{sWS}:{sWS+3}], 0 offen sc1")
        pos = len(vq) - 8 * o.get("F1BACK", 1)
        vq[pos:pos] = [(vq[pos][0], u) for u in cap(f1i) + cap(fs)]
        late = []
        if job:
            late += cap(self.inbox_dma)
            vq += [(0, u) for u in self.sfft_consts()]
        npre = o.get("W2PREJ", 2) if job else o.get("W2PRE", 5)
        late += self.w2_loads(range(npre))

        def epi_addr():
            k(f"s_lshl_b32 s{T0}, s{sWAVE}, 7\ns_add_u32 s{T0}, s{T0}, {L_CS}")
            k(f"v_lshrrev_b32 v2, 4, v1\nv_lshlrev_b32 v2, 4, v2\nv_and_b32 v5, 1, v1\nv_lshl_or_b32 v2, v5, 6, v2\nv_add_u32 v2, s{T0}, v2")
            k(f"s_lshl_b32 s{T0}, s{sRB}, 3\ns_lshl_b32 s{T1}, s{sWAVE}, 1\ns_add_u32 s{T0}, s{T0}, s{T1}\ns_mul_i32 s{T0}, s{T0}, 55296")
            k(f"s_lshl_b32 s{T1}, s{sU0}, 10\ns_add_u32 s{T0}, s{T0}, s{T1}\ns_add_u32 s{T0}, s{T0}, {WS_H}")
            k("v_bfe_u32 v7, v1, 4, 1\nv_mul_u32_u24 v7, 55296, v7\nv_and_b32 v5, 15, v1\nv_lshl_add_u32 v7, v5, 4, v7\nv_lshl_add_u32 v7, v3, 8, v7")
            k(f"v_lshlrev_b32 v5, 4, v3\nv_add_u32 v5, {L_CS}, v5")
            for bi in range(nb):
                k(f"s_lshl_b32 s{T2}, s{sBID+bi}, 10\ns_add_u32 s{sHB+bi}, s{T2}, s{T0}\ns_lshl_b32 s{sBID+bi}, s{sBID+bi}, 7")
        chore = (self.sfft_setup() if job else []) + cap(epi_addr)
        nchore = len(chore)

        k.wait_vm(self.t_chunk[0])
        k("s_barrier")
        for g in reads(0, 0, 0):
            k.put(g)
        step = 0
        done_f1 = False
        for c in range(10):
            for t in range(4):
                bs = step & 1
                rd = [[] for _ in range(nb)]
                extra = []
                it = c
                if t < 3:
                    rd = reads(c, t + 1, bs ^ 1)
                elif c < 9:
                    it = c + 1
                    k.wait_vm(self.t_chunk[c + 1])
                    if c + 1 == o["FLAG_AT"]:
                        k.wait_vm(self.t_out)
                    k("s_barrier")
                    self.stamp(f"B{c+1}") if c + 1 in (1, 7) else None
                    rd = reads(c + 1, 0, bs ^ 1)
                    if c + 1 == o["FLAG_AT"]:
                        extra += cap(lambda: self.flag_store(f"s_mul_i32 s{F0}, s{sC}, {FS}\ns_add_u32 s{F0}, s{F0}, {WS_F1}", F0, 8))
                    if c + 1 == o.get("F1CHK", 7):
                        extra += cap(lambda: self.poll_check(F1R, self.t_f1))
                        done_f1 = True
                nv = o["NV0"] if c < 2 else o["NV"] if not done_f1 else o.get("NVL", 2)
                vm = []
                if done_f1 and not extra and job:
                    while len(vm) < nv and len(late) > 5 * npre:
                        vm.append(late.pop(0))
                while len(vm) < nv and vq and vq[0][0] <= it:
                    vm.append(vq.pop(0)[1])
                if done_f1 and not extra:
                    while len(vm) < nv and late:
                        vm.append(late.pop(0))
                want = nchore * (step + 1) // 39
                ch = []
                while chore and nchore - len(chore) < want:
                    ch.append(chore.pop(0))
                gaps = [list(x) for x in rd]
                gaps[0].append([("i", f"v_mfma_f32_16x16x32_bf16 v[120:123], {V(80+16*bs,4)}, v[124:127], {'0' if step == 0 else 'v[120:123]'}")])
                used = set()
                for i, u in enumerate(vm):
                    gi = nb - 1 - (len(vm) - 1 - i) * nb // max(len(vm), 2) if len(vm) <= nb else i * nb // len(vm)
                    if gi not in used and len(u) > 1 and u[-1][0] == "vm" and all(x[0] == "i" and x[1].startswith("s_") for x in u[:-1]):
                        gaps[gi] = [u[:-1]] + gaps[gi] + [u[-1:]]
                    else:
                        gaps[gi].append(u)
                    used.add(gi)
                gaps[nb - 1] = extra + gaps[nb - 1]
                last = 0
                for u in ch:
                    gi = min(range(last, nb), key=lambda g: sum(k.ucost(x) for x in gaps[g]) - (24 if g == 0 else 0))
                    last = gi
                    gaps[gi].append(u)
                for bi in range(nb):
                    D = V(16 + 16 * bi, 16)
                    k.wait_lg(tok[c, t, bi])
                    k(f"v_mfma_f32_32x32x16_bf16 {D}, {V(80+16*bs+4*bi,4)}, {V(112+4*bs,4)}, {'0' if step == 0 else D}")
                    k.put(gaps[bi])
                step += 1
        assert not chore and done_f1
        rest = [u for _, u in vq] + late
        self.stamp("g1mm")
        with k.atomic():
            k("s_mov_b32 exec_lo, 0x00030003\ns_mov_b32 exec_hi, 0x00030003")
            k.ds("ds_write_b128 v2, v[120:123]")
            k("s_mov_b64 exec, -1")
        for bi in range(nb):
            k(f"v_add_u32 v{9+bi}, s{sBID+bi}, v5")
        L, Ld = k.lab("L_st"), k.lab("L_std")
        with k.atomic():
            k.wait_vm(self.t_st)
            k(f"s_mov_b32 s{sPOLL}, 0")
            k(f"{L}:")
            k(f"v_cmp_ne_u32 vcc, s{sTAG}, v159")
            k(f"s_add_u32 s{sPOLL}, s{sPOLL}, 1")
            k(f"s_cmp_eq_u64 vcc, 0\ns_cbranch_scc1 {Ld}")
            k(f"buffer_load_dwordx2 v[158:159], v231, s[{sWS}:{sWS+3}], 0 offen sc1")
            k("s_waitcnt vmcnt(0)")
            k(f"s_cmp_lt_u32 s{sPOLL}, {SPIN_MAX}\ns_cbranch_scc1 {L}")
            k(f"{Ld}:")
        k("v_lshlrev_b32 v158, 16, v158")
        k.drain_lg()
        k("s_barrier")
        toks = {}

        def csr(bi):
            toks[bi] = [k.ds(f"ds_read_b128 {V(112+16*(bi&1)+4*g,4)}, v{9+bi} offset:{32*g}") for g in range(4)]
        csr(0)
        csr(1)
        for bi in range(nb):
            cb = 112 + 16 * (bi & 1)
            pk = 80 + 8 * bi
            for gg in range(2):
                k.wait_lg(toks[bi][2 * gg + 1])
                for r in range(0, 8, 2):
                    i = 8 * gg + r
                    k(f"v_pk_fma_f32 {V(16+16*bi+i,2)}, v[158:159], {V(cb+i,2)}, {V(16+16*bi+i,2)} op_sel_hi:[0,1,1] neg_lo:[1,0,0] neg_hi:[1,0,0]")
                for r in range(0, 8, 2):
                    i = 8 * gg + r
                    k(f"v_cvt_pk_bf16_f32 v{pk+i//2}, v{16+16*bi+i}, v{17+16*bi+i}")
                for r in range(0, 8, 2):
                    i = 8 * gg + r
                    k(f"v_pk_max_i16 v{pk+i//2}, v{pk+i//2}, 0")
                self.t_h = k.vmem(f"buffer_store_dwordx4 {V(pk+4*gg,4)}, v7, s[{sWS}:{sWS+3}], s{sHB+bi} offen offset:{512*gg} sc1")
            if bi + 2 < nb:
                csr(bi + 2)
        self.stamp("g1done")
        return npre, rest

    def fh_store(self):
        pre = f"s_lshl_b32 s{T0}, s{sRB}, 4\ns_and_b32 s{T1}, s{sXCD}, 1\ns_lshl_b32 s{T1}, s{T1}, 3\ns_add_u32 s{T0}, s{T0}, s{T1}\ns_and_b32 s{T1}, s{sIDX}, 7\ns_add_u32 s{T0}, s{T0}, s{T1}\n"
        pre += f"s_mul_i32 s{T0}, s{T0}, {FS}\ns_add_u32 s{T0}, s{T0}, {WS_FH}"
        self.flag_store(pre, T0, 8)
        self.stamp("fh")

    def middle_nojob(self, npre, rest):
        k = self.k
        o = self.opt
        rest = rest + self.w2_loads(range(npre, 14))
        left = k.weave(self.gen_g(), rest, interval=o.get("W2I", 80), tail=False)
        n1 = o.get("WFH", 4)
        k.put(left[:n1])
        k.wait_vm(self.t_h)
        k.drain_lg()
        k("s_barrier")
        self.fh_store()
        k.put(left[n1:])

    def middle_job(self, npre, rest):
        k = self.k
        o = self.opt
        k.put(rest)
        pre = self.w2_loads(range(npre, 9))
        left = self.sfft_body(pre)
        post = left + self.w2_loads(range(9, 14))
        left = k.weave(self.gen_g(), post, interval=o.get("W2I", 80), tail=False)
        n1 = o.get("WFZ", 4)
        k.put(left[:n1])
        k.wait_vm(self.t_z)
        k.drain_lg()
        k("s_barrier")
        self.flag_store(f"s_mul_i32 s{T0}, s{sJOB}, {FS}\ns_add_u32 s{T0}, s{T0}, {WS_FZ}", T0, 8)
        self.stamp("fz")
        k.put(left[n1:])

    def inbox_dma(self):
        k = self.k
        for n in range(8):
            a = n & 3
            with k.atomic():
                if n == 0:
                    k(f"s_lshl_b32 s{F7}, s{sWAVE}, 13")
                k(f"s_add_u32 m0, s{F7}, {L_INB + n*1024}")
                k(f"s_mov_b32 s{F0}, {(8*(16*(a>>1)+4*(a&1)) + (n>>2))*PFB}")
                self.t_in = k.vmem(f"buffer_load_dwordx4 v{224+(a&1)}, s[{sWS}:{sWS+3}], s{F0} offen sc1 lds")

    def sfft_body(self, fill):
        k = self.k
        o = self.opt
        DAT, ACT, ACX, TM = 16, 48, 80, 112
        TW1, TW2, F64, F32 = self.TW1, self.TW2, self.F64, self.F32
        k.wait_vm(self.t_in)
        k.wait_vm(self.t_sc)
        k("s_barrier")
        self.stamp("inbox")
        k.begin()
        toks = []
        for tau in range(4):
            for part in range(2):
                toks.append(k.ds(f"ds_read_b128 {V(DAT+16*part+4*tau,4)}, v{226+2*(tau>>1)+part} offset:{(tau&1)*8192}"))
        Fr, Fi, NFi = F64, F64 + 16, F64 + 32
        R, Im = V(ACT, 16), V(ACT + 16, 16)
        for tau in range(4):
            k.wait_lg(toks[2 * tau], est=(60 if tau == 0 else 0))
            k(f"v_mfma_f32_32x32x16_bf16 {R}, {V(DAT+4*tau,4)}, {A(Fr+4*tau,4)}, {'0' if tau == 0 else R}")
            k(f"v_mfma_f32_32x32x16_bf16 {Im}, {V(DAT+4*tau,4)}, {A(Fi+4*tau,4)}, {'0' if tau == 0 else Im}")
            k.wait_lg(toks[2 * tau + 1])
            k(f"v_mfma_f32_32x32x16_bf16 {R}, {V(DAT+16+4*tau,4)}, {A(NFi+4*tau,4)}, {R}")
            k(f"v_mfma_f32_32x32x16_bf16 {Im}, {V(DAT+16+4*tau,4)}, {A(Fr+4*tau,4)}, {Im}")
        tw = [k.ds(f"ds_read_b128 {V(DAT+16+4*g,4)}, v230 offset:{g*8192}") for g in range(4)]
        k(f"s_lshl_b32 s{T3}, s{sWAVE}, 12\ns_add_u32 s{T3}, s{T3}, {L_EXC}\nv_add_u32 v120, s{T3}, v6\nv_xor_b32 v121, 4096, v120")
        self.cmul(ACT, TW1, +1, DAT, TM)
        fr, fi, nfi = F32, F32 + 8, F32 + 16
        XR, XI = V(ACX, 16), V(ACX + 16, 16)
        fst = True
        k.wait_lg(tw[-1])
        un = [f"v_lshlrev_b32 v{ACT+i}, 16, v{DAT+16+i}\nv_and_b32 v{ACT+16+i}, 0xffff0000, v{DAT+16+i}" for i in range(16)]
        for t in range(2):
            for (dat, cre, cim) in ((DAT, fr, fi), (DAT + 8, nfi, fr)):
                k(f"v_mfma_f32_32x32x16_bf16 {XR}, {A(cre+4*t,4)}, {V(dat+4*t,4)}, {'0' if fst else XR}")
                k(un.pop(0)), k(un.pop(0))
                k(f"v_mfma_f32_32x32x16_bf16 {XI}, {A(cim+4*t,4)}, {V(dat+4*t,4)}, {'0' if fst else XI}")
                k(un.pop(0)), k(un.pop(0))
                fst = False
        self.cmul(ACX, ACT, -1, DAT, TM)
        k.begin()
        self.pi_v(122, 4, 123)
        k(f"s_and_b32 s{T3}, s{sJOB}, 1\ns_bfe_u32 s{T4}, s{sJOB}, 0x10002\ns_lshl_b32 s{T4}, s{T4}, 1\ns_or_b32 s{T3}, s{T3}, s{T4}")
        k(f"s_and_b32 s{T4}, s{sWAVE}, 1\ns_lshl_b32 s{T4}, s{T4}, 1\ns_xor_b32 s{T3}, s{T3}, s{T4}\ns_lshl_b32 s{T3}, s{T3}, 5")
        k(f"s_lshr_b32 s{T4}, s{sWAVE}, 1\ns_mul_i32 s{T4}, s{T4}, {ZSTU}\ns_add_u32 s{T4}, s{T4}, {L_ZST}")
        k(f"v_mul_u32_u24 v122, 272, v122\nv_lshl_add_u32 v122, v3, 4, v122\nv_add_u32 v122, s{T4}, v122")
        k(f"s_xor_b32 s{T6}, s{T3}, 32\nv_add_u32 v123, s{T6}, v122\nv_add_u32 v122, s{T3}, v122")
        k(f"s_and_b32 s{T3}, s{sWAVE}, 1\ns_mul_i32 s{T6}, s{T3}, {16*272}\ns_add_u32 s{T4}, s{T4}, s{T6}")
        k(f"v_lshrrev_b32 v124, 4, v1\nv_mul_u32_u24 v124, 272, v124\nv_and_b32 v125, 15, v1\nv_lshl_add_u32 v124, v125, 4, v124\nv_add_u32 v124, s{T4}, v124")
        k(f"s_lshr_b32 s{T4}, s{sWAVE}, 1\ns_mul_i32 s{T4}, s{T4}, 160\ns_add_u32 s{T4}, s{T4}, s{sJOB}\ns_lshl_b32 s{T4}, s{T4}, 13")
        k(f"s_cmp_eq_u32 s{sJOB}, 160\ns_cselect_b32 s{T4}, 128, s{T4}\ns_lshl_b32 s{T3}, s{T3}, 12\ns_add_u32 s{T4}, s{T4}, s{T3}\ns_add_u32 s{T4}, s{T4}, {WS_Z}")
        k(f"s_mul_i32 s{T1}, s{sJOB}, 2\ns_lshr_b32 s{T2}, s{sWAVE}, 1\ns_add_u32 s{T1}, s{T1}, s{T2}")
        k(f"s_cmp_eq_u32 s{T1}, 0\ns_cselect_b32 s{sEX}, 0x00ff00ff, -1\ns_cmp_eq_u32 s{T1}, 320\ns_cselect_b32 s{sEX}, 0x00ff00ff, s{sEX}\ns_mov_b32 s{sEX+1}, s{sEX}")
        k(f"s_cmp_eq_u32 s{T1}, 321\ns_cselect_b32 s{T4}, {WS_SIZE}, s{T4}")
        ad = k.end()
        fst = True
        for t in range(2):
            for (dat, cre, cim) in ((DAT, fr, nfi), (DAT + 8, fi, fr)):
                k(f"v_mfma_f32_32x32x16_bf16 {R}, {V(dat+4*t,4)}, {A(cre+4*t,4)}, {'0' if fst else R}")
                k.put(ad[:2]); ad = ad[2:]
                k(f"v_mfma_f32_32x32x16_bf16 {Im}, {V(dat+4*t,4)}, {A(cim+4*t,4)}, {'0' if fst else Im}")
                k.put(ad[:1]); ad = ad[1:]
                fst = False
        k.put(ad)
        self.cmul(ACT, TW2, -1, DAT, TM)
        for q in range(4):
            k.ds(f"ds_write_b128 v120, {V(DAT+4*q,4)} offset:{1024*q}")
        n = 0
        for t in range(2):
            for (dat, cre, cim) in ((DAT, Fr, NFi), (DAT + 8, Fi, Fr)):
                k(f"v_mfma_f32_32x32x16_bf16 {XR}, {A(cre+4*t,4)}, {V(dat+4*t,4)}, {'0' if n == 0 else XR}")
                k(f"v_mfma_f32_32x32x16_bf16 {XI}, {A(cim+4*t,4)}, {V(dat+4*t,4)}, {'0' if n == 0 else XI}")
                if n == 1:
                    with k.atomic():
                        k.drain_lg()
                        k.wait_vm(self.t_h)
                        k("s_barrier")
                    for q in range(4):
                        k.ds(f"ds_read_b128 {V(DAT+16+4*q,4)}, v121 offset:{1024*q}")
                    if not o.get("FHE"):
                        self.fh_store()
                n += 1
        k.drain_lg()
        for t in range(2):
            for (dat, cre, cim) in ((DAT + 16, Fr, NFi), (DAT + 24, Fi, Fr)):
                k(f"v_mfma_f32_32x32x16_bf16 {XR}, {A(cre+8+4*t,4)}, {V(dat+4*t,4)}, {XR}")
                k(f"v_mfma_f32_32x32x16_bf16 {XI}, {A(cim+8+4*t,4)}, {V(dat+4*t,4)}, {XI}")
        main = k.end()
        left = k.weave(main, fill, start=o.get("SFS", 100), interval=o.get("SFI", 110), tail=False)
        for part in range(2):
            for gg in range(2):
                for j in range(4):
                    r = ACX + 16 * part + 8 * gg + 2 * j
                    k(f"v_cvt_pk_bf16_f32 v{DAT+8*part+4*gg+j}, v{r}, v{r+1}")
                k.ds(f"ds_write_b128 v{122+gg}, {V(DAT+8*part+4*gg,4)} offset:{128*part}")
        k.drain_lg()
        k("s_barrier")
        toks = [k.ds(f"ds_read_b128 {V(DAT+16+4*n,4)}, v124 offset:{4*272*n}") for n in range(4)]
        for n in range(4):
            k.wait_lg(toks[n])
            with k.atomic():
                k(f"s_mov_b64 exec, s[{sEX}:{sEX+1}]")
                self.t_z = k.vmem(f"buffer_store_dwordx4 {V(DAT+16+4*n,4)}, v6, s[{sWS}:{sWS+3}], s{T4} offen offset:{1024*n} sc1")
                k("s_mov_b64 exec, -1")
        self.stamp("zst")
        return left

    def tail(self):
        k = self.k
        o = self.opt
        ACC, HB, XR_, EO, ZB = 16, 96, 196, 160, 180
        HD = o['HD']
        NBUF = HD + 1
        k(f"s_lshr_b32 s{T0}, s{sRB2}, 1\ns_lshl_b32 s{T0}, s{T0}, 4\nv_and_b32 v7, 15, v1\nv_add_u32 v7, s{T0}, v7\nv_mul_u32_u24 v7, {FS}, v7\nv_add_u32 v7, {WS_FH}, v7")
        tfh = self.poll_issue([(7, 14)])
        k(f"s_lshl_b32 s{T0}, s{sWAVE}, 9\ns_add_u32 s{T0}, s{T0}, s{sRB2}\ns_mul_i32 s{T0}, s{T0}, 1280\ns_mul_i32 s{T1}, s{sJ}, 80\ns_add_u32 s{T0}, s{T0}, s{T1}")
        k(f"v_and_b32 v10, 15, v1\nv_mul_u32_u24 v11, 40960, v10\nv_add_u32 v11, s{T0}, v11\nv_lshrrev_b32 v12, 4, v1\nv_lshl_add_u32 v8, v12, 3, v11")
        k(f"v_and_b32 v13, 1, v12\nv_lshl_add_u32 v9, v13, 3, v11\nv_lshrrev_b32 v13, 1, v12\nv_mul_u32_u24 v13, 640, v13\nv_add3_u32 v9, v9, v13, 64")
        offs = (0, 32, 640, 672, 0)
        k(f"v_lshlrev_b32 v5, 3, v10")
        for nb in range(4):
            k(f"s_add_u32 s{T0}, s{sWAVE}, {nb}\ns_and_b32 s{T0}, s{T0}, 3\ns_lshl_b32 s{T5}, s{sRB2}, 2\ns_add_u32 s{T0}, s{T0}, s{T5}")
            k(f"s_mul_i32 s{T0}, s{T0}, 55296\ns_lshl_b32 s{T5}, s{sWAVE}, 10\ns_add_u32 s{T0}, s{T0}, s{T5}\ns_add_u32 s{T0}, s{T0}, {WS_H}")
            k(f"v_add_u32 v{10+nb}, s{T0}, v6")
        k(f"v_mul_u32_u24 v208, {FS}, v1\nv_add_u32 v208, {WS_FZ}, v208\nv_add_u32 v209, {64*FS}, v208\nv_add_u32 v210, 128, v1\nv_min_u32 v210, 160, v210\nv_mul_u32_u24 v210, {FS}, v210\nv_add_u32 v210, {WS_FZ}, v210")
        k(f"s_lshl_b32 s{T0}, s{sRB2}, 8\ns_lshl_b32 s{T1}, s{sWAVE}, 15\ns_add_u32 s{T0}, s{T0}, s{T1}\ns_add_u32 s{T0}, s{T0}, {WS_Z}")
        k(f"v_lshrrev_b32 v211, 4, v1\nv_lshlrev_b32 v211, 13, v211\nv_and_b32 v2, 15, v1\nv_lshl_add_u32 v211, v2, 4, v211\nv_add_u32 v211, s{T0}, v211")
        k(f"v_lshrrev_b32 v2, 4, v1\nv_bfe_u32 v212, v1, 2, 2\nv_lshlrev_b32 v213, 10, v2\nv_lshl_add_u32 v213, v212, 7, v213")
        k(f"v_lshrrev_b32 v212, 1, v212\nv_and_b32 v2, 1, v2\nv_lshl_or_b32 v212, v2, 1, v212\nv_xor_b32 v212, s{sWAVE}, v212\nv_lshl_add_u32 v213, v212, 5, v213")
        k(f"v_and_b32 v2, 3, v1\nv_lshl_add_u32 v213, v2, 3, v213\nv_add_u32 v212, {L_Z}, v213\nv_add_u32 v213, {L_Z + 40960}, v213")
        k(f"v_add_u32 v214, {L_G}, v6")
        k(f"s_lshl_b32 s{F3}, s{sWAVE}, 10")
        self.poll_check([(7, 14)], tfh)
        self.stamp("fhok")
        th = {}

        def cap(f):
            k.begin()
            f()
            return k.end()

        def hload(i):
            k.begin()
            for nb in range(4):
                with k.atomic():
                    if nb == 0:
                        k(f"s_add_u32 s{F0}, s{sR2}, {i}\ns_cmp_ge_u32 s{F0}, 14\ns_cselect_b32 s{F2}, 14, 0\ns_sub_u32 s{F0}, s{F0}, s{F2}")
                        k(f"s_cmp_ge_u32 s{F0}, s{sNS}\ns_cselect_b32 s{F0}, 0, s{F0}\ns_lshl_b32 s{F0}, s{F0}, 12")
                    th[i] = k.vmem(f"buffer_load_dwordx4 {V(HB+16*(i%NBUF)+4*nb,4)}, v{10+nb}, s[{sWS}:{sWS+3}], s{F0} offen sc1")
            return k.end()
        for i in range(HD):
            k.put(hload(i))
        FZR = [(208, 215), (209, 216), (210, 217)]
        tz = []

        def zd():
            for ks in range(20):
                with k.atomic():
                    k(f"s_add_u32 m0, s{F3}, {L_Z + ks*4096}\ns_mov_b32 s{F1_}, {ks*16*8192}")
                    tz.append(k.vmem(f"buffer_load_dwordx4 v211, s[{sWS}:{sWS+3}], s{F1_} offen sc1 lds"))
        zq = cap(zd)

        def xres():
            with k.atomic():
                k(f"s_lshl_b32 s{T0}, s{sRB2}, 6\ns_lshl_b32 s{T1}, s{sWAVE}, 4\ns_add_u32 s{T0}, s{T0}, s{T1}\ns_lshl_b32 s{T0}, s{T0}, 3\ns_add_u32 s{T0}, s{T0}, {WS_ST}")
                k.vmem(f"buffer_load_dword v206, v5, s[{sWS}:{sWS+3}], s{T0} offen sc1")
            for b in range(5):
                self.t_xr = k.vmem(f"buffer_load_dwordx2 {V(XR_+2*b,2)}, v{9 if b == 4 else 8}, s[{sX}:{sX+3}], 0 offen offset:{offs[b]}")
        xq = cap(xres)
        FZ = o["FZAT"]
        for i in range(14):
            fill = []
            if i + HD < 14:
                fill += hload(i + HD)
            if 1 <= i <= 6:
                fill.append(xq.pop(0))
            if i == FZ:
                fill += cap(lambda: setattr(self, "t_fz", self.poll_issue(FZR)))
            if i == FZ + 2:
                fill = cap(lambda: self.poll_check(FZR, self.t_fz)) + fill
            if i >= FZ + 2:
                nz = o.get('NZ', 5)
                fill += zq[:nz]
                zq = zq[nz:]
            rd = []
            if 1 <= i <= 12:
                rd = cap(lambda: [k.ds(f"ds_read_b128 {A(4*q,4)}, v214 offset:{1024*q}") for q in range(5 * (i - 1), 5 * i)])
            k.wait_vm(th[i])
            pos = {}
            for n_, u in enumerate(fill):
                pos.setdefault(1 + n_ * 19 // max(len(fill), 1), []).append(u)
            for n_, u in enumerate(rd):
                pos.setdefault(2 + 4 * n_, []).append(u)
            n = 0
            for nb in range(4):
                for b in range(5):
                    D = V(ACC + 20 * nb + 4 * b, 4)
                    k(f"v_mfma_f32_16x16x32_bf16 {D}, {self.w2reg(i,b)}, {V(HB+16*(i%NBUF)+4*nb,4)}, {'0' if i == 0 else D}")
                    n += 1
                    k.put(pos.pop(n, []))
            assert not pos
        self.stamp("g2")
        L = k.lab("L_gen")
        with k.atomic():
            k(f"s_cmp_lg_u32 s{sC}, 0\ns_cbranch_scc1 {L}")
            self.flag_store(f"s_mov_b32 s{T0}, {WS_GEN}", T0, 10)
            k(f"{L}:")
        for nb in range(1, 4):
            k(f"s_add_u32 s{T0}, s{sWAVE}, {nb}\ns_and_b32 s{T0}, s{T0}, 3\ns_mul_i32 s{T0}, s{T0}, 15360\ns_add_u32 s{T0}, s{T0}, {L_RED + (nb-1)*5120}")
            k(f"v_add_u32 v{10+nb}, s{T0}, v6")
        k(f"s_mul_i32 s{T0}, s{sWAVE}, 15360\ns_add_u32 s{T0}, s{T0}, {L_RED}\nv_add_u32 v10, s{T0}, v6")
        k.put(zq)

        def zread(ks):
            base, off = (212, ks * 4096) if ks < 10 else (213, (ks - 10) * 4096)
            return [k.ds(f"ds_read_b64_tr_b16 {V(ZB+4*(ks&3)+2*jj,2)}, v{base} offset:{off+512*jj}") for jj in range(2)][-1]

        def idft(k0, k1, valu, per):
            tk = {}
            for ks in range(k0, k0 + 3):
                tk[ks] = zread(ks)
            for ks in range(k0, k1):
                k.wait_lg(tk[ks])
                P = ks // 10
                for blk in range(3):
                    d = EO + (16 if blk == 2 else 8 * P + 4 * blk)
                    first = (ks % 10 == 0) if blk < 2 else ks == 0
                    k(f"v_mfma_f32_16x16x32_bf16 {V(d,4)}, {A(4*(3*ks+blk),4)}, {V(ZB+4*(ks&3),4)}, {'0' if first else V(d,4)}")
                    if blk == 0 and ks + 3 < k1:
                        tk[ks + 3] = zread(ks + 3)
                    else:
                        k.put(valu[:per])
                        del valu[:per]
            k.put(valu)
        k.wait_vm(tz[9])
        k.drain_lg()
        k("s_barrier")
        k.begin()
        for nb in range(1, 4):
            for b in range(5):
                k.ds(f"ds_write_b128 v{10+nb}, {V(ACC+20*nb+4*b,4)} offset:{1024*b}")
        idft(0, 10, k.end(), 1)
        k("v_and_b32 v14, 0xffff0000, v206\nv_rcp_f32 v14, v14")
        for i in range(10):
            k(f"v_lshlrev_b32 v{ACC+20+2*i}, 16, v{XR_+i}\nv_and_b32 v{ACC+21+2*i}, 0xffff0000, v{XR_+i}")
        k(f"v_mul_f32 v15, {fl(-math.log2(math.e))}, v14\nv_mul_f32 v14, {fl(2.0/(640*2048))}, v14")
        k.wait_vm(tz[19])
        k.drain_lg()
        k("s_barrier")
        self.stamp("red")
        toks = [k.ds(f"ds_read_b128 {V(HB+4*q,4)}, v10 offset:{1024*q}") for q in range(15)]
        k.begin()
        for s_ in range(3):
            for i in range(20):
                k(f"v_add_f32 v{ACC+i}, v{ACC+i}, v{HB+20*s_+i}")
        idft(10, 20, k.end(), 3)
        for i in range(0, 20, 2):
            k(f"v_pk_mul_f32 {V(HB+i,2)}, {V(ACC+i,2)}, v[14:15] op_sel:[0,1] op_sel_hi:[1,1]")
        for i in range(20):
            k(f"v_exp_f32 v{HB+i}, v{HB+i}")
        for i in range(0, 20, 2):
            k(f"v_pk_mul_f32 {V(ACC+i,2)}, {V(ACC+i,2)}, v[14:15] op_sel_hi:[1,0]")
        for i in range(0, 20, 2):
            k(f"v_pk_add_f32 {V(HB+i,2)}, {V(HB+i,2)}, 1.0 op_sel_hi:[1,0]")
        for i in range(20):
            k(f"v_rcp_f32 v{HB+i}, v{HB+i}")
        for i in range(0, 20, 2):
            k(f"v_pk_mul_f32 {V(ACC+i,2)}, {V(ACC+i,2)}, {V(HB+i,2)}")
        for b in range(5):
            for r in range(0, 4, 2):
                t = 10 + r
                if b < 4:
                    e, o_ = V(EO + 4 * (b & 1) + r, 2), V(EO + 8 + 4 * (b & 1) + r, 2)
                    k(f"v_pk_add_f32 {V(t,2)}, {e}, {o_}" + (" neg_lo:[0,1] neg_hi:[0,1]" if b >= 2 else ""))
                    src = V(t, 2)
                else:
                    src = V(EO + 16 + r, 2)
                k(f"v_pk_fma_f32 {V(t,2)}, {src}, {V(ACC+4*b+r,2)}, {V(ACC+20+4*b+r,2)}")
                k(f"v_cvt_pk_bf16_f32 v{XR_+2*b+r//2}, v{t}, v{t+1}")
            k.vmem(f"buffer_store_dwordx2 {V(XR_+2*b,2)}, v{9 if b == 4 else 8}, s[{sOUT}:{sOUT+3}], 0 offen offset:{offs[b]}")

    def build(self):
        k = self.k
        self.startup()
        self.pre_chunks = 0
        for ch in self.opt.get("ORDER", "argb"):
            if ch == "a":
                self.setup_a()
            elif ch == "r":
                self.role_loads()
            elif ch == "g":
                self.geometry()
            elif ch == "b":
                k.put(self.setup_b())
            elif ch == "c":
                k.put(self.dma_chunk(self.pre_chunks))
                self.pre_chunks += 1
        self.stamp("setup")
        self.phase1()
        Ln, Lw, Lg = k.lab("L_narrow"), k.lab("L_widejob"), k.lab("L_join")
        k(f"s_cmp_eq_u32 s{sWIDE}, 0\ns_cbranch_scc1 {Ln}")
        k(f"s_cmp_eq_u32 s{sC}, 0\ns_cbranch_scc1 {Lw}")
        snap = k.snapshot()
        tch = dict(self.t_chunk)
        self.middle_nojob(*self.gemm1(4, False))
        k(f"s_branch {Lg}")
        k(f"{Lw}:")
        k.restore(snap)
        self.t_chunk = dict(tch)
        self.middle_job(*self.gemm1(4, True))
        k(f"s_branch {Lg}")
        k(f"{Ln}:")
        k.restore(snap)
        self.t_chunk = dict(tch)
        self.middle_job(*self.gemm1(3, True))
        k(f"{Lg}:")
        k.all_opt()
        k.clear_lg()
        self.tail()
        self.finish()
        body = k.text(self.opt.get('ALIGN', 1), f'{KN}:\n.set tab_data, {KN}+0x12340\n.set tab_end, {KN}+0x23450\n')
        hdr = open("recurrent_scan__spectral_gfnet__dense_activation_relu__prompt.s.ref").read().split("; Override launch")[0]
        s = hdr + f"; @launch grid=(256,1,1) block=(256,1,1) lds={LDS_BYTES}\n"
        s += f'.amdgcn_target "amdgcn-amd-amdhsa--gfx950"\n.text\n.globl {KN}\n.p2align 8\n.type {KN},@function\n{KN}:\n'
        s += body
        s += ".p2align 8\n.type tab_data,@object\ntab_data:\n"
        for f in tables():
            u = bf16(f).reshape(-1).view(np.uint32)
            for i in range(0, 256, 8):
                s += ".long " + ",".join("0x%x" % x for x in u[i:i + 8]) + "\n"
        u = lane_table().reshape(-1)
        for i in range(0, len(u), 8):
            s += ".long " + ",".join("0x%x" % x for x in u[i:i + 8]) + "\n"
        s += f"tab_end:\n.size tab_data, {TAB_BYTES}\n"
        s += f""".section .rodata,"a"
.p2align 6
.amdhsa_kernel {KN}
  .amdhsa_next_free_vgpr 512
  .amdhsa_next_free_sgpr 102
  .amdhsa_accum_offset 256
  .amdhsa_group_segment_fixed_size 0
  .amdhsa_kernarg_size 72
  .amdhsa_user_sgpr_count 2
  .amdhsa_user_sgpr_kernarg_segment_ptr 1
  .amdhsa_system_sgpr_workgroup_id_x 1
.end_amdhsa_kernel
"""
        return s


if __name__ == "__main__":
    out = sys.argv[1] if len(sys.argv) > 1 else "k.s"
    stop = sys.argv[2] if len(sys.argv) > 2 and sys.argv[2] != "-" else None
    g = Gen(stop=stop, stamps=(len(sys.argv) > 3 and sys.argv[3] == "1"))
    open(out, "w").write(g.build())
    print("written", out, "nops inserted", fix_hazards.total, "align", getattr(align8, "stats", None), "stamps", g.stn)
```

```python
import math, sys
import numpy as np
from kf import *

KN = "recurrent_scan__spectral_gfnet__dense_activation_relu__prompt_kernel"

WS_GEN = 0
FS = 16
WS_F1 = 0x1000
WS_FH = 0x3000
WS_FZ = 0x5000
WS_ST = 0x10000
PFB = 161 * 128
WS_PF = 0x100000
WS_W2 = 0x700000
WS_H = 0xA00000
WS_Z = 0x1200000
WS_STAMP = 0x2000000
WS_SIZE = 268435456

SLOT = 32768
L_OUT = 98304
L_XN = 119040
L_RP = 129280
L_CT = 139520
L_CS = 61440
L_G = 0
L_RED = 0
L_Z = 65536
L_INB = 0
L_EXC = 98304
L_ZST = 114688
ZSTU = 32 * 272
LDS_BYTES = 163840

sX, sWS, sWR, sWI, sW1, sW2, sOUT, sTAB = 4, 8, 12, 16, 20, 24, 28, 32
sWAVE, sC, sXCD, sIDX, sTAG, sRB, sU0, sWIDE, sJOB, sRB2, sJ, sROT = range(36, 48)
T0, T1, T2, T3, T4, T5, T6, T7 = range(48, 56)
sPOLL = 56
sEX = 58
sST = 60
sM = 62
sWROW = 64
sBID = 96
sHB = 68
F0, F1_, F2, F3, F4, F5, sW2B, sR2 = range(72, 80)
sNS = 57
F6, F7 = 2, 3
sSTAMP = 80

SPIN_MAX = 200000


def pi_(m):
    return (m & ~12) | ((m & 4) << 1) | ((m & 8) >> 1)


def bf16(x):
    u = np.asarray(x, dtype=np.float32).view(np.uint32).astype(np.uint64)
    return (((u + 0x7FFF + ((u >> 16) & 1)) >> 16) & 0xFFFF).astype(np.uint16)


def tables():
    fr = []
    for part in range(2):
        for t in range(3):
            f = np.zeros((64, 8))
            for l in range(64):
                n, h = l & 31, l >> 5
                f1, e1 = n >> 1, n & 1
                for j in range(8):
                    Q = 4 * t + 2 * h + (j >> 2)
                    if Q >= 10 or n >= 22 or Q // 5 != e1:
                        continue
                    d1 = 4 * (Q % 5) + (j & 3)
                    th = 2 * math.pi * ((d1 * f1) % 20) / 20
                    f[l, j] = math.cos(th) if part == 0 else -math.sin(th)
            fr.append(f)
    for kind in range(3):
        for t in range(2):
            f = np.zeros((64, 8))
            for l in range(64):
                a = pi_(l & 31)
                for j in range(8):
                    b = 16 * t + 8 * (l >> 5) + j
                    th = 2 * math.pi * ((a * b) % 32) / 32
                    f[l, j] = [math.cos(th), -math.sin(th), math.sin(th)][kind]
            fr.append(f)
    for hb in range(2):
        for kind in range(3):
            for tau in range(4):
                t = tau ^ (2 * hb)
                f = np.zeros((64, 8))
                for l in range(64):
                    a = 32 * hb + pi_(l & 31)
                    for j in range(8):
                        b = 16 * t + 8 * (l >> 5) + j
                        th = 2 * math.pi * ((a * b) % 64) / 64
                        f[l, j] = [math.cos(th), -math.sin(th), math.sin(th)][kind]
                fr.append(f)
    return fr


def lane_table():
    t = np.zeros((4, 64, 16), np.uint32)
    for w in range(4):
        for l in range(64):
            h, n = l >> 5, l & 31
            f2 = pi_(n)
            for p in range(6):
                f1 = 4 * (p >> 1) + 2 * h + (p & 1)
                f = f1 + 20 * f2
                U = 322
                if f1 <= 10 and f <= 320:
                    U = f
                elif 1 <= f1 <= 9:
                    U = 640 - f
                line = U >> 1
                for part in range(2):
                    t[w, l, 6 * part + p] = L_OUT + line * 128 + ((4 * (U & 1) + part) ^ ((line >> 1) & 7)) * 16 + 4 * w
            t[w, l, 12] = 0x80008000 if f2 > 15 else 0
            t[w, l, 13] = L_XN + 2560 * w + 1280 * h + 8 * n
            kk, c, G = (l >> 2) & 3, l & 3, (l >> 4) & 1
            b = L_XN + 2560 * w + kk * 64 + (16 * G + 8 * (c & 1) + 4 * (c >> 1)) * 2
            t[w, l, 14] = b + 512 * h
            t[w, l, 15] = b
    return t.reshape(4, 64, 4, 4).transpose(0, 2, 1, 3).copy()


TAB_F20, TAB_F32, TAB_F64, TAB_LC = 0, 6 * 1024, 12 * 1024, 36 * 1024
TAB_BYTES = 52 * 1024


class Gen:
    def __init__(self, stop=None, stamps=False, **opt):
        self.k = K()
        self.stop = stop
        self.stamps = stamps
        self.nst = 0
        self.stn = []
        self.opt = dict(FLAG_AT=2, ROT=1, P1DMA=2, P1START=0, F1AT=5, FZAT=8, NV0=4, NV=2, HD=4)
        self.opt.update(opt)

    def stamp(self, name):
        if not self.stamps:
            return
        k = self.k
        if name in self.stn:
            i = self.stn.index(name)
        else:
            i = len(self.stn)
            self.stn.append(name)
        assert sSTAMP + i <= 95
        with k.atomic():
            k(f"{'s_memtime' if self.stamps == 'cyc' else 's_memrealtime'} s[{sST}:{sST+1}]")
            k.drain_lg()
            k(f"s_mov_b32 s{sSTAMP+i}, s{sST}")

    def pi_v(self, d, s, t):
        k = self.k
        k(f"v_and_b32 v{d}, 0x13, v{s}")
        k(f"v_bfe_u32 v{t}, v{s}, 2, 1")
        k(f"v_lshl_or_b32 v{d}, v{t}, 3, v{d}")
        k(f"v_bfe_u32 v{t}, v{s}, 3, 1")
        k(f"v_lshl_or_b32 v{d}, v{t}, 2, v{d}")

    def poll_issue(self, regs):
        k = self.k
        return [k.vmem(f"buffer_load_dword v{dr}, v{ar}, s[{sWS}:{sWS+3}], 0 offen sc1") for ar, dr in regs][-1]

    def poll_check(self, regs, tok):
        k = self.k
        L, Ld = k.lab("L_poll"), k.lab("L_polld")
        with k.atomic():
            k.wait_vm(tok)
            k(f"s_mov_b32 s{sPOLL}, 0")
            k(f"{L}:")
            for i, (ar, dr) in enumerate(regs):
                if i == 0:
                    k(f"v_cmp_ne_u32 vcc, s{sTAG}, v{dr}")
                else:
                    k(f"v_cmp_ne_u32 s[{sM}:{sM+1}], s{sTAG}, v{dr}")
                    k(f"s_or_b64 vcc, vcc, s[{sM}:{sM+1}]")
            k(f"s_add_u32 s{sPOLL}, s{sPOLL}, 1")
            k("s_cmp_eq_u64 vcc, 0")
            k(f"s_cbranch_scc1 {Ld}")
            for ar, dr in regs:
                k(f"buffer_load_dword v{dr}, v{ar}, s[{sWS}:{sWS+3}], 0 offen sc1")
            k("s_waitcnt vmcnt(0)")
            k(f"s_cmp_lt_u32 s{sPOLL}, {SPIN_MAX}")
            k(f"s_cbranch_scc1 {L}")
            k(f"{Ld}:")

    def flag_store(self, pre, sreg, vtmp):
        k = self.k
        L = k.lab("L_fs")
        with k.atomic():
            k(f"s_cmp_lg_u32 s{sWAVE}, 0")
            k(f"s_cbranch_scc1 {L}")
            k(pre)
            k(f"v_mov_b32 v{vtmp}, s{sTAG}")
            k(f"v_mov_b32 v{vtmp+1}, 0")
            k("s_mov_b64 exec, 1")
            k.vmem(f"buffer_store_dword v{vtmp}, v{vtmp+1}, s[{sWS}:{sWS+3}], s{sreg} offen sc1", opt=True)
            k("s_mov_b64 exec, -1")
            k(f"{L}:")

    def finish(self):
        k = self.k
        k("L_fin:")
        if self.stamps:
            self.stamp("end")
            k(f"s_cmp_lg_u32 s{sWAVE}, 0\ns_cbranch_scc1 L_end")
            k(f"s_lshl_b32 s{T0}, s{sIDX}, 3\ns_add_u32 s{T0}, s{T0}, s{sXCD}\ns_lshl_b32 s{T0}, s{T0}, 8\ns_add_u32 s{T0}, s{T0}, {WS_STAMP}\nv_mov_b32 v2, 0")
            k("s_mov_b64 exec, 1")
            for i in range(len(self.stn)):
                k(f"v_mov_b32 v3, s{sSTAMP+i}")
                k(f"buffer_store_dword v3, v2, s[{sWS}:{sWS+3}], s{T0} offen offset:{4*i}")
        k("L_end:")
        k("s_endpgm")

    def startup(self):
        k = self.k
        o = self.opt
        if self.stamps:
            for i in range(sSTAMP, 96):
                k(f"s_mov_b32 s{i}, 0")
        self.stamp("start")
        k("s_cmp_ge_u32 s2, 256\ns_cbranch_scc1 L_end")
        k(f"s_load_dwordx2 s[{sX}:{sX+1}], s[0:1], 0")
        k(f"s_load_dwordx2 s[{sWS}:{sWS+1}], s[0:1], 64")
        k(f"s_load_dwordx2 s[{sWR}:{sWR+1}], s[0:1], 8")
        k(f"s_load_dwordx2 s[{sWI}:{sWI+1}], s[0:1], 16")
        k(f"s_load_dwordx2 s[{sW1}:{sW1+1}], s[0:1], 32")
        k(f"s_load_dwordx2 s[{sW2}:{sW2+1}], s[0:1], 40")
        k(f"s_load_dwordx2 s[{sOUT}:{sOUT+1}], s[0:1], 48")
        k(f"v_lshrrev_b32 v2, 6, v0\nv_and_b32 v1, 63, v0")
        k(f"s_and_b32 s{sXCD}, s2, 7\ns_lshr_b32 s{sIDX}, s2, 3")
        k(f"v_readfirstlane_b32 s{sWAVE}, v2")
        k(f"s_lshl_b32 s{sC}, s{sXCD}, 5\ns_add_u32 s{sC}, s{sC}, s{sIDX}")
        k(f"s_and_b32 s{T0}, s{sC}, 7\ns_lshl_b32 s{T0}, s{T0}, 3\ns_lshl_b32 s{T1}, s{sWAVE}, 1\ns_add_u32 s{T0}, s{T0}, s{T1}")
        k(f"s_lshl_b32 s{T0}, s{T0}, 5\ns_lshr_b32 s{T1}, s{sC}, 3\ns_add_u32 s{T0}, s{T0}, s{T1}\ns_mul_i32 s{T0}, s{T0}, 1280")
        k("v_lshrrev_b32 v3, 5, v1")
        k("v_and_b32 v4, 31, v1")
        k("v_mul_u32_u24 v5, 40960, v3\nv_lshl_add_u32 v5, v4, 3, v5")
        k(f"s_mov_b32 s{sX+2}, 2621440\ns_mov_b32 s{sX+3}, 0x20000")
        k(f"s_getpc_b64 s[{sTAB}:{sTAB+1}]\nL_pc:\ns_add_u32 s{sTAB}, s{sTAB}, tab_data-L_pc\ns_addc_u32 s{sTAB+1}, s{sTAB+1}, 0")
        k(f"s_mov_b32 s{sTAB+2}, {TAB_BYTES}\ns_mov_b32 s{sTAB+3}, 0x20000")
        k("v_lshlrev_b32 v6, 4, v1")
        k(f"s_mul_i32 s{T1}, s{sWAVE}, 3072")
        k("s_waitcnt lgkmcnt(0)")
        self.t_x = [k.vmem(f"buffer_load_dwordx2 v[{10+2*i}:{11+2*i}], v5, s[{sX}:{sX+3}], s{T0} offen offset:{256*i}") for i in range(5)]
        k(f"s_load_dword s{sTAG}, s[{sWS}:{sWS+1}], {WS_GEN}")
        k(f"s_sub_u32 s{T4}, s{sTAB}, tab_data-{KN}\ns_subb_u32 s{T4+1}, s{sTAB+1}, 0")
        k(f"s_mov_b32 s{T4+2}, tab_end-{KN}\ns_mov_b32 s{T4+3}, 0x20000")
        k(f"s_lshl_b32 s{T2}, s{sIDX}, 2\ns_add_u32 s{T2}, s{T2}, s{sWAVE}\ns_lshl_b32 s{T2}, s{T2}, 7\nv_lshlrev_b32 v7, 14, v1")
        with k.atomic():
            k("s_mov_b64 exec, 0x7f")
            k.vmem(f"buffer_load_dword v5, v7, s[{T4}:{T4+3}], s{T2} offen")
            k("s_mov_b64 exec, -1")
        k(f"s_add_u32 m0, s{T1}, {L_CT}")
        for i in range(3):
            self.t_c = k.vmem(f"buffer_load_dwordx4 v6, s[{sTAB}:{sTAB+3}], s{T1} offen offset:{i*1024} lds")
        k(f"s_lshl_b32 s{T1}, s{sWAVE}, 12\ns_add_u32 s{T1}, s{T1}, {TAB_LC}")
        for i in range(4):
            self.t_lc = k.vmem(f"buffer_load_dwordx4 {V(208+4*i,4)}, v6, s[{sTAB}:{sTAB+3}], s{T1} offen offset:{i*1024}")
        k(f"s_mov_b32 s{sWS+2}, {WS_SIZE}\ns_mov_b32 s{sWS+3}, 0x20000")
        for s_, n in ((sWR, 2048 * 642), (sWI, 2048 * 642), (sW1, 640 * 3456), (sW2, 1728 * 1280), (sOUT, 2621440)):
            k(f"s_mov_b32 s{s_+2}, {n}\ns_mov_b32 s{s_+3}, 0x20000")

    def tlb_warm(self):
        k = self.k
        mode = self.opt.get("TLB", 0)
        if not mode:
            return
        L = k.lab("L_tw")
        with k.atomic():
            k(f"s_cmp_lg_u32 s{sWAVE}, 3\ns_cbranch_scc1 {L}")
            if mode == 1:
                k("v_lshlrev_b32 v7, 21, v1\nv_add_u32 v7, 0x1fff80, v7\nv_lshlrev_b32 v8, 21, v1\ns_mov_b64 exec, 0x7ff")
                k.vmem(f"buffer_load_dword v5, v7, s[{sWS}:{sWS+3}], 0 offen", opt=True)
                k("s_mov_b64 exec, 3")
                k.vmem(f"buffer_load_dword v5, v8, s[{sOUT}:{sOUT+3}], 0 offen", opt=True)
            else:
                k(f"v_lshlrev_b32 v7, 5, v1\nv_add_u32 v7, s{sIDX}, v7\nv_lshlrev_b32 v7, 16, v7\ns_mov_b64 exec, 0x7ff")
                k.vmem(f"buffer_load_dword v5, v7, s[{sWS}:{sWS+3}], 0 offen offset:3968", opt=True)
                k("s_mov_b64 exec, 3")
                k.vmem(f"buffer_load_dword v5, v7, s[{sOUT}:{sOUT+3}], 0 offen", opt=True)
            k("s_mov_b64 exec, -1")
            k(f"{L}:")

    def role_loads(self):
        k = self.k
        Lw3, Lj = k.lab("L_w3"), k.lab("L_rj")
        with k.atomic():
            k(f"s_cmp_eq_u32 s{sWAVE}, 3\ns_cbranch_scc1 {Lw3}")
            k(f"s_and_b32 s{T1}, s{sC}, 1\ns_lshl_b32 s{T1}, s{T1}, 5\ns_lshr_b32 s{T2}, s{sC}, 3\ns_add_u32 s{T1}, s{T1}, s{T2}")
            k(f"s_bfe_u32 s{T2}, s{sC}, 0x10002\ns_lshl_b32 s{T2}, s{T2}, 10\ns_add_u32 s{T1}, s{T1}, s{T2}")
            k(f"s_bfe_u32 s{T2}, s{sC}, 0x10001\ns_lshl_b32 s{T2}, s{T2}, 8\ns_add_u32 s{T1}, s{T1}, s{T2}")
            k(f"s_mul_i32 s{sWROW}, s{T1}, 642")
            for i in range(1, 8):
                k(f"s_add_u32 s{sWROW+i}, s{sWROW}, {(8*(i>>2)+(i&3))*64*642}")
            k("v_min_u32 v7, 160, v0\nv_lshlrev_b32 v7, 2, v7\nv_min_u32 v7, 638, v7")
            for i in range(8):
                k.vmem(f"buffer_load_dword v{224+2*i}, v7, s[{sWR}:{sWR+3}], s{sWROW+i} offen", opt=(i >= 5))
                k.vmem(f"buffer_load_dword v{225+2*i}, v7, s[{sWI}:{sWI+3}], s{sWROW+i} offen", opt=(i >= 5))
            k(f"s_branch {Lj}")
            k(f"{Lw3}:")
            k(f"s_mul_i32 s{T3}, s{sC}, 10240")
            for n in range(10):
                if n % 4 == 0:
                    k(f"s_add_u32 s{T2}, s{T3}, {n*1024}\ns_mov_b32 m0, {L_RP + n*1024}")
                k.vmem(f"buffer_load_dwordx4 v6, s[{sW2}:{sW2+3}], s{T2} offen offset:{(n%4)*1024} lds", opt=True)
            k(f"{Lj}:")
        self.t_role = k.last_vm()

    def geometry(self):
        k = self.k
        o = self.opt
        k(f"s_lshr_b32 s{T1}, s{sXCD}, 1\ns_lshl_b32 s{sRB}, s{T1}, 2\ns_lshr_b32 s{T2}, s{sIDX}, 3\ns_add_u32 s{sRB}, s{sRB}, s{T2}")
        k(f"s_lshl_b32 s{sRB2}, s{T1}, 3\ns_lshr_b32 s{T3}, s{sIDX}, 2\ns_add_u32 s{sRB2}, s{sRB2}, s{T3}")
        k(f"s_and_b32 s{T3}, s{sXCD}, 1\ns_lshl_b32 s{sJ}, s{T3}, 2\ns_and_b32 s{T4}, s{sIDX}, 3\ns_add_u32 s{sJ}, s{sJ}, s{T4}")
        k(f"s_and_b32 s{T4}, s{sIDX}, 7")
        k(f"s_mul_i32 s{T5}, s{T4}, 3\ns_add_u32 s{T5}, s{T5}, 3\ns_mul_i32 s{T6}, s{T3}, 27\ns_add_u32 s{T5}, s{T5}, s{T6}")
        k(f"s_cmp_eq_u32 s{T5}, 39\ns_cselect_b32 s{T5}, 27, s{T5}")
        k(f"s_lshl_b32 s{T6}, s{T4}, 2\ns_mul_i32 s{T7}, s{T3}, 30\ns_add_u32 s{T6}, s{T6}, s{T7}")
        k(f"s_cmp_lt_u32 s{T4}, 3\ns_cselect_b32 s{sU0}, s{T6}, s{T5}\ns_cselect_b32 s{sWIDE}, 1, 0")
        k(f"s_mul_i32 s{T5}, s{sXCD}, 20\ns_mul_i32 s{T6}, s{T2}, 5\ns_add_u32 s{T5}, s{T5}, s{T6}\ns_add_u32 s{T5}, s{T5}, s{T4}\ns_sub_u32 s{sJOB}, s{T5}, 3")
        k(f"s_cmp_eq_u32 s{sC}, 0\ns_cselect_b32 s{sJOB}, 160, s{sJOB}")
        k(f"s_mul_i32 s{sW2B}, s{sJ}, 276480\ns_mul_i32 s{T5}, s{sWAVE}, 5120\ns_add_u32 s{sW2B}, s{sW2B}, s{T5}\ns_add_u32 s{sW2B}, s{sW2B}, {WS_W2}")
        k(f"s_cmp_ge_u32 s{sWAVE}, 2\ns_cselect_b32 s{sNS}, 13, 14")
        k(f"s_and_b32 s{T5}, s{sIDX}, 3\ns_mul_i32 s{sR2}, s{T5}, {o.get('ROT2', 3)}")
        if o["ROT"]:
            k(f"s_lshl_b32 s{T5}, s{T3}, 3\ns_add_u32 s{T5}, s{T5}, s{T4}\ns_mul_i32 s{T6}, s{sRB}, 3\ns_add_u32 s{T5}, s{T5}, s{T6}")
            k(f"s_mul_i32 s{T6}, s{T5}, 6554\ns_lshr_b32 s{T6}, s{T6}, 16\ns_mul_i32 s{T6}, s{T6}, 10\ns_sub_u32 s{sROT}, s{T5}, s{T6}")
        else:
            k(f"s_mov_b32 s{sROT}, 0")
        k(f"s_lshl_b32 s{T5}, s{sRB}, 1\ns_lshr_b32 s{T6}, s{sWAVE}, 1\ns_add_u32 s{T5}, s{T5}, s{T6}\ns_and_b32 s{T6}, s{sWAVE}, 1\ns_lshl_b32 s{T6}, s{T6}, 10")
        k(f"s_add_u32 s{T5}, s{T5}, s{T6}\ns_mul_i32 s{T5}, s{T5}, 1280")
        k("v_lshrrev_b32 v7, 3, v1\nv_mul_u32_u24 v8, 40960, v7\nv_lshrrev_b32 v9, 4, v1\nv_and_b32 v2, 7, v1\nv_xor_b32 v9, v9, v2")
        k(f"v_lshl_add_u32 v152, v9, 4, v8\nv_add_u32 v152, s{T5}, v152\nv_xor_b32 v153, 64, v152")
        k(f"v_add_u32 v153, 327680, v153\nv_add_u32 v154, 655360, v152\nv_add_u32 v155, 655360, v153")
        k(f"s_lshr_b32 s{T5}, s{sU0}, 1\ns_lshl_b32 s{T5}, s{T5}, 7\ns_mul_i32 s{T6}, s{sWAVE}, {16*3456}\ns_add_u32 s{T5}, s{T5}, s{T6}")
        k("v_mul_u32_u24 v8, 3456, v7\nv_bfe_u32 v9, v1, 4, 1\nv_lshlrev_b32 v9, 2, v9\nv_xor_b32 v9, v9, v2")
        k(f"v_lshl_add_u32 v156, v9, 4, v8\nv_add_u32 v156, s{T5}, v156\nv_add_u32 v157, {8*3456}, v156")
        k(f"s_lshl_b32 s{F3}, s{sWAVE}, 12\ns_lshl_b32 s{F4}, s{sWAVE}, 11")
        self.t_chunk = {}

    def dma_chunk(self, c):
        k = self.k
        slot = (c % 5) * SLOT
        k.begin()
        for n in range(8):
            with k.atomic():
                if n == 0:
                    k(f"s_add_u32 s{F0}, s{sROT}, {c}\ns_cmp_ge_u32 s{F0}, 10\ns_cselect_b32 s{F1_}, 10, 0\ns_sub_u32 s{F0}, s{F0}, s{F1_}")
                    k(f"s_lshl_b32 s{F1_}, s{F0}, 7\ns_mul_i32 s{F2}, s{F0}, {64*3456}")
                m = n >> 1
                if n & 1 == 0:
                    k(f"s_add_u32 m0, s{F3}, {slot + m*1024}")
                    self.t_chunk[c] = k.vmem(f"buffer_load_dwordx4 v{152+m}, s[{sX}:{sX+3}], s{F1_} offen lds")
                else:
                    L, rg = m & 1, m >> 1
                    k(f"s_add_u32 m0, s{F4}, {slot + 16384 + L*(8192-128) + rg*1024}")
                    self.t_chunk[c] = k.vmem(f"buffer_load_dwordx4 v{156+rg}, s[{sW1}:{sW1+3}], s{F2} offen offset:{128*L} lds")
        return k.end()

    def setup_a(self):
        k = self.k
        k("v_lshrrev_b32 v7, 1, v4\nv_cvt_f32_u32 v7, v7")
        k(f"v_mul_f32 v7, {fl(1/640)}, v7")
        k("v_lshlrev_b32 v8, 3, v3\nv_cvt_f32_u32 v8, v8\nv_mul_f32 v8, v8, v7")
        for i in range(16):
            g, r = i >> 2, i & 3
            d = 16 * (g >> 1) + 4 * (g & 1) + r
            k(f"v_fmamk_f32 v9, v7, {fl(float(d))}, v8")
            k(f"v_cos_f32 v{84+i}, v9")
            k(f"v_sin_f32 v{100+i}, v9")
        k(f"v_add_u32 v121, {L_CT}, v6")

    def setup_b(self):
        k = self.k
        k.begin()
        k(f"s_lshl_b32 s{T0}, s{sWAVE}, 12")
        k("v_bfe_u32 v7, v1, 1, 3\nv_xor_b32 v7, v7, v3\nv_lshlrev_b32 v7, 4, v7\nv_lshl_add_u32 v7, v4, 7, v7")
        k(f"v_add_u32 v128, s{T0}, v7")
        for t in range(1, 4):
            k(f"v_xor_b32 v{128+t}, {32*t}, v128")
        k("v_bfe_u32 v7, v1, 2, 2\nv_lshl_add_u32 v7, v3, 3, v7\nv_lshlrev_b32 v7, 7, v7")
        k("v_bfe_u32 v8, v1, 3, 1\nv_lshl_or_b32 v7, v8, 6, v7\nv_bfe_u32 v8, v1, 4, 1\nv_lshl_or_b32 v7, v8, 5, v7")
        k("v_and_b32 v8, 1, v1\nv_lshl_or_b32 v7, v8, 4, v7\nv_bfe_u32 v8, v1, 1, 1\nv_lshl_or_b32 v7, v8, 3, v7")
        k(f"s_add_u32 s{T1}, s{sWIDE}, 3\ns_and_b32 s{T2}, s{sU0}, 1")
        for bi in range(4):
            k(f"s_add_u32 s{T3}, s{sWAVE}, {bi}\ns_cmp_ge_u32 s{T3}, s{T1}\ns_cselect_b32 s{T4}, s{T1}, 0\ns_sub_u32 s{T3}, s{T3}, s{T4}")
            k(f"s_cmp_ge_u32 s{T3}, s{T1}\ns_cselect_b32 s{T4}, s{T1}, 0\ns_sub_u32 s{T3}, s{T3}, s{T4}")
            k(f"s_mov_b32 s{sBID+bi}, s{T3}\ns_add_u32 s{T3}, s{T3}, s{T2}\ns_and_b32 s{T4}, s{T3}, 1\ns_lshl_b32 s{T4}, s{T4}, 6\ns_lshr_b32 s{T3}, s{T3}, 1\ns_lshl_b32 s{T3}, s{T3}, 13")
            k(f"s_add_u32 s{T3}, s{T3}, 16384\nv_xor_b32 v8, s{T4}, v7\nv_add_u32 v{132+bi}, s{T3}, v8")
        for i in range(8):
            k(f"v_add_u32 v{136+i}, 0x10000, v{128+i}\nv_add_u32 v{144+i}, 0x20000, v{128+i}")
        k("v_lshrrev_b32 v7, 4, v1\nv_xor_b32 v7, v7, v1\nv_and_b32 v7, 1, v7\nv_cmp_eq_u32 vcc, 0, v7\nv_mov_b32 v8, 0x3f803f80\ns_nop 0\nv_cndmask_b32 v124, 0, v8, vcc")
        k("v_mov_b32 v125, v124\nv_mov_b32 v126, v124\nv_mov_b32 v127, v124")
        return k.end()

    def reduce32(self, r, t):
        k = self.k
        for sh in (8, 4, 2, 1):
            k(f"v_add_f32_dpp v{r}, v{r}, v{r} row_ror:{sh} row_mask:0xf bank_mask:0xf")
        k(f"v_mov_b32 v{t}, v{r}")
        k(f"v_permlane16_swap_b32 v{t}, v{r}")
        k(f"v_add_f32 v{r}, v{r}, v{t}")

    def phase1(self):
        k = self.k
        k.drain_lg()
        k(f"s_mul_i32 s{sTAG}, s{sTAG}, 1664525\ns_add_u32 s{sTAG}, s{sTAG}, 1013904223")
        k.wait_vm(self.t_x[-1])
        self.stamp("x")
        k.begin()
        for i in range(10):
            k(f"v_lshlrev_b32 v{20+2*i}, 16, v{10+i}\nv_and_b32 v{21+2*i}, 0xffff0000, v{10+i}")
        k("v_pk_add_f32 v[8:9], v[20:21], v[22:23]\nv_pk_add_f32 v[10:11], v[24:25], v[26:27]")
        for i in range(4, 10, 2):
            k(f"v_pk_add_f32 v[8:9], v[8:9], v[{20+2*i}:{21+2*i}]\nv_pk_add_f32 v[10:11], v[10:11], v[{22+2*i}:{23+2*i}]")
        k("v_pk_add_f32 v[8:9], v[8:9], v[10:11]\nv_add_f32 v8, v8, v9")
        self.reduce32(8, 9)
        k(f"v_mul_f32 v8, {fl(1/640)}, v8")
        for i in range(10):
            k(f"v_pk_add_f32 v[{20+2*i}:{21+2*i}], v[{20+2*i}:{21+2*i}], v[8:9] op_sel_hi:[1,0] neg_lo:[0,1] neg_hi:[0,1]")
        k("v_pk_mul_f32 v[10:11], v[20:21], v[20:21]\nv_pk_mul_f32 v[12:13], v[22:23], v[22:23]")
        for i in range(2, 10, 2):
            k(f"v_pk_fma_f32 v[10:11], v[{20+2*i}:{21+2*i}], v[{20+2*i}:{21+2*i}], v[10:11]")
            k(f"v_pk_fma_f32 v[12:13], v[{22+2*i}:{23+2*i}], v[{22+2*i}:{23+2*i}], v[12:13]")
        k("v_pk_add_f32 v[10:11], v[10:11], v[12:13]\nv_add_f32 v10, v10, v11")
        with k.atomic():
            k.wait_vm(self.t_lc)
            k("s_barrier")
        for i in range(12):
            tc = k.ds(f"ds_read_b128 {A(4*i,4)}, v121 offset:{1024*i}")
        self.reduce32(10, 11)
        k(f"v_mul_f32 v10, {fl(1/640)}, v10")
        k("v_cvt_pk_bf16_f32 v12, v8, v10")
        k("v_and_b32 v13, 0xffff0000, v12")
        k(f"v_add_f32 v13, {fl(1e-5)}, v13\nv_cvt_pk_bf16_f32 v13, v13, v13\nv_and_b32 v13, 0xffff0000, v13")
        k("v_sqrt_f32 v13, v13\nv_lshlrev_b32 v15, 16, v12\nv_cvt_pk_bf16_f32 v13, v13, v13\nv_and_b32 v13, 0xffff0000, v13")
        k("v_rcp_f32 v14, v13\nv_sub_f32 v15, v8, v15")
        k("v_mul_f32 v15, v15, v14")
        for i in range(10):
            k(f"v_pk_fma_f32 v[{20+2*i}:{21+2*i}], v[{20+2*i}:{21+2*i}], v[14:15], v[14:15] op_sel:[0,0,1] op_sel_hi:[1,0,1]")
            if i & 1:
                k(f"v_cvt_pk_bf16_f32 v{39+i}, v{18+2*i}, v{19+2*i}\nv_cvt_pk_bf16_f32 v{40+i}, v{20+2*i}, v{21+2*i}")
                tw = k.ds(f"ds_write_b64 v221, v[{39+i}:{40+i}] offset:{128*(i-1)}")
        k("v_and_b32 v12, 0xffff, v12\nv_or_b32 v12, v12, v13")
        k(f"v_mov_b32 v13, s{sTAG}")
        k(f"s_lshl_b32 s{T0}, s{sC}, 6\ns_lshl_b32 s{T1}, s{sWAVE}, 4\ns_add_u32 s{T0}, s{T0}, s{T1}\ns_add_u32 s{T0}, s{T0}, {WS_ST}")
        k("v_lshlrev_b32 v2, 3, v3")
        k.wait_lg(tw, est=40)
        toks = []
        for t in range(3):
            for jj in range(2):
                ar = 222 if t < 2 else 223
                toks.append(k.ds(f"ds_read_b64_tr_b16 v[{40+4*t+2*jj}:{41+4*t+2*jj}], v{ar} offset:{t*1024+jj*256}"))
        with k.atomic():
            k("s_mov_b32 exec_lo, 1\ns_mov_b32 exec_hi, 1")
            k.vmem(f"buffer_store_dwordx2 v[12:13], v2, s[{sWS}:{sWS+3}], s{T0} offen sc1")
            k("s_mov_b64 exec, -1")
        for t in range(3):
            k.wait_lg(toks[2 * t + 1], est=(60 if t == 0 else 0))
            for part in range(2):
                D = V(52 + 16 * part, 16)
                k(f"v_mfma_f32_32x32x16_bf16 {D}, {V(40+4*t,4)}, {A(12*part+4*t,4)}, {'0' if t == 0 else D}")
        self.cmul(52, 84, +1, 160, 8)
        Fr, Fi, NFi = 24, 32, 40
        first = True
        for t in range(2):
            for (dat, cre, cim) in ((160, Fr, Fi), (168, NFi, Fr)):
                k(f"v_mfma_f32_32x32x16_bf16 {V(176,16)}, {V(dat+4*t,4)}, {A(cre+4*t,4)}, {'0' if first else V(176,16)}")
                k(f"v_mfma_f32_32x32x16_bf16 {V(192,16)}, {V(dat+4*t,4)}, {A(cim+4*t,4)}, {'0' if first else V(192,16)}")
                first = False
        main = k.end()
        fill = []
        for c in range(self.pre_chunks, self.opt["P1DMA"]):
            fill += self.dma_chunk(c)
        k.weave(main, fill, start=self.opt["P1START"])
        Lj = k.lab("L_rjb")
        k.wait_vm(self.t_role)
        with k.atomic():
            k(f"s_cmp_eq_u32 s{sWAVE}, 3\ns_cbranch_scc1 {Lj}")
            k("v_cmp_gt_u32 vcc, 160, v0\nv_mov_b32 v2, 0x07060302\nv_mov_b32 v7, 0x05040100\nv_cndmask_b32 v7, v2, v7, vcc")
            k(f"v_min_u32 v8, 161, v0\nv_bfe_u32 v9, v8, 1, 3\nv_lshlrev_b32 v9, 4, v9\nv_lshl_add_u32 v8, v8, 7, v9\nv_add_u32 v8, {L_OUT}, v8")
            for q, lc in enumerate((2, 3, 6, 7)):
                for r in range(4):
                    i = 4 * (q & 1) + r
                    k(f"v_perm_b32 v{240+4*q+r}, v{225+2*i}, v{224+2*i}, v{7 if q < 2 else 2}")
                k(f"v_xor_b32 v9, {16*lc}, v8")
                k.ds(f"ds_write_b128 v9, {V(240+4*q,4)}", opt=True)
            k(f"{Lj}:")
        for p in range(6):
            r0 = 4 * (p >> 1) + 2 * (p & 1)
            k(f"v_cvt_pk_bf16_f32 v{8+(p&1)*2}, v{176+r0}, v{177+r0}\nv_cvt_pk_bf16_f32 v{9+(p&1)*2}, v{192+r0}, v{193+r0}")
            k(f"v_xor_b32 v{9+(p&1)*2}, v220, v{9+(p&1)*2}")
            k.ds(f"ds_write_b32 v{208+p}, v{8+(p&1)*2}")
            k.ds(f"ds_write_b32 v{214+p}, v{9+(p&1)*2}")
        k(f"v_lshlrev_b32 v2, 4, v0\nv_add_u32 v7, {L_OUT}, v2")
        k(f"s_mul_i32 s{T0}, s{sC}, {PFB}\ns_add_u32 s{T0}, s{T0}, {WS_PF}")
        k("v_lshrrev_b32 v8, 4, v1\nv_bfe_u32 v9, v1, 2, 2\nv_mul_u32_u24 v9, 1280, v9\nv_mul_u32_u24 v10, 80, v8")
        k(f"v_and_b32 v11, 1, v1\nv_lshl_add_u32 v10, v11, 3, v10\nv_add3_u32 v10, v10, v9, 0\nv_bfe_u32 v9, v1, 1, 1")
        k(f"s_mov_b32 s{T1}, 276480\nv_mul_lo_u32 v8, v8, s{T1}\nv_and_b32 v11, 15, v1\nv_lshl_add_u32 v8, v11, 4, v8")
        k(f"s_lshr_b32 s{T1}, s{sC}, 2\ns_mul_i32 s{T1}, s{T1}, 5120\ns_and_b32 s{T2}, s{sC}, 3\ns_lshl_b32 s{T2}, s{T2}, 8\ns_add_u32 s{T1}, s{T1}, s{T2}\ns_add_u32 s{T1}, s{T1}, {WS_W2}")
        k(f"s_cmp_ge_u32 s{sC}, 216\ns_cselect_b32 s{T1}, {WS_SIZE}, s{T1}")
        for i in range(3):
            k(f"s_add_u32 s{T2}, s{sWAVE}, {4*i}\ns_cmp_ge_u32 s{T2}, 5\ns_cselect_b32 s{T3}, 1, 0\ns_mul_i32 s{T4}, s{T3}, 5\ns_sub_u32 s{T4}, s{T2}, s{T4}")
            k(f"s_mul_i32 s{T6}, s{T3}, {4*276480}\ns_lshl_b32 s{T7}, s{T4}, 10\ns_add_u32 s{T6}, s{T6}, s{T7}\ns_add_u32 s{sHB+i}, s{T6}, s{T1}")
            if i == 2:
                k(f"s_cmp_ge_u32 s{T2}, 10\ns_cselect_b32 s{sHB+i}, {WS_SIZE}, s{sHB+i}")
            k(f"s_and_b32 s{T6}, s{T4}, 1\ns_lshl_b32 s{T6}, s{T6}, 5\ns_bfe_u32 s{T7}, s{T4}, 0x10001\ns_mul_i32 s{T7}, s{T7}, 640\ns_add_u32 s{T6}, s{T6}, s{T7}")
            k(f"s_cmp_eq_u32 s{T4}, 4\ns_cselect_b32 s{T6}, 64, s{T6}\ns_cselect_b32 s{T7}, 640, 16\ns_mul_i32 s{T3}, s{T3}, 320\ns_add_u32 s{T6}, s{T6}, s{T3}\ns_add_u32 s{T6}, s{T6}, {L_RP}")
            k(f"v_mad_u32_u24 v{12+i}, v9, s{T7}, v10\nv_add_u32 v{12+i}, s{T6}, v{12+i}")
        k.drain_lg()
        k("s_barrier")
        toks = [k.ds(f"ds_read_b128 {V(160+4*i,4)}, v7 offset:{4096*i}") for i in range(6)]
        tr = [k.ds(f"ds_read_b64_tr_b16 {V(184+4*i+2*jj,2)}, v{12+i} offset:{5120*jj}") for i in range(3) for jj in range(2)]
        for i in range(6):
            k.wait_lg(toks[i])
            with k.atomic():
                if i == 5:
                    L = k.lab("L_o6")
                    k(f"s_cmp_lg_u32 s{sWAVE}, 0\ns_cbranch_scc1 {L}\ns_mov_b64 exec, 0xff")
                k.vmem(f"buffer_store_dwordx4 {V(160+4*i,4)}, v2, s[{sWS}:{sWS+3}], s{T0} offen sc1", opt=(i == 5))
                if i == 5:
                    k(f"s_mov_b64 exec, -1\n{L}:")
                else:
                    k(f"s_add_u32 s{T0}, s{T0}, 4096")
        for i in range(3):
            k.wait_lg(tr[2 * i + 1])
            self.t_out = k.vmem(f"buffer_store_dwordx4 {V(184+4*i,4)}, v8, s[{sWS}:{sWS+3}], s{sHB+i} offen sc1")
        self.stamp("p1done")

    def cmul(self, src, c0, sgn, dst, t):
        k = self.k
        n1 = "" if sgn > 0 else " neg_lo:[1,0,0] neg_hi:[1,0,0]"
        n2 = " neg_lo:[1,0,0] neg_hi:[1,0,0]" if sgn > 0 else ""
        for p in range(8):
            re, im, c, s = V(src + 2 * p, 2), V(src + 16 + 2 * p, 2), V(c0 + 2 * p, 2), V(c0 + 16 + 2 * p, 2)
            q = t + 4 * (p & 1)
            k(f"v_pk_mul_f32 {V(q,2)}, {re}, {c}")
            k(f"v_pk_mul_f32 {V(q+2,2)}, {im}, {c}")
            k(f"v_pk_fma_f32 {V(q,2)}, {im}, {s}, {V(q,2)}{n1}")
            k(f"v_pk_fma_f32 {V(q+2,2)}, {re}, {s}, {V(q+2,2)}{n2}")
            k(f"v_cvt_pk_bf16_f32 v{dst+p}, v{q}, v{q+1}")
            k(f"v_cvt_pk_bf16_f32 v{dst+8+p}, v{q+2}, v{q+3}")

    TW1, TW2, F64, F32 = 160, 192, 184, 232

    def sfft_setup(self):
        k = self.k
        TW1, TW2 = self.TW1, self.TW2
        k.begin()
        k(f"v_lshrrev_b32 v2, 3, v1\nv_and_b32 v5, 3, v2\nv_lshrrev_b32 v7, 2, v2\nv_lshl_add_u32 v5, v7, 3, v5")
        k(f"s_mov_b32 s{T3}, {8*PFB}\nv_mul_lo_u32 v5, v5, s{T3}")
        k(f"s_bfe_u32 s{T3}, s{sJOB}, 0x30001\nv_lshrrev_b32 v7, 1, v2\nv_and_b32 v2, 7, v1\nv_xor_b32 v7, v7, v2\nv_xor_b32 v7, s{T3}, v7")
        k(f"s_lshl_b32 s{T3}, s{sJOB}, 7\ns_mul_i32 s{T4}, s{sWAVE}, {2*PFB}\ns_add_u32 s{T3}, s{T3}, s{T4}\ns_add_u32 s{T3}, s{T3}, {WS_PF}")
        k(f"v_add_u32 v5, s{T3}, v5\nv_lshl_add_u32 v224, v7, 4, v5\nv_xor_b32 v7, 4, v7\nv_lshl_add_u32 v225, v7, 4, v5")
        self.pi_v(2, 4, 5)
        k(f"s_and_b32 s{T0}, s{sWAVE}, 1\ns_lshl_b32 s{T0}, s{T0}, 5")
        k(f"v_add_u32 v5, s{T0}, v2\nv_cvt_f32_u32 v5, v5\nv_mul_f32 v5, {fl(1/2048)}, v5")
        k(f"v_cvt_f32_u32 v2, v2\nv_mul_f32 v2, {fl(1/2048)}, v2")
        k(f"v_lshlrev_b32 v7, 3, v3\nv_cvt_f32_u32 v232, v7\nv_mul_f32 v232, v232, v5")
        k(f"v_add_u32 v7, s{T0}, v7\nv_cvt_f32_u32 v233, v7\nv_mul_f32 v233, v233, v2")
        k(f"s_lshr_b32 s{T1}, s{sWAVE}, 1\ns_lshl_b32 s{T1}, s{T1}, 8\ns_or_b32 s{T1}, s{T1}, s{sJOB}\ns_cmp_eq_u32 s{T1}, 0\ns_cselect_b32 s{T2}, 0.5, 1.0\ns_cmp_eq_u32 s{T1}, 160\ns_cselect_b32 s{T2}, 0.5, s{T2}")
        for i in range(16):
            g, r = i >> 2, i & 3
            d = 16 * (g >> 1) + 4 * (g & 1) + r
            k(f"v_fmamk_f32 v7, v5, {fl(float(d))}, v232")
            k(f"v_fmamk_f32 v234, v2, {fl(float(d))}, v233")
            k(f"v_cos_f32 v{TW1+i}, v7")
            k(f"v_sin_f32 v{TW1+16+i}, v7")
            k(f"v_cos_f32 v{TW2+i}, v234")
            k(f"v_sin_f32 v{TW2+16+i}, v234")
        for i in range(32):
            k(f"v_mul_f32 v{TW2+i}, s{T2}, v{TW2+i}")
        k(f"s_lshr_b32 s{T3}, s{sWAVE}, 1\ns_lshl_b32 s{T3}, s{T3}, 2\ns_and_b32 s{T4}, s{sWAVE}, 1")
        k(f"v_bfe_u32 v2, v1, 1, 3\nv_xor_b32 v2, s{T3}, v2\nv_lshlrev_b32 v5, 7, v4\nv_add_u32 v5, {L_INB}, v5")
        k(f"v_lshl_add_u32 v7, v2, 4, v5\nv_lshl_add_u32 v7, v3, 12, v7")
        k(f"s_lshl_b32 s{T3}, s{T4}, 14\nv_add_u32 v226, s{T3}, v7\nv_xor_b32 v227, 16, v226")
        k(f"s_xor_b32 s{T3}, s{T3}, 16384\nv_add_u32 v228, s{T3}, v7\nv_xor_b32 v229, 16, v228")
        k(f"v_xor_b32 v2, 2, v2\nv_xor_b32 v2, v3, v2\nv_lshl_add_u32 v230, v2, 4, v5\ns_lshl_b32 s{T3}, s{T4}, 12\nv_add_u32 v230, s{T3}, v230")
        return k.end()

    def sfft_consts(self):
        k = self.k
        k.begin()
        for i in range(18):
            with k.atomic():
                if i == 0:
                    k(f"s_and_b32 s{F6}, s{sWAVE}, 1\ns_mul_i32 s{F6}, s{F6}, 12288\ns_add_u32 s{F6}, s{F6}, {TAB_F64}")
                elif i in (4, 8, 16):
                    k(f"s_add_u32 s{F6}, s{F6}, 4096")
                elif i == 12:
                    k(f"s_movk_i32 s{F6}, {TAB_F32}")
                self.t_sc = k.vmem(f"buffer_load_dwordx4 {A(self.F64+4*i,4)}, v6, s[{sTAB}:{sTAB+3}], s{F6} offen offset:{(i%4)*1024}")
        return k.end()

    def gen_g(self):
        k = self.k
        k.begin()
        D, P, R2, R26, B = 112, 116, 122, 128, 136
        k(f"s_mul_i32 s{T0}, s{sJ}, 40\nv_and_b32 v158, 15, v1\nv_add_u32 v159, s{T0}, v158\nv_cvt_f32_u32 v{D}, v159\nv_add_f32 v{D+1}, 0x41800000, v{D}")
        k(f"v_and_b32 v159, 7, v158\nv_lshrrev_b32 v158, 3, v158\nv_mul_u32_u24 v158, 320, v158\nv_add3_u32 v159, v159, v158, s{T0}\nv_add_u32 v159, 32, v159\nv_cvt_f32_u32 v{D+2}, v159")
        k(f"s_and_b32 s{T0}, s{sWAVE}, 1\ns_mul_i32 s{T0}, s{T0}, 160\ns_lshr_b32 s{T1}, s{sWAVE}, 1\ns_add_u32 s{T0}, s{T0}, s{T1}")
        k(f"v_lshrrev_b32 v158, 4, v1\nv_lshl_add_u32 v158, v158, 3, s{T0}\nv_cvt_f32_u32 v{D+3}, v158")
        k(f"s_mul_i32 s{T0}, s{sWAVE}, 15360\ns_add_u32 s{T0}, s{T0}, {L_G}\nv_add_u32 v134, s{T0}, v6")
        for blk in range(3):
            k(f"v_mul_f32 v158, 0.5, v{D+blk}\nv_fract_f32 v158, v158\nv_mul_f32 v{D+blk}, {fl(1/640)}, v{D+blk}")
            k(f"v_cos_f32 v158, v158\nv_mul_f32 v159, v{D+3}, v{D+blk}\nv_cvt_pk_bf16_f32 v{160+blk}, 1.0, v158")
            k(f"v_fract_f32 v159, v159\nv_add_f32 v158, v{D+blk}, v{D+blk}\nv_mul_f32 v135, {fl(26.0)}, v{D+blk}")
            k(f"v_cos_f32 v{P+2*blk}, v159")
            k(f"v_sin_f32 v{P+2*blk+1}, -v159")
            k(f"v_cos_f32 v{R2+2*blk}, v158")
            k(f"v_sin_f32 v{R2+2*blk+1}, -v158")
            k(f"v_cos_f32 v{R26+2*blk}, v135")
            k(f"v_sin_f32 v{R26+2*blk+1}, -v135")
        for ks in range(5):
            for jd in range(4):
                for blk in range(3):
                    b = (B if ks & 1 == 0 else 172) + 4 * blk
                    p = V(P + 2 * blk, 2)
                    k(f"v_cvt_pk_bf16_f32 v{b+jd}, v{P+2*blk}, v{P+2*blk+1}")
                    if not (ks == 4 and jd == 3):
                        r = V((R2 if jd < 3 else R26) + 2 * blk, 2)
                        t = V(164 + 2 * blk, 2)
                        k(f"v_pk_mul_f32 {t}, {p}, {r} op_sel_hi:[1,0]")
                        k(f"v_pk_fma_f32 {p}, {p}, {r}, {t} op_sel:[1,1,0] op_sel_hi:[0,1,1] neg_lo:[1,0,0]")
                    if jd == 3:
                        if ks == 0:
                            k(f"v_cmp_eq_f32 vcc, 0, v{D+3}\ns_nop 1\nv_cndmask_b32 v{b}, v{b}, v{160+blk}, vcc")
                        k.ds(f"ds_write_b128 v134, {V(b,4)} offset:{1024*(3*ks+blk)}")
        return k.end()

    def w2reg(self, i, b):
        q = 5 * i + b
        return A(4 * q, 4) if q < 64 else V(232 + 4 * (q - 64), 4)

    def w2_loads(self, steps):
        k = self.k
        k.begin()
        for i in steps:
            for b in range(5):
                with k.atomic():
                    if b == 0:
                        k(f"s_add_u32 s{F5}, s{sR2}, {i}\ns_cmp_ge_u32 s{F5}, 14\ns_cselect_b32 s{F2}, 14, 0\ns_sub_u32 s{F5}, s{F5}, s{F2}")
                        k(f"s_cmp_ge_u32 s{F5}, s{sNS}\ns_mul_i32 s{F5}, s{F5}, {4*5120}\ns_cselect_b32 s{F5}, {WS_SIZE}, s{F5}\ns_add_u32 s{F5}, s{F5}, s{sW2B}")
                    if b == 4:
                        k(f"s_add_u32 s{F5}, s{F5}, 4096")
                    k.vmem(f"buffer_load_dwordx4 {self.w2reg(i,b)}, v6, s[{sWS}:{sWS+3}], s{F5} offen offset:{(b&3)*1024} sc1")
        return k.end()

    def gemm1(self, nb, job):
        k = self.k
        o = self.opt
        F1R = [(8, 12), (9, 13), (10, 14), (11, 15)]

        def cap(f):
            k.begin()
            f()
            return k.end()
        tok = {}

        def reads(c, t, bs):
            slot = c % 5
            st, off0 = slot // 2, (slot % 2) * SLOT
            out = []
            for bi in range(nb):
                k.begin()
                if bi == 0:
                    k.ds(f"ds_read_b128 {V(112+4*bs,4)}, v{128+8*st+t} offset:{off0}")
                for jj in range(2):
                    tok[c, t, bi] = k.ds(f"ds_read_b64_tr_b16 {V(80+16*bs+4*bi+2*jj,2)}, v{132+8*st+bi} offset:{off0 + t*2048 + jj*512}")
                out.append(k.end())
            return out

        vq = []
        for c in range(o["P1DMA"], 10):
            vq += [(max(0, c - 3) if c >= 5 else 0, u) for u in self.dma_chunk(c)]

        def f1i():
            with k.atomic():
                k(f"v_mul_u32_u24 v8, {FS}, v1\nv_add_u32 v8, {WS_F1}, v8")
                for i in range(1, 4):
                    k(f"v_add_u32 v{8+i}, {64*FS*i}, v8")
                self.t_f1 = self.poll_issue(F1R)

        def fs():
            with k.atomic():
                k(f"s_lshl_b32 s{F0}, s{sRB}, 7\ns_lshl_b32 s{F5}, s{sWAVE}, 5\ns_add_u32 s{F0}, s{F0}, s{F5}\ns_lshl_b32 s{F0}, s{F0}, 3")
                k(f"s_add_u32 s{F0}, s{F0}, {WS_ST}\nv_lshlrev_b32 v231, 3, v4\nv_add_u32 v231, s{F0}, v231")
                self.t_st = k.vmem(f"buffer_load_dwordx2 v[158:159], v231, s[{sWS}:{sWS+3}], 0 offen sc1")
        pos = len(vq) - 8 * o.get("F1BACK", 1)
        vq[pos:pos] = [(vq[pos][0], u) for u in cap(f1i) + cap(fs)]
        late = []
        if job:
            late += cap(self.inbox_dma)
            vq += [(0, u) for u in self.sfft_consts()]
        npre = o.get("W2PREJ", 2) if job else o.get("W2PRE", 5)
        late += self.w2_loads(range(npre))

        def epi_addr():
            k(f"s_lshl_b32 s{T0}, s{sWAVE}, 7\ns_add_u32 s{T0}, s{T0}, {L_CS}")
            k(f"v_lshrrev_b32 v2, 4, v1\nv_lshlrev_b32 v2, 4, v2\nv_and_b32 v5, 1, v1\nv_lshl_or_b32 v2, v5, 6, v2\nv_add_u32 v2, s{T0}, v2")
            k(f"s_lshl_b32 s{T0}, s{sRB}, 3\ns_lshl_b32 s{T1}, s{sWAVE}, 1\ns_add_u32 s{T0}, s{T0}, s{T1}\ns_mul_i32 s{T0}, s{T0}, 55296")
            k(f"s_lshl_b32 s{T1}, s{sU0}, 10\ns_add_u32 s{T0}, s{T0}, s{T1}\ns_add_u32 s{T0}, s{T0}, {WS_H}")
            k("v_bfe_u32 v7, v1, 4, 1\nv_mul_u32_u24 v7, 55296, v7\nv_and_b32 v5, 15, v1\nv_lshl_add_u32 v7, v5, 4, v7\nv_lshl_add_u32 v7, v3, 8, v7")
            k(f"v_lshlrev_b32 v5, 4, v3\nv_add_u32 v5, {L_CS}, v5")
            for bi in range(nb):
                k(f"s_lshl_b32 s{T2}, s{sBID+bi}, 10\ns_add_u32 s{sHB+bi}, s{T2}, s{T0}\ns_lshl_b32 s{sBID+bi}, s{sBID+bi}, 7")
        chore = (self.sfft_setup() if job else []) + cap(epi_addr)
        nchore = len(chore)

        k.wait_vm(self.t_chunk[0])
        k("s_barrier")
        for g in reads(0, 0, 0):
            k.put(g)
        step = 0
        done_f1 = False
        for c in range(10):
            for t in range(4):
                bs = step & 1
                rd = [[] for _ in range(nb)]
                extra = []
                it = c
                if t < 3:
                    rd = reads(c, t + 1, bs ^ 1)
                elif c < 9:
                    it = c + 1
                    k.wait_vm(self.t_chunk[c + 1])
                    if c + 1 == o["FLAG_AT"]:
                        k.wait_vm(self.t_out)
                    k("s_barrier")
                    self.stamp(f"B{c+1}") if c + 1 in (1, 7) else None
                    rd = reads(c + 1, 0, bs ^ 1)
                    if c + 1 == o["FLAG_AT"]:
                        extra += cap(lambda: self.flag_store(f"s_mul_i32 s{F0}, s{sC}, {FS}\ns_add_u32 s{F0}, s{F0}, {WS_F1}", F0, 8))
                    if c + 1 == o.get("F1CHK", 7):
                        extra += cap(lambda: self.poll_check(F1R, self.t_f1))
                        done_f1 = True
                nv = o["NV0"] if c < 2 else o["NV"] if not done_f1 else o.get("NVL", 2)
                vm = []
                if done_f1 and not extra and job:
                    while len(vm) < nv and len(late) > 5 * npre:
                        vm.append(late.pop(0))
                while len(vm) < nv and vq and vq[0][0] <= it:
                    vm.append(vq.pop(0)[1])
                if done_f1 and not extra:
                    while len(vm) < nv and late:
                        vm.append(late.pop(0))
                want = nchore * (step + 1) // 39
                ch = []
                while chore and nchore - len(chore) < want:
                    ch.append(chore.pop(0))
                gaps = [list(x) for x in rd]
                gaps[0].append([("i", f"v_mfma_f32_16x16x32_bf16 v[120:123], {V(80+16*bs,4)}, v[124:127], {'0' if step == 0 else 'v[120:123]'}")])
                used = set()
                for i, u in enumerate(vm):
                    gi = nb - 1 - (len(vm) - 1 - i) * nb // max(len(vm), 2) if len(vm) <= nb else i * nb // len(vm)
                    if gi not in used and len(u) > 1 and u[-1][0] == "vm" and all(x[0] == "i" and x[1].startswith("s_") for x in u[:-1]):
                        gaps[gi] = [u[:-1]] + gaps[gi] + [u[-1:]]
                    else:
                        gaps[gi].append(u)
                    used.add(gi)
                gaps[nb - 1] = extra + gaps[nb - 1]
                last = 0
                for u in ch:
                    gi = min(range(last, nb), key=lambda g: sum(k.ucost(x) for x in gaps[g]) - (24 if g == 0 else 0))
                    last = gi
                    gaps[gi].append(u)
                for bi in range(nb):
                    D = V(16 + 16 * bi, 16)
                    k.wait_lg(tok[c, t, bi])
                    k(f"v_mfma_f32_32x32x16_bf16 {D}, {V(80+16*bs+4*bi,4)}, {V(112+4*bs,4)}, {'0' if step == 0 else D}")
                    k.put(gaps[bi])
                step += 1
        assert not chore and done_f1
        rest = [u for _, u in vq] + late
        self.stamp("g1mm")
        with k.atomic():
            k("s_mov_b32 exec_lo, 0x00030003\ns_mov_b32 exec_hi, 0x00030003")
            k.ds("ds_write_b128 v2, v[120:123]")
            k("s_mov_b64 exec, -1")
        for bi in range(nb):
            k(f"v_add_u32 v{9+bi}, s{sBID+bi}, v5")
        L, Ld = k.lab("L_st"), k.lab("L_std")
        with k.atomic():
            k.wait_vm(self.t_st)
            k(f"s_mov_b32 s{sPOLL}, 0")
            k(f"{L}:")
            k(f"v_cmp_ne_u32 vcc, s{sTAG}, v159")
            k(f"s_add_u32 s{sPOLL}, s{sPOLL}, 1")
            k(f"s_cmp_eq_u64 vcc, 0\ns_cbranch_scc1 {Ld}")
            k(f"buffer_load_dwordx2 v[158:159], v231, s[{sWS}:{sWS+3}], 0 offen sc1")
            k("s_waitcnt vmcnt(0)")
            k(f"s_cmp_lt_u32 s{sPOLL}, {SPIN_MAX}\ns_cbranch_scc1 {L}")
            k(f"{Ld}:")
        k("v_lshlrev_b32 v158, 16, v158")
        k.drain_lg()
        k("s_barrier")
        toks = {}

        def csr(bi):
            toks[bi] = [k.ds(f"ds_read_b128 {V(112+16*(bi&1)+4*g,4)}, v{9+bi} offset:{32*g}") for g in range(4)]
        csr(0)
        csr(1)
        for bi in range(nb):
            cb = 112 + 16 * (bi & 1)
            pk = 80 + 8 * bi
            for gg in range(2):
                k.wait_lg(toks[bi][2 * gg + 1])
                for r in range(0, 8, 2):
                    i = 8 * gg + r
                    k(f"v_pk_fma_f32 {V(16+16*bi+i,2)}, v[158:159], {V(cb+i,2)}, {V(16+16*bi+i,2)} op_sel_hi:[0,1,1] neg_lo:[1,0,0] neg_hi:[1,0,0]")
                for r in range(0, 8, 2):
                    i = 8 * gg + r
                    k(f"v_cvt_pk_bf16_f32 v{pk+i//2}, v{16+16*bi+i}, v{17+16*bi+i}")
                for r in range(0, 8, 2):
                    i = 8 * gg + r
                    k(f"v_pk_max_i16 v{pk+i//2}, v{pk+i//2}, 0")
                self.t_h = k.vmem(f"buffer_store_dwordx4 {V(pk+4*gg,4)}, v7, s[{sWS}:{sWS+3}], s{sHB+bi} offen offset:{512*gg} sc1")
            if bi + 2 < nb:
                csr(bi + 2)
        self.stamp("g1done")
        return npre, rest

    def fh_store(self):
        pre = f"s_lshl_b32 s{T0}, s{sRB}, 4\ns_and_b32 s{T1}, s{sXCD}, 1\ns_lshl_b32 s{T1}, s{T1}, 3\ns_add_u32 s{T0}, s{T0}, s{T1}\ns_and_b32 s{T1}, s{sIDX}, 7\ns_add_u32 s{T0}, s{T0}, s{T1}\n"
        pre += f"s_mul_i32 s{T0}, s{T0}, {FS}\ns_add_u32 s{T0}, s{T0}, {WS_FH}"
        self.flag_store(pre, T0, 8)
        self.stamp("fh")

    def middle_nojob(self, npre, rest):
        k = self.k
        o = self.opt
        rest = rest + self.w2_loads(range(npre, 14))
        left = k.weave(self.gen_g(), rest, interval=o.get("W2I", 80), tail=False)
        n1 = o.get("WFH", 4)
        k.put(left[:n1])
        k.wait_vm(self.t_h)
        k.drain_lg()
        k("s_barrier")
        self.fh_store()
        k.put(left[n1:])

    def middle_job(self, npre, rest):
        k = self.k
        o = self.opt
        k.put(rest)
        pre = self.w2_loads(range(npre, 9))
        left = self.sfft_body(pre)
        post = left + self.w2_loads(range(9, 14))
        left = k.weave(self.gen_g(), post, interval=o.get("W2I", 80), tail=False)
        n1 = o.get("WFZ", 4)
        k.put(left[:n1])
        k.wait_vm(self.t_z)
        k.drain_lg()
        k("s_barrier")
        self.flag_store(f"s_mul_i32 s{T0}, s{sJOB}, {FS}\ns_add_u32 s{T0}, s{T0}, {WS_FZ}", T0, 8)
        self.stamp("fz")
        k.put(left[n1:])

    def inbox_dma(self):
        k = self.k
        for n in range(8):
            a = n & 3
            with k.atomic():
                if n == 0:
                    k(f"s_lshl_b32 s{F7}, s{sWAVE}, 13")
                k(f"s_add_u32 m0, s{F7}, {L_INB + n*1024}")
                k(f"s_mov_b32 s{F0}, {(8*(16*(a>>1)+4*(a&1)) + (n>>2))*PFB}")
                self.t_in = k.vmem(f"buffer_load_dwordx4 v{224+(a&1)}, s[{sWS}:{sWS+3}], s{F0} offen sc1 lds")

    def sfft_body(self, fill):
        k = self.k
        o = self.opt
        DAT, ACT, ACX, TM = 16, 48, 80, 112
        TW1, TW2, F64, F32 = self.TW1, self.TW2, self.F64, self.F32
        k.wait_vm(self.t_in)
        k.wait_vm(self.t_sc)
        k("s_barrier")
        self.stamp("inbox")
        k.begin()
        toks = []
        for tau in range(4):
            for part in range(2):
                toks.append(k.ds(f"ds_read_b128 {V(DAT+16*part+4*tau,4)}, v{226+2*(tau>>1)+part} offset:{(tau&1)*8192}"))
        Fr, Fi, NFi = F64, F64 + 16, F64 + 32
        R, Im = V(ACT, 16), V(ACT + 16, 16)
        for tau in range(4):
            k.wait_lg(toks[2 * tau], est=(60 if tau == 0 else 0))
            k(f"v_mfma_f32_32x32x16_bf16 {R}, {V(DAT+4*tau,4)}, {A(Fr+4*tau,4)}, {'0' if tau == 0 else R}")
            k(f"v_mfma_f32_32x32x16_bf16 {Im}, {V(DAT+4*tau,4)}, {A(Fi+4*tau,4)}, {'0' if tau == 0 else Im}")
            k.wait_lg(toks[2 * tau + 1])
            k(f"v_mfma_f32_32x32x16_bf16 {R}, {V(DAT+16+4*tau,4)}, {A(NFi+4*tau,4)}, {R}")
            k(f"v_mfma_f32_32x32x16_bf16 {Im}, {V(DAT+16+4*tau,4)}, {A(Fr+4*tau,4)}, {Im}")
        tw = [k.ds(f"ds_read_b128 {V(DAT+16+4*g,4)}, v230 offset:{g*8192}") for g in range(4)]
        k(f"s_lshl_b32 s{T3}, s{sWAVE}, 12\ns_add_u32 s{T3}, s{T3}, {L_EXC}\nv_add_u32 v120, s{T3}, v6\nv_xor_b32 v121, 4096, v120")
        self.cmul(ACT, TW1, +1, DAT, TM)
        fr, fi, nfi = F32, F32 + 8, F32 + 16
        XR, XI = V(ACX, 16), V(ACX + 16, 16)
        fst = True
        k.wait_lg(tw[-1])
        un = [f"v_lshlrev_b32 v{ACT+i}, 16, v{DAT+16+i}\nv_and_b32 v{ACT+16+i}, 0xffff0000, v{DAT+16+i}" for i in range(16)]
        for t in range(2):
            for (dat, cre, cim) in ((DAT, fr, fi), (DAT + 8, nfi, fr)):
                k(f"v_mfma_f32_32x32x16_bf16 {XR}, {A(cre+4*t,4)}, {V(dat+4*t,4)}, {'0' if fst else XR}")
                k(un.pop(0)), k(un.pop(0))
                k(f"v_mfma_f32_32x32x16_bf16 {XI}, {A(cim+4*t,4)}, {V(dat+4*t,4)}, {'0' if fst else XI}")
                k(un.pop(0)), k(un.pop(0))
                fst = False
        self.cmul(ACX, ACT, -1, DAT, TM)
        k.begin()
        self.pi_v(122, 4, 123)
        k(f"s_and_b32 s{T3}, s{sJOB}, 1\ns_bfe_u32 s{T4}, s{sJOB}, 0x10002\ns_lshl_b32 s{T4}, s{T4}, 1\ns_or_b32 s{T3}, s{T3}, s{T4}")
        k(f"s_and_b32 s{T4}, s{sWAVE}, 1\ns_lshl_b32 s{T4}, s{T4}, 1\ns_xor_b32 s{T3}, s{T3}, s{T4}\ns_lshl_b32 s{T3}, s{T3}, 5")
        k(f"s_lshr_b32 s{T4}, s{sWAVE}, 1\ns_mul_i32 s{T4}, s{T4}, {ZSTU}\ns_add_u32 s{T4}, s{T4}, {L_ZST}")
        k(f"v_mul_u32_u24 v122, 272, v122\nv_lshl_add_u32 v122, v3, 4, v122\nv_add_u32 v122, s{T4}, v122")
        k(f"s_xor_b32 s{T6}, s{T3}, 32\nv_add_u32 v123, s{T6}, v122\nv_add_u32 v122, s{T3}, v122")
        k(f"s_and_b32 s{T3}, s{sWAVE}, 1\ns_mul_i32 s{T6}, s{T3}, {16*272}\ns_add_u32 s{T4}, s{T4}, s{T6}")
        k(f"v_lshrrev_b32 v124, 4, v1\nv_mul_u32_u24 v124, 272, v124\nv_and_b32 v125, 15, v1\nv_lshl_add_u32 v124, v125, 4, v124\nv_add_u32 v124, s{T4}, v124")
        k(f"s_lshr_b32 s{T4}, s{sWAVE}, 1\ns_mul_i32 s{T4}, s{T4}, 160\ns_add_u32 s{T4}, s{T4}, s{sJOB}\ns_lshl_b32 s{T4}, s{T4}, 13")
        k(f"s_cmp_eq_u32 s{sJOB}, 160\ns_cselect_b32 s{T4}, 128, s{T4}\ns_lshl_b32 s{T3}, s{T3}, 12\ns_add_u32 s{T4}, s{T4}, s{T3}\ns_add_u32 s{T4}, s{T4}, {WS_Z}")
        k(f"s_mul_i32 s{T1}, s{sJOB}, 2\ns_lshr_b32 s{T2}, s{sWAVE}, 1\ns_add_u32 s{T1}, s{T1}, s{T2}")
        k(f"s_cmp_eq_u32 s{T1}, 0\ns_cselect_b32 s{sEX}, 0x00ff00ff, -1\ns_cmp_eq_u32 s{T1}, 320\ns_cselect_b32 s{sEX}, 0x00ff00ff, s{sEX}\ns_mov_b32 s{sEX+1}, s{sEX}")
        k(f"s_cmp_eq_u32 s{T1}, 321\ns_cselect_b32 s{T4}, {WS_SIZE}, s{T4}")
        ad = k.end()
        fst = True
        for t in range(2):
            for (dat, cre, cim) in ((DAT, fr, nfi), (DAT + 8, fi, fr)):
                k(f"v_mfma_f32_32x32x16_bf16 {R}, {V(dat+4*t,4)}, {A(cre+4*t,4)}, {'0' if fst else R}")
                k.put(ad[:2]); ad = ad[2:]
                k(f"v_mfma_f32_32x32x16_bf16 {Im}, {V(dat+4*t,4)}, {A(cim+4*t,4)}, {'0' if fst else Im}")
                k.put(ad[:1]); ad = ad[1:]
                fst = False
        k.put(ad)
        self.cmul(ACT, TW2, -1, DAT, TM)
        for q in range(4):
            k.ds(f"ds_write_b128 v120, {V(DAT+4*q,4)} offset:{1024*q}")
        n = 0
        for t in range(2):
            for (dat, cre, cim) in ((DAT, Fr, NFi), (DAT + 8, Fi, Fr)):
                k(f"v_mfma_f32_32x32x16_bf16 {XR}, {A(cre+4*t,4)}, {V(dat+4*t,4)}, {'0' if n == 0 else XR}")
                k(f"v_mfma_f32_32x32x16_bf16 {XI}, {A(cim+4*t,4)}, {V(dat+4*t,4)}, {'0' if n == 0 else XI}")
                if n == 1:
                    with k.atomic():
                        k.drain_lg()
                        k.wait_vm(self.t_h)
                        k("s_barrier")
                    for q in range(4):
                        k.ds(f"ds_read_b128 {V(DAT+16+4*q,4)}, v121 offset:{1024*q}")
                    if not o.get("FHE"):
                        self.fh_store()
                n += 1
        k.drain_lg()
        for t in range(2):
            for (dat, cre, cim) in ((DAT + 16, Fr, NFi), (DAT + 24, Fi, Fr)):
                k(f"v_mfma_f32_32x32x16_bf16 {XR}, {A(cre+8+4*t,4)}, {V(dat+4*t,4)}, {XR}")
                k(f"v_mfma_f32_32x32x16_bf16 {XI}, {A(cim+8+4*t,4)}, {V(dat+4*t,4)}, {XI}")
        main = k.end()
        left = k.weave(main, fill, start=o.get("SFS", 100), interval=o.get("SFI", 110), tail=False)
        for part in range(2):
            for gg in range(2):
                for j in range(4):
                    r = ACX + 16 * part + 8 * gg + 2 * j
                    k(f"v_cvt_pk_bf16_f32 v{DAT+8*part+4*gg+j}, v{r}, v{r+1}")
                k.ds(f"ds_write_b128 v{122+gg}, {V(DAT+8*part+4*gg,4)} offset:{128*part}")
        k.drain_lg()
        k("s_barrier")
        toks = [k.ds(f"ds_read_b128 {V(DAT+16+4*n,4)}, v124 offset:{4*272*n}") for n in range(4)]
        for n in range(4):
            k.wait_lg(toks[n])
            with k.atomic():
                k(f"s_mov_b64 exec, s[{sEX}:{sEX+1}]")
                self.t_z = k.vmem(f"buffer_store_dwordx4 {V(DAT+16+4*n,4)}, v6, s[{sWS}:{sWS+3}], s{T4} offen offset:{1024*n} sc1")
                k("s_mov_b64 exec, -1")
        self.stamp("zst")
        return left

    def tail(self):
        k = self.k
        o = self.opt
        ACC, HB, XR_, EO, ZB = 16, 96, 196, 160, 180
        HD = o['HD']
        NBUF = HD + 1
        k(f"s_lshr_b32 s{T0}, s{sRB2}, 1\ns_lshl_b32 s{T0}, s{T0}, 4\nv_and_b32 v7, 15, v1\nv_add_u32 v7, s{T0}, v7\nv_mul_u32_u24 v7, {FS}, v7\nv_add_u32 v7, {WS_FH}, v7")
        tfh = self.poll_issue([(7, 14)])
        k(f"s_lshl_b32 s{T0}, s{sWAVE}, 9\ns_add_u32 s{T0}, s{T0}, s{sRB2}\ns_mul_i32 s{T0}, s{T0}, 1280\ns_mul_i32 s{T1}, s{sJ}, 80\ns_add_u32 s{T0}, s{T0}, s{T1}")
        k(f"v_and_b32 v10, 15, v1\nv_mul_u32_u24 v11, 40960, v10\nv_add_u32 v11, s{T0}, v11\nv_lshrrev_b32 v12, 4, v1\nv_lshl_add_u32 v8, v12, 3, v11")
        k(f"v_and_b32 v13, 1, v12\nv_lshl_add_u32 v9, v13, 3, v11\nv_lshrrev_b32 v13, 1, v12\nv_mul_u32_u24 v13, 640, v13\nv_add3_u32 v9, v9, v13, 64")
        offs = (0, 32, 640, 672, 0)
        k(f"v_lshlrev_b32 v5, 3, v10")
        for nb in range(4):
            k(f"s_add_u32 s{T0}, s{sWAVE}, {nb}\ns_and_b32 s{T0}, s{T0}, 3\ns_lshl_b32 s{T5}, s{sRB2}, 2\ns_add_u32 s{T0}, s{T0}, s{T5}")
            k(f"s_mul_i32 s{T0}, s{T0}, 55296\ns_lshl_b32 s{T5}, s{sWAVE}, 10\ns_add_u32 s{T0}, s{T0}, s{T5}\ns_add_u32 s{T0}, s{T0}, {WS_H}")
            k(f"v_add_u32 v{10+nb}, s{T0}, v6")
        k(f"v_mul_u32_u24 v208, {FS}, v1\nv_add_u32 v208, {WS_FZ}, v208\nv_add_u32 v209, {64*FS}, v208\nv_add_u32 v210, 128, v1\nv_min_u32 v210, 160, v210\nv_mul_u32_u24 v210, {FS}, v210\nv_add_u32 v210, {WS_FZ}, v210")
        k(f"s_lshl_b32 s{T0}, s{sRB2}, 8\ns_lshl_b32 s{T1}, s{sWAVE}, 15\ns_add_u32 s{T0}, s{T0}, s{T1}\ns_add_u32 s{T0}, s{T0}, {WS_Z}")
        k(f"v_lshrrev_b32 v211, 4, v1\nv_lshlrev_b32 v211, 13, v211\nv_and_b32 v2, 15, v1\nv_lshl_add_u32 v211, v2, 4, v211\nv_add_u32 v211, s{T0}, v211")
        k(f"v_lshrrev_b32 v2, 4, v1\nv_bfe_u32 v212, v1, 2, 2\nv_lshlrev_b32 v213, 10, v2\nv_lshl_add_u32 v213, v212, 7, v213")
        k(f"v_lshrrev_b32 v212, 1, v212\nv_and_b32 v2, 1, v2\nv_lshl_or_b32 v212, v2, 1, v212\nv_xor_b32 v212, s{sWAVE}, v212\nv_lshl_add_u32 v213, v212, 5, v213")
        k(f"v_and_b32 v2, 3, v1\nv_lshl_add_u32 v213, v2, 3, v213\nv_add_u32 v212, {L_Z}, v213\nv_add_u32 v213, {L_Z + 40960}, v213")
        k(f"v_add_u32 v214, {L_G}, v6")
        k(f"s_lshl_b32 s{F3}, s{sWAVE}, 10")
        self.poll_check([(7, 14)], tfh)
        self.stamp("fhok")
        th = {}

        def cap(f):
            k.begin()
            f()
            return k.end()

        def hload(i):
            k.begin()
            for nb in range(4):
                with k.atomic():
                    if nb == 0:
                        k(f"s_add_u32 s{F0}, s{sR2}, {i}\ns_cmp_ge_u32 s{F0}, 14\ns_cselect_b32 s{F2}, 14, 0\ns_sub_u32 s{F0}, s{F0}, s{F2}")
                        k(f"s_cmp_ge_u32 s{F0}, s{sNS}\ns_cselect_b32 s{F0}, 0, s{F0}\ns_lshl_b32 s{F0}, s{F0}, 12")
                    th[i] = k.vmem(f"buffer_load_dwordx4 {V(HB+16*(i%NBUF)+4*nb,4)}, v{10+nb}, s[{sWS}:{sWS+3}], s{F0} offen sc1")
            return k.end()
        for i in range(HD):
            k.put(hload(i))
        FZR = [(208, 215), (209, 216), (210, 217)]
        tz = []

        def zd():
            for ks in range(20):
                with k.atomic():
                    k(f"s_add_u32 m0, s{F3}, {L_Z + ks*4096}\ns_mov_b32 s{F1_}, {ks*16*8192}")
                    tz.append(k.vmem(f"buffer_load_dwordx4 v211, s[{sWS}:{sWS+3}], s{F1_} offen sc1 lds"))
        zq = cap(zd)

        def xres():
            with k.atomic():
                k(f"s_lshl_b32 s{T0}, s{sRB2}, 6\ns_lshl_b32 s{T1}, s{sWAVE}, 4\ns_add_u32 s{T0}, s{T0}, s{T1}\ns_lshl_b32 s{T0}, s{T0}, 3\ns_add_u32 s{T0}, s{T0}, {WS_ST}")
                k.vmem(f"buffer_load_dword v206, v5, s[{sWS}:{sWS+3}], s{T0} offen sc1")
            for b in range(5):
                self.t_xr = k.vmem(f"buffer_load_dwordx2 {V(XR_+2*b,2)}, v{9 if b == 4 else 8}, s[{sX}:{sX+3}], 0 offen offset:{offs[b]}")
        xq = cap(xres)
        FZ = o["FZAT"]
        for i in range(14):
            fill = []
            if i + HD < 14:
                fill += hload(i + HD)
            if 1 <= i <= 6:
                fill.append(xq.pop(0))
            if i == FZ:
                fill += cap(lambda: setattr(self, "t_fz", self.poll_issue(FZR)))
            if i == FZ + 2:
                fill = cap(lambda: self.poll_check(FZR, self.t_fz)) + fill
            if i >= FZ + 2:
                nz = o.get('NZ', 5)
                fill += zq[:nz]
                zq = zq[nz:]
            rd = []
            if 1 <= i <= 12:
                rd = cap(lambda: [k.ds(f"ds_read_b128 {A(4*q,4)}, v214 offset:{1024*q}") for q in range(5 * (i - 1), 5 * i)])
            k.wait_vm(th[i])
            pos = {}
            for n_, u in enumerate(fill):
                pos.setdefault(1 + n_ * 19 // max(len(fill), 1), []).append(u)
            for n_, u in enumerate(rd):
                pos.setdefault(2 + 4 * n_, []).append(u)
            n = 0
            for nb in range(4):
                for b in range(5):
                    D = V(ACC + 20 * nb + 4 * b, 4)
                    k(f"v_mfma_f32_16x16x32_bf16 {D}, {self.w2reg(i,b)}, {V(HB+16*(i%NBUF)+4*nb,4)}, {'0' if i == 0 else D}")
                    n += 1
                    k.put(pos.pop(n, []))
            assert not pos
        self.stamp("g2")
        L = k.lab("L_gen")
        with k.atomic():
            k(f"s_cmp_lg_u32 s{sC}, 0\ns_cbranch_scc1 {L}")
            self.flag_store(f"s_mov_b32 s{T0}, {WS_GEN}", T0, 10)
            k(f"{L}:")
        for nb in range(1, 4):
            k(f"s_add_u32 s{T0}, s{sWAVE}, {nb}\ns_and_b32 s{T0}, s{T0}, 3\ns_mul_i32 s{T0}, s{T0}, 15360\ns_add_u32 s{T0}, s{T0}, {L_RED + (nb-1)*5120}")
            k(f"v_add_u32 v{10+nb}, s{T0}, v6")
        k(f"s_mul_i32 s{T0}, s{sWAVE}, 15360\ns_add_u32 s{T0}, s{T0}, {L_RED}\nv_add_u32 v10, s{T0}, v6")
        k.put(zq)

        def zread(ks):
            base, off = (212, ks * 4096) if ks < 10 else (213, (ks - 10) * 4096)
            return [k.ds(f"ds_read_b64_tr_b16 {V(ZB+4*(ks&3)+2*jj,2)}, v{base} offset:{off+512*jj}") for jj in range(2)][-1]

        def idft(k0, k1, valu, per):
            tk = {}
            for ks in range(k0, k0 + 3):
                tk[ks] = zread(ks)
            for ks in range(k0, k1):
                k.wait_lg(tk[ks])
                P = ks // 10
                for blk in range(3):
                    d = EO + (16 if blk == 2 else 8 * P + 4 * blk)
                    first = (ks % 10 == 0) if blk < 2 else ks == 0
                    k(f"v_mfma_f32_16x16x32_bf16 {V(d,4)}, {A(4*(3*ks+blk),4)}, {V(ZB+4*(ks&3),4)}, {'0' if first else V(d,4)}")
                    if blk == 0 and ks + 3 < k1:
                        tk[ks + 3] = zread(ks + 3)
                    else:
                        k.put(valu[:per])
                        del valu[:per]
            k.put(valu)
        k.wait_vm(tz[9])
        k.drain_lg()
        k("s_barrier")
        k.begin()
        for nb in range(1, 4):
            for b in range(5):
                k.ds(f"ds_write_b128 v{10+nb}, {V(ACC+20*nb+4*b,4)} offset:{1024*b}")
        idft(0, 10, k.end(), 1)
        k("v_and_b32 v14, 0xffff0000, v206\nv_rcp_f32 v14, v14")
        for i in range(10):
            k(f"v_lshlrev_b32 v{ACC+20+2*i}, 16, v{XR_+i}\nv_and_b32 v{ACC+21+2*i}, 0xffff0000, v{XR_+i}")
        k(f"v_mul_f32 v15, {fl(-math.log2(math.e))}, v14\nv_mul_f32 v14, {fl(2.0/(640*2048))}, v14")
        k.wait_vm(tz[19])
        k.drain_lg()
        k("s_barrier")
        self.stamp("red")
        toks = [k.ds(f"ds_read_b128 {V(HB+4*q,4)}, v10 offset:{1024*q}") for q in range(15)]
        k.begin()
        for s_ in range(3):
            for i in range(20):
                k(f"v_add_f32 v{ACC+i}, v{ACC+i}, v{HB+20*s_+i}")
        idft(10, 20, k.end(), 3)
        for i in range(0, 20, 2):
            k(f"v_pk_mul_f32 {V(HB+i,2)}, {V(ACC+i,2)}, v[14:15] op_sel:[0,1] op_sel_hi:[1,1]")
        for i in range(20):
            k(f"v_exp_f32 v{HB+i}, v{HB+i}")
        for i in range(0, 20, 2):
            k(f"v_pk_mul_f32 {V(ACC+i,2)}, {V(ACC+i,2)}, v[14:15] op_sel_hi:[1,0]")
        for i in range(0, 20, 2):
            k(f"v_pk_add_f32 {V(HB+i,2)}, {V(HB+i,2)}, 1.0 op_sel_hi:[1,0]")
        for i in range(20):
            k(f"v_rcp_f32 v{HB+i}, v{HB+i}")
        for i in range(0, 20, 2):
            k(f"v_pk_mul_f32 {V(ACC+i,2)}, {V(ACC+i,2)}, {V(HB+i,2)}")
        for b in range(5):
            for r in range(0, 4, 2):
                t = 10 + r
                if b < 4:
                    e, o_ = V(EO + 4 * (b & 1) + r, 2), V(EO + 8 + 4 * (b & 1) + r, 2)
                    k(f"v_pk_add_f32 {V(t,2)}, {e}, {o_}" + (" neg_lo:[0,1] neg_hi:[0,1]" if b >= 2 else ""))
                    src = V(t, 2)
                else:
                    src = V(EO + 16 + r, 2)
                k(f"v_pk_fma_f32 {V(t,2)}, {src}, {V(ACC+4*b+r,2)}, {V(ACC+20+4*b+r,2)}")
                k(f"v_cvt_pk_bf16_f32 v{XR_+2*b+r//2}, v{t}, v{t+1}")
            k.vmem(f"buffer_store_dwordx2 {V(XR_+2*b,2)}, v{9 if b == 4 else 8}, s[{sOUT}:{sOUT+3}], 0 offen offset:{offs[b]} {o.get('OST', '')}")

    def build(self):
        k = self.k
        self.startup()
        self.pre_chunks = 0
        for ch in self.opt.get("ORDER", "argb"):
            if ch == "a":
                self.setup_a()
            elif ch == "r":
                self.tlb_warm()
                self.role_loads()
            elif ch == "g":
                self.geometry()
            elif ch == "b":
                k.put(self.setup_b())
            elif ch == "c":
                k.put(self.dma_chunk(self.pre_chunks))
                self.pre_chunks += 1
        self.stamp("setup")
        self.phase1()
        Ln, Lw, Lg = k.lab("L_narrow"), k.lab("L_widejob"), k.lab("L_join")
        k(f"s_cmp_eq_u32 s{sWIDE}, 0\ns_cbranch_scc1 {Ln}")
        k(f"s_cmp_eq_u32 s{sC}, 0\ns_cbranch_scc1 {Lw}")
        snap = k.snapshot()
        tch = dict(self.t_chunk)
        self.middle_nojob(*self.gemm1(4, False))
        k(f"s_branch {Lg}")
        k(f"{Lw}:")
        k.restore(snap)
        self.t_chunk = dict(tch)
        self.middle_job(*self.gemm1(4, True))
        k(f"s_branch {Lg}")
        k(f"{Ln}:")
        k.restore(snap)
        self.t_chunk = dict(tch)
        self.middle_job(*self.gemm1(3, True))
        k(f"{Lg}:")
        k.all_opt()
        k.clear_lg()
        self.tail()
        self.finish()
        body = k.text(self.opt.get('ALIGN', 1), f'{KN}:\n.set tab_data, {KN}+0x12340\n.set tab_end, {KN}+0x23450\n')
        hdr = open("recurrent_scan__spectral_gfnet__dense_activation_relu__prompt.s.ref").read().split("; Override launch")[0]
        s = hdr + f"; @launch grid=(256,1,1) block=(256,1,1) lds={LDS_BYTES}\n"
        s += f'.amdgcn_target "amdgcn-amd-amdhsa--gfx950"\n.text\n.globl {KN}\n.p2align 8\n.type {KN},@function\n{KN}:\n'
        s += body
        s += ".p2align 8\n.type tab_data,@object\ntab_data:\n"
        for f in tables():
            u = bf16(f).reshape(-1).view(np.uint32)
            for i in range(0, 256, 8):
                s += ".long " + ",".join("0x%x" % x for x in u[i:i + 8]) + "\n"
        u = lane_table().reshape(-1)
        for i in range(0, len(u), 8):
            s += ".long " + ",".join("0x%x" % x for x in u[i:i + 8]) + "\n"
        s += f"tab_end:\n.size tab_data, {TAB_BYTES}\n"
        s += f""".section .rodata,"a"
.p2align 6
.amdhsa_kernel {KN}
  .amdhsa_next_free_vgpr 512
  .amdhsa_next_free_sgpr 102
  .amdhsa_accum_offset 256
  .amdhsa_group_segment_fixed_size 0
  .amdhsa_kernarg_size 72
  .amdhsa_user_sgpr_count 2
  .amdhsa_user_sgpr_kernarg_segment_ptr 1
  .amdhsa_system_sgpr_workgroup_id_x 1
.end_amdhsa_kernel
"""
        return s


if __name__ == "__main__":
    out = sys.argv[1] if len(sys.argv) > 1 else "k.s"
    stop = sys.argv[2] if len(sys.argv) > 2 and sys.argv[2] != "-" else None
    g = Gen(stop=stop, stamps=(len(sys.argv) > 3 and sys.argv[3] == "1"))
    open(out, "w").write(g.build())
    print("written", out, "nops inserted", fix_hazards.total, "align", getattr(align8, "stats", None), "stamps", g.stn)
```

```python
import math, sys
import numpy as np
from kf import *

KN = "recurrent_scan__spectral_gfnet__dense_activation_relu__prompt_kernel"

WS_GEN = 0
FS = 16
WS_F1 = 0x1000
WS_FH = 0x3000
WS_FZ = 0x5000
WS_ST = 0x10000
PFB = 161 * 128
WS_PF = 0x100000
WS_W2 = 0x700000
WS_H = 0xA00000
WS_Z = 0x1200000
WS_STAMP = 0x2000000
WS_SIZE = 268435456

SLOT = 32768
L_OUT = 98304
L_XN = 119040
L_RP = 129280
L_CT = 139520
L_CS = 61440
L_G = 0
L_RED = 0
L_Z = 65536
L_INB = 0
L_EXC = 98304
L_ZST = 114688
ZSTU = 32 * 272
LDS_BYTES = 163840

sX, sWS, sWR, sWI, sW1, sW2, sOUT, sTAB = 4, 8, 12, 16, 20, 24, 28, 32
sWAVE, sC, sXCD, sIDX, sTAG, sRB, sU0, sWIDE, sJOB, sRB2, sJ, sROT = range(36, 48)
T0, T1, T2, T3, T4, T5, T6, T7 = range(48, 56)
sPOLL = 56
sEX = 58
sST = 60
sM = 62
sWROW = 64
sBID = 96
sHB = 68
F0, F1_, F2, F3, F4, F5, sW2B, sR2 = range(72, 80)
sNS = 57
F6, F7 = 2, 3
sSTAMP = 80

SPIN_MAX = 200000


def pi_(m):
    return (m & ~12) | ((m & 4) << 1) | ((m & 8) >> 1)


def bf16(x):
    u = np.asarray(x, dtype=np.float32).view(np.uint32).astype(np.uint64)
    return (((u + 0x7FFF + ((u >> 16) & 1)) >> 16) & 0xFFFF).astype(np.uint16)


def tables():
    fr = []
    for part in range(2):
        for t in range(3):
            f = np.zeros((64, 8))
            for l in range(64):
                n, h = l & 31, l >> 5
                f1, e1 = n >> 1, n & 1
                for j in range(8):
                    Q = 4 * t + 2 * h + (j >> 2)
                    if Q >= 10 or n >= 22 or Q // 5 != e1:
                        continue
                    d1 = 4 * (Q % 5) + (j & 3)
                    th = 2 * math.pi * ((d1 * f1) % 20) / 20
                    f[l, j] = math.cos(th) if part == 0 else -math.sin(th)
            fr.append(f)
    for kind in range(3):
        for t in range(2):
            f = np.zeros((64, 8))
            for l in range(64):
                a = pi_(l & 31)
                for j in range(8):
                    b = 16 * t + 8 * (l >> 5) + j
                    th = 2 * math.pi * ((a * b) % 32) / 32
                    f[l, j] = [math.cos(th), -math.sin(th), math.sin(th)][kind]
            fr.append(f)
    for hb in range(2):
        for kind in range(3):
            for tau in range(4):
                t = tau ^ (2 * hb)
                f = np.zeros((64, 8))
                for l in range(64):
                    a = 32 * hb + pi_(l & 31)
                    for j in range(8):
                        b = 16 * t + 8 * (l >> 5) + j
                        th = 2 * math.pi * ((a * b) % 64) / 64
                        f[l, j] = [math.cos(th), -math.sin(th), math.sin(th)][kind]
                fr.append(f)
    return fr


def lane_table():
    t = np.zeros((4, 64, 16), np.uint32)
    for w in range(4):
        for l in range(64):
            h, n = l >> 5, l & 31
            f2 = pi_(n)
            for p in range(6):
                f1 = 4 * (p >> 1) + 2 * h + (p & 1)
                f = f1 + 20 * f2
                U = 322
                if f1 <= 10 and f <= 320:
                    U = f
                elif 1 <= f1 <= 9:
                    U = 640 - f
                line = U >> 1
                for part in range(2):
                    t[w, l, 6 * part + p] = L_OUT + line * 128 + ((4 * (U & 1) + part) ^ ((line >> 1) & 7)) * 16 + 4 * w
            t[w, l, 12] = 0x80008000 if f2 > 15 else 0
            t[w, l, 13] = L_XN + 2560 * w + 1280 * h + 8 * n
            kk, c, G = (l >> 2) & 3, l & 3, (l >> 4) & 1
            b = L_XN + 2560 * w + kk * 64 + (16 * G + 8 * (c & 1) + 4 * (c >> 1)) * 2
            t[w, l, 14] = b + 512 * h
            t[w, l, 15] = b
    return t.reshape(4, 64, 4, 4).transpose(0, 2, 1, 3).copy()


TAB_F20, TAB_F32, TAB_F64, TAB_LC = 0, 6 * 1024, 12 * 1024, 36 * 1024
TAB_BYTES = 52 * 1024


class Gen:
    def __init__(self, stop=None, stamps=False, **opt):
        self.k = K()
        self.stop = stop
        self.stamps = stamps
        self.nst = 0
        self.stn = []
        self.opt = dict(FLAG_AT=2, ROT=1, P1DMA=2, P1START=0, F1AT=5, FZAT=8, NV0=4, NV=2, HD=4)
        self.opt.update(opt)

    def nt(self, key):
        return " nt" if key in self.opt.get("NT", "") else ""

    def stamp(self, name):
        if not self.stamps:
            return
        k = self.k
        if name in self.stn:
            i = self.stn.index(name)
        else:
            i = len(self.stn)
            self.stn.append(name)
        assert sSTAMP + i <= 95
        with k.atomic():
            k(f"{'s_memtime' if self.stamps == 'cyc' else 's_memrealtime'} s[{sST}:{sST+1}]")
            k.drain_lg()
            k(f"s_mov_b32 s{sSTAMP+i}, s{sST}")

    def pi_v(self, d, s, t):
        k = self.k
        k(f"v_and_b32 v{d}, 0x13, v{s}")
        k(f"v_bfe_u32 v{t}, v{s}, 2, 1")
        k(f"v_lshl_or_b32 v{d}, v{t}, 3, v{d}")
        k(f"v_bfe_u32 v{t}, v{s}, 3, 1")
        k(f"v_lshl_or_b32 v{d}, v{t}, 2, v{d}")

    def poll_issue(self, regs):
        k = self.k
        return [k.vmem(f"buffer_load_dword v{dr}, v{ar}, s[{sWS}:{sWS+3}], 0 offen sc1") for ar, dr in regs][-1]

    def poll_check(self, regs, tok):
        k = self.k
        L, Ld = k.lab("L_poll"), k.lab("L_polld")
        with k.atomic():
            k.wait_vm(tok)
            k(f"s_mov_b32 s{sPOLL}, 0")
            k(f"{L}:")
            for i, (ar, dr) in enumerate(regs):
                if i == 0:
                    k(f"v_cmp_ne_u32 vcc, s{sTAG}, v{dr}")
                else:
                    k(f"v_cmp_ne_u32 s[{sM}:{sM+1}], s{sTAG}, v{dr}")
                    k(f"s_or_b64 vcc, vcc, s[{sM}:{sM+1}]")
            k(f"s_add_u32 s{sPOLL}, s{sPOLL}, 1")
            k("s_cmp_eq_u64 vcc, 0")
            k(f"s_cbranch_scc1 {Ld}")
            for ar, dr in regs:
                k(f"buffer_load_dword v{dr}, v{ar}, s[{sWS}:{sWS+3}], 0 offen sc1")
            k("s_waitcnt vmcnt(0)")
            k(f"s_cmp_lt_u32 s{sPOLL}, {SPIN_MAX}")
            k(f"s_cbranch_scc1 {L}")
            k(f"{Ld}:")

    def flag_store(self, pre, sreg, vtmp):
        k = self.k
        L = k.lab("L_fs")
        with k.atomic():
            k(f"s_cmp_lg_u32 s{sWAVE}, 0")
            k(f"s_cbranch_scc1 {L}")
            k(pre)
            k(f"v_mov_b32 v{vtmp}, s{sTAG}")
            k(f"v_mov_b32 v{vtmp+1}, 0")
            k("s_mov_b64 exec, 1")
            k.vmem(f"buffer_store_dword v{vtmp}, v{vtmp+1}, s[{sWS}:{sWS+3}], s{sreg} offen sc1", opt=True)
            k("s_mov_b64 exec, -1")
            k(f"{L}:")

    def finish(self):
        k = self.k
        k("L_fin:")
        if self.stamps:
            self.stamp("end")
            k(f"s_cmp_lg_u32 s{sWAVE}, 0\ns_cbranch_scc1 L_end")
            k(f"s_lshl_b32 s{T0}, s{sIDX}, 3\ns_add_u32 s{T0}, s{T0}, s{sXCD}\ns_lshl_b32 s{T0}, s{T0}, 8\ns_add_u32 s{T0}, s{T0}, {WS_STAMP}\nv_mov_b32 v2, 0")
            k("s_mov_b64 exec, 1")
            for i in range(len(self.stn)):
                k(f"v_mov_b32 v3, s{sSTAMP+i}")
                k(f"buffer_store_dword v3, v2, s[{sWS}:{sWS+3}], s{T0} offen offset:{4*i}")
        k("L_end:")
        k("s_endpgm")

    def startup(self):
        k = self.k
        o = self.opt
        if self.stamps:
            for i in range(sSTAMP, 96):
                k(f"s_mov_b32 s{i}, 0")
        self.stamp("start")
        k("s_cmp_ge_u32 s2, 256\ns_cbranch_scc1 L_end")
        k(f"s_load_dwordx2 s[{sX}:{sX+1}], s[0:1], 0")
        k(f"s_load_dwordx2 s[{sWS}:{sWS+1}], s[0:1], 64")
        k(f"s_load_dwordx2 s[{sWR}:{sWR+1}], s[0:1], 8")
        k(f"s_load_dwordx2 s[{sWI}:{sWI+1}], s[0:1], 16")
        k(f"s_load_dwordx2 s[{sW1}:{sW1+1}], s[0:1], 32")
        k(f"s_load_dwordx2 s[{sW2}:{sW2+1}], s[0:1], 40")
        k(f"s_load_dwordx2 s[{sOUT}:{sOUT+1}], s[0:1], 48")
        k(f"v_lshrrev_b32 v2, 6, v0\nv_and_b32 v1, 63, v0")
        k(f"s_and_b32 s{sXCD}, s2, 7\ns_lshr_b32 s{sIDX}, s2, 3")
        k(f"v_readfirstlane_b32 s{sWAVE}, v2")
        k(f"s_lshl_b32 s{sC}, s{sXCD}, 5\ns_add_u32 s{sC}, s{sC}, s{sIDX}")
        k(f"s_and_b32 s{T0}, s{sC}, 7\ns_lshl_b32 s{T0}, s{T0}, 3\ns_lshl_b32 s{T1}, s{sWAVE}, 1\ns_add_u32 s{T0}, s{T0}, s{T1}")
        k(f"s_lshl_b32 s{T0}, s{T0}, 5\ns_lshr_b32 s{T1}, s{sC}, 3\ns_add_u32 s{T0}, s{T0}, s{T1}\ns_mul_i32 s{T0}, s{T0}, 1280")
        k("v_lshrrev_b32 v3, 5, v1")
        k("v_and_b32 v4, 31, v1")
        k("v_mul_u32_u24 v5, 40960, v3\nv_lshl_add_u32 v5, v4, 3, v5")
        k(f"s_mov_b32 s{sX+2}, 2621440\ns_mov_b32 s{sX+3}, 0x20000")
        k(f"s_getpc_b64 s[{sTAB}:{sTAB+1}]\nL_pc:\ns_add_u32 s{sTAB}, s{sTAB}, tab_data-L_pc\ns_addc_u32 s{sTAB+1}, s{sTAB+1}, 0")
        k(f"s_mov_b32 s{sTAB+2}, {TAB_BYTES}\ns_mov_b32 s{sTAB+3}, 0x20000")
        k("v_lshlrev_b32 v6, 4, v1")
        k(f"s_mul_i32 s{T1}, s{sWAVE}, 3072")
        k("s_waitcnt lgkmcnt(0)")
        self.t_x = [k.vmem(f"buffer_load_dwordx2 v[{10+2*i}:{11+2*i}], v5, s[{sX}:{sX+3}], s{T0} offen offset:{256*i}{self.nt('x')}") for i in range(5)]
        k(f"s_load_dword s{sTAG}, s[{sWS}:{sWS+1}], {WS_GEN}")
        k(f"s_sub_u32 s{T4}, s{sTAB}, tab_data-{KN}\ns_subb_u32 s{T4+1}, s{sTAB+1}, 0")
        k(f"s_mov_b32 s{T4+2}, tab_end-{KN}\ns_mov_b32 s{T4+3}, 0x20000")
        k(f"s_lshl_b32 s{T2}, s{sIDX}, 2\ns_add_u32 s{T2}, s{T2}, s{sWAVE}\ns_lshl_b32 s{T2}, s{T2}, 7\nv_lshlrev_b32 v7, 14, v1")
        with k.atomic():
            k("s_mov_b64 exec, 0x7f")
            k.vmem(f"buffer_load_dword v5, v7, s[{T4}:{T4+3}], s{T2} offen{self.nt('p')}")
            k("s_mov_b64 exec, -1")
        k(f"s_add_u32 m0, s{T1}, {L_CT}")
        for i in range(3):
            self.t_c = k.vmem(f"buffer_load_dwordx4 v6, s[{sTAB}:{sTAB+3}], s{T1} offen offset:{i*1024} lds")
        k(f"s_lshl_b32 s{T1}, s{sWAVE}, 12\ns_add_u32 s{T1}, s{T1}, {TAB_LC}")
        for i in range(4):
            self.t_lc = k.vmem(f"buffer_load_dwordx4 {V(208+4*i,4)}, v6, s[{sTAB}:{sTAB+3}], s{T1} offen offset:{i*1024}")
        k(f"s_mov_b32 s{sWS+2}, {WS_SIZE}\ns_mov_b32 s{sWS+3}, 0x20000")
        for s_, n in ((sWR, 2048 * 642), (sWI, 2048 * 642), (sW1, 640 * 3456), (sW2, 1728 * 1280), (sOUT, 2621440)):
            k(f"s_mov_b32 s{s_+2}, {n}\ns_mov_b32 s{s_+3}, 0x20000")

    def tlb_warm(self):
        k = self.k
        mode = self.opt.get("TLB", 0)
        if not mode:
            return
        L = k.lab("L_tw")
        with k.atomic():
            k(f"s_cmp_lg_u32 s{sWAVE}, 3\ns_cbranch_scc1 {L}")
            if mode == 1:
                k("v_lshlrev_b32 v7, 21, v1\nv_add_u32 v7, 0x1fff80, v7\nv_lshlrev_b32 v8, 21, v1\ns_mov_b64 exec, 0x7ff")
                k.vmem(f"buffer_load_dword v5, v7, s[{sWS}:{sWS+3}], 0 offen", opt=True)
                k("s_mov_b64 exec, 3")
                k.vmem(f"buffer_load_dword v5, v8, s[{sOUT}:{sOUT+3}], 0 offen", opt=True)
            else:
                k(f"v_lshlrev_b32 v7, 5, v1\nv_add_u32 v7, s{sIDX}, v7\nv_lshlrev_b32 v7, 16, v7\ns_mov_b64 exec, 0x7ff")
                k.vmem(f"buffer_load_dword v5, v7, s[{sWS}:{sWS+3}], 0 offen offset:3968", opt=True)
                k("s_mov_b64 exec, 3")
                k.vmem(f"buffer_load_dword v5, v7, s[{sOUT}:{sOUT+3}], 0 offen", opt=True)
            k("s_mov_b64 exec, -1")
            k(f"{L}:")

    def role_loads(self):
        k = self.k
        Lw3, Lj = k.lab("L_w3"), k.lab("L_rj")
        with k.atomic():
            k(f"s_cmp_eq_u32 s{sWAVE}, 3\ns_cbranch_scc1 {Lw3}")
            k(f"s_and_b32 s{T1}, s{sC}, 1\ns_lshl_b32 s{T1}, s{T1}, 5\ns_lshr_b32 s{T2}, s{sC}, 3\ns_add_u32 s{T1}, s{T1}, s{T2}")
            k(f"s_bfe_u32 s{T2}, s{sC}, 0x10002\ns_lshl_b32 s{T2}, s{T2}, 10\ns_add_u32 s{T1}, s{T1}, s{T2}")
            k(f"s_bfe_u32 s{T2}, s{sC}, 0x10001\ns_lshl_b32 s{T2}, s{T2}, 8\ns_add_u32 s{T1}, s{T1}, s{T2}")
            k(f"s_mul_i32 s{sWROW}, s{T1}, 642")
            for i in range(1, 8):
                k(f"s_add_u32 s{sWROW+i}, s{sWROW}, {(8*(i>>2)+(i&3))*64*642}")
            k("v_min_u32 v7, 160, v0\nv_lshlrev_b32 v7, 2, v7\nv_min_u32 v7, 638, v7")
            for i in range(8):
                k.vmem(f"buffer_load_dword v{224+2*i}, v7, s[{sWR}:{sWR+3}], s{sWROW+i} offen{self.nt('w')}", opt=(i >= 5))
                k.vmem(f"buffer_load_dword v{225+2*i}, v7, s[{sWI}:{sWI+3}], s{sWROW+i} offen{self.nt('w')}", opt=(i >= 5))
            k(f"s_branch {Lj}")
            k(f"{Lw3}:")
            k(f"s_mul_i32 s{T3}, s{sC}, 10240")
            for n in range(10):
                if n % 4 == 0:
                    k(f"s_add_u32 s{T2}, s{T3}, {n*1024}\ns_mov_b32 m0, {L_RP + n*1024}")
                k.vmem(f"buffer_load_dwordx4 v6, s[{sW2}:{sW2+3}], s{T2} offen offset:{(n%4)*1024}{self.nt('r')} lds", opt=True)
            k(f"{Lj}:")
        self.t_role = k.last_vm()

    def geometry(self):
        k = self.k
        o = self.opt
        k(f"s_lshr_b32 s{T1}, s{sXCD}, 1\ns_lshl_b32 s{sRB}, s{T1}, 2\ns_lshr_b32 s{T2}, s{sIDX}, 3\ns_add_u32 s{sRB}, s{sRB}, s{T2}")
        k(f"s_lshl_b32 s{sRB2}, s{T1}, 3\ns_lshr_b32 s{T3}, s{sIDX}, 2\ns_add_u32 s{sRB2}, s{sRB2}, s{T3}")
        k(f"s_and_b32 s{T3}, s{sXCD}, 1\ns_lshl_b32 s{sJ}, s{T3}, 2\ns_and_b32 s{T4}, s{sIDX}, 3\ns_add_u32 s{sJ}, s{sJ}, s{T4}")
        k(f"s_and_b32 s{T4}, s{sIDX}, 7")
        k(f"s_mul_i32 s{T5}, s{T4}, 3\ns_add_u32 s{T5}, s{T5}, 3\ns_mul_i32 s{T6}, s{T3}, 27\ns_add_u32 s{T5}, s{T5}, s{T6}")
        k(f"s_cmp_eq_u32 s{T5}, 39\ns_cselect_b32 s{T5}, 27, s{T5}")
        k(f"s_lshl_b32 s{T6}, s{T4}, 2\ns_mul_i32 s{T7}, s{T3}, 30\ns_add_u32 s{T6}, s{T6}, s{T7}")
        k(f"s_cmp_lt_u32 s{T4}, 3\ns_cselect_b32 s{sU0}, s{T6}, s{T5}\ns_cselect_b32 s{sWIDE}, 1, 0")
        k(f"s_mul_i32 s{T5}, s{sXCD}, 20\ns_mul_i32 s{T6}, s{T2}, 5\ns_add_u32 s{T5}, s{T5}, s{T6}\ns_add_u32 s{T5}, s{T5}, s{T4}\ns_sub_u32 s{sJOB}, s{T5}, 3")
        k(f"s_cmp_eq_u32 s{sC}, 0\ns_cselect_b32 s{sJOB}, 160, s{sJOB}")
        k(f"s_mul_i32 s{sW2B}, s{sJ}, 276480\ns_mul_i32 s{T5}, s{sWAVE}, 5120\ns_add_u32 s{sW2B}, s{sW2B}, s{T5}\ns_add_u32 s{sW2B}, s{sW2B}, {WS_W2}")
        k(f"s_cmp_ge_u32 s{sWAVE}, 2\ns_cselect_b32 s{sNS}, 13, 14")
        k(f"s_and_b32 s{T5}, s{sIDX}, 3\ns_mul_i32 s{sR2}, s{T5}, {o.get('ROT2', 3)}")
        if o["ROT"]:
            k(f"s_lshl_b32 s{T5}, s{T3}, 3\ns_add_u32 s{T5}, s{T5}, s{T4}\ns_mul_i32 s{T6}, s{sRB}, 3\ns_add_u32 s{T5}, s{T5}, s{T6}")
            k(f"s_mul_i32 s{T6}, s{T5}, 6554\ns_lshr_b32 s{T6}, s{T6}, 16\ns_mul_i32 s{T6}, s{T6}, 10\ns_sub_u32 s{sROT}, s{T5}, s{T6}")
        else:
            k(f"s_mov_b32 s{sROT}, 0")
        k(f"s_lshl_b32 s{T5}, s{sRB}, 1\ns_lshr_b32 s{T6}, s{sWAVE}, 1\ns_add_u32 s{T5}, s{T5}, s{T6}\ns_and_b32 s{T6}, s{sWAVE}, 1\ns_lshl_b32 s{T6}, s{T6}, 10")
        k(f"s_add_u32 s{T5}, s{T5}, s{T6}\ns_mul_i32 s{T5}, s{T5}, 1280")
        k("v_lshrrev_b32 v7, 3, v1\nv_mul_u32_u24 v8, 40960, v7\nv_lshrrev_b32 v9, 4, v1\nv_and_b32 v2, 7, v1\nv_xor_b32 v9, v9, v2")
        k(f"v_lshl_add_u32 v152, v9, 4, v8\nv_add_u32 v152, s{T5}, v152\nv_xor_b32 v153, 64, v152")
        k(f"v_add_u32 v153, 327680, v153\nv_add_u32 v154, 655360, v152\nv_add_u32 v155, 655360, v153")
        k(f"s_lshr_b32 s{T5}, s{sU0}, 1\ns_lshl_b32 s{T5}, s{T5}, 7\ns_mul_i32 s{T6}, s{sWAVE}, {16*3456}\ns_add_u32 s{T5}, s{T5}, s{T6}")
        k("v_mul_u32_u24 v8, 3456, v7\nv_bfe_u32 v9, v1, 4, 1\nv_lshlrev_b32 v9, 2, v9\nv_xor_b32 v9, v9, v2")
        k(f"v_lshl_add_u32 v156, v9, 4, v8\nv_add_u32 v156, s{T5}, v156\nv_add_u32 v157, {8*3456}, v156")
        k(f"s_lshl_b32 s{F3}, s{sWAVE}, 12\ns_lshl_b32 s{F4}, s{sWAVE}, 11")
        self.t_chunk = {}

    def dma_chunk(self, c):
        k = self.k
        slot = (c % 5) * SLOT
        k.begin()
        for n in range(8):
            with k.atomic():
                if n == 0:
                    k(f"s_add_u32 s{F0}, s{sROT}, {c}\ns_cmp_ge_u32 s{F0}, 10\ns_cselect_b32 s{F1_}, 10, 0\ns_sub_u32 s{F0}, s{F0}, s{F1_}")
                    k(f"s_lshl_b32 s{F1_}, s{F0}, 7\ns_mul_i32 s{F2}, s{F0}, {64*3456}")
                m = n >> 1
                if n & 1 == 0:
                    k(f"s_add_u32 m0, s{F3}, {slot + m*1024}")
                    self.t_chunk[c] = k.vmem(f"buffer_load_dwordx4 v{152+m}, s[{sX}:{sX+3}], s{F1_} offen{self.nt('c') if c < self.opt.get('NTC', 10) else ''} lds")
                else:
                    L, rg = m & 1, m >> 1
                    k(f"s_add_u32 m0, s{F4}, {slot + 16384 + L*(8192-128) + rg*1024}")
                    self.t_chunk[c] = k.vmem(f"buffer_load_dwordx4 v{156+rg}, s[{sW1}:{sW1+3}], s{F2} offen offset:{128*L}{self.nt('1') if c < self.opt.get('NTC', 10) else ''} lds")
        return k.end()

    def setup_a(self):
        k = self.k
        k("v_lshrrev_b32 v7, 1, v4\nv_cvt_f32_u32 v7, v7")
        k(f"v_mul_f32 v7, {fl(1/640)}, v7")
        k("v_lshlrev_b32 v8, 3, v3\nv_cvt_f32_u32 v8, v8\nv_mul_f32 v8, v8, v7")
        for i in range(16):
            g, r = i >> 2, i & 3
            d = 16 * (g >> 1) + 4 * (g & 1) + r
            k(f"v_fmamk_f32 v9, v7, {fl(float(d))}, v8")
            k(f"v_cos_f32 v{84+i}, v9")
            k(f"v_sin_f32 v{100+i}, v9")
        k(f"v_add_u32 v121, {L_CT}, v6")

    def setup_b(self):
        k = self.k
        k.begin()
        k(f"s_lshl_b32 s{T0}, s{sWAVE}, 12")
        k("v_bfe_u32 v7, v1, 1, 3\nv_xor_b32 v7, v7, v3\nv_lshlrev_b32 v7, 4, v7\nv_lshl_add_u32 v7, v4, 7, v7")
        k(f"v_add_u32 v128, s{T0}, v7")
        for t in range(1, 4):
            k(f"v_xor_b32 v{128+t}, {32*t}, v128")
        k("v_bfe_u32 v7, v1, 2, 2\nv_lshl_add_u32 v7, v3, 3, v7\nv_lshlrev_b32 v7, 7, v7")
        k("v_bfe_u32 v8, v1, 3, 1\nv_lshl_or_b32 v7, v8, 6, v7\nv_bfe_u32 v8, v1, 4, 1\nv_lshl_or_b32 v7, v8, 5, v7")
        k("v_and_b32 v8, 1, v1\nv_lshl_or_b32 v7, v8, 4, v7\nv_bfe_u32 v8, v1, 1, 1\nv_lshl_or_b32 v7, v8, 3, v7")
        k(f"s_add_u32 s{T1}, s{sWIDE}, 3\ns_and_b32 s{T2}, s{sU0}, 1")
        for bi in range(4):
            k(f"s_add_u32 s{T3}, s{sWAVE}, {bi}\ns_cmp_ge_u32 s{T3}, s{T1}\ns_cselect_b32 s{T4}, s{T1}, 0\ns_sub_u32 s{T3}, s{T3}, s{T4}")
            k(f"s_cmp_ge_u32 s{T3}, s{T1}\ns_cselect_b32 s{T4}, s{T1}, 0\ns_sub_u32 s{T3}, s{T3}, s{T4}")
            k(f"s_mov_b32 s{sBID+bi}, s{T3}\ns_add_u32 s{T3}, s{T3}, s{T2}\ns_and_b32 s{T4}, s{T3}, 1\ns_lshl_b32 s{T4}, s{T4}, 6\ns_lshr_b32 s{T3}, s{T3}, 1\ns_lshl_b32 s{T3}, s{T3}, 13")
            k(f"s_add_u32 s{T3}, s{T3}, 16384\nv_xor_b32 v8, s{T4}, v7\nv_add_u32 v{132+bi}, s{T3}, v8")
        for i in range(8):
            k(f"v_add_u32 v{136+i}, 0x10000, v{128+i}\nv_add_u32 v{144+i}, 0x20000, v{128+i}")
        k("v_lshrrev_b32 v7, 4, v1\nv_xor_b32 v7, v7, v1\nv_and_b32 v7, 1, v7\nv_cmp_eq_u32 vcc, 0, v7\nv_mov_b32 v8, 0x3f803f80\ns_nop 0\nv_cndmask_b32 v124, 0, v8, vcc")
        k("v_mov_b32 v125, v124\nv_mov_b32 v126, v124\nv_mov_b32 v127, v124")
        return k.end()

    def reduce32(self, r, t):
        k = self.k
        for sh in (8, 4, 2, 1):
            k(f"v_add_f32_dpp v{r}, v{r}, v{r} row_ror:{sh} row_mask:0xf bank_mask:0xf")
        k(f"v_mov_b32 v{t}, v{r}")
        k(f"v_permlane16_swap_b32 v{t}, v{r}")
        k(f"v_add_f32 v{r}, v{r}, v{t}")

    def phase1(self):
        k = self.k
        k.drain_lg()
        k(f"s_mul_i32 s{sTAG}, s{sTAG}, 1664525\ns_add_u32 s{sTAG}, s{sTAG}, 1013904223")
        k.wait_vm(self.t_x[-1])
        self.stamp("x")
        k.begin()
        for i in range(10):
            k(f"v_lshlrev_b32 v{20+2*i}, 16, v{10+i}\nv_and_b32 v{21+2*i}, 0xffff0000, v{10+i}")
        k("v_pk_add_f32 v[8:9], v[20:21], v[22:23]\nv_pk_add_f32 v[10:11], v[24:25], v[26:27]")
        for i in range(4, 10, 2):
            k(f"v_pk_add_f32 v[8:9], v[8:9], v[{20+2*i}:{21+2*i}]\nv_pk_add_f32 v[10:11], v[10:11], v[{22+2*i}:{23+2*i}]")
        k("v_pk_add_f32 v[8:9], v[8:9], v[10:11]\nv_add_f32 v8, v8, v9")
        self.reduce32(8, 9)
        k(f"v_mul_f32 v8, {fl(1/640)}, v8")
        for i in range(10):
            k(f"v_pk_add_f32 v[{20+2*i}:{21+2*i}], v[{20+2*i}:{21+2*i}], v[8:9] op_sel_hi:[1,0] neg_lo:[0,1] neg_hi:[0,1]")
        k("v_pk_mul_f32 v[10:11], v[20:21], v[20:21]\nv_pk_mul_f32 v[12:13], v[22:23], v[22:23]")
        for i in range(2, 10, 2):
            k(f"v_pk_fma_f32 v[10:11], v[{20+2*i}:{21+2*i}], v[{20+2*i}:{21+2*i}], v[10:11]")
            k(f"v_pk_fma_f32 v[12:13], v[{22+2*i}:{23+2*i}], v[{22+2*i}:{23+2*i}], v[12:13]")
        k("v_pk_add_f32 v[10:11], v[10:11], v[12:13]\nv_add_f32 v10, v10, v11")
        with k.atomic():
            k.wait_vm(self.t_lc)
            k("s_barrier")
        for i in range(12):
            tc = k.ds(f"ds_read_b128 {A(4*i,4)}, v121 offset:{1024*i}")
        self.reduce32(10, 11)
        k(f"v_mul_f32 v10, {fl(1/640)}, v10")
        k("v_cvt_pk_bf16_f32 v12, v8, v10")
        k("v_and_b32 v13, 0xffff0000, v12")
        k(f"v_add_f32 v13, {fl(1e-5)}, v13\nv_cvt_pk_bf16_f32 v13, v13, v13\nv_and_b32 v13, 0xffff0000, v13")
        k("v_sqrt_f32 v13, v13\nv_lshlrev_b32 v15, 16, v12\nv_cvt_pk_bf16_f32 v13, v13, v13\nv_and_b32 v13, 0xffff0000, v13")
        k("v_rcp_f32 v14, v13\nv_sub_f32 v15, v8, v15")
        k("v_mul_f32 v15, v15, v14")
        for i in range(10):
            k(f"v_pk_fma_f32 v[{20+2*i}:{21+2*i}], v[{20+2*i}:{21+2*i}], v[14:15], v[14:15] op_sel:[0,0,1] op_sel_hi:[1,0,1]")
            if i & 1:
                k(f"v_cvt_pk_bf16_f32 v{39+i}, v{18+2*i}, v{19+2*i}\nv_cvt_pk_bf16_f32 v{40+i}, v{20+2*i}, v{21+2*i}")
                tw = k.ds(f"ds_write_b64 v221, v[{39+i}:{40+i}] offset:{128*(i-1)}")
        k("v_and_b32 v12, 0xffff, v12\nv_or_b32 v12, v12, v13")
        k(f"v_mov_b32 v13, s{sTAG}")
        k(f"s_lshl_b32 s{T0}, s{sC}, 6\ns_lshl_b32 s{T1}, s{sWAVE}, 4\ns_add_u32 s{T0}, s{T0}, s{T1}\ns_add_u32 s{T0}, s{T0}, {WS_ST}")
        k("v_lshlrev_b32 v2, 3, v3")
        k.wait_lg(tw, est=40)
        toks = []
        for t in range(3):
            for jj in range(2):
                ar = 222 if t < 2 else 223
                toks.append(k.ds(f"ds_read_b64_tr_b16 v[{40+4*t+2*jj}:{41+4*t+2*jj}], v{ar} offset:{t*1024+jj*256}"))
        with k.atomic():
            k("s_mov_b32 exec_lo, 1\ns_mov_b32 exec_hi, 1")
            k.vmem(f"buffer_store_dwordx2 v[12:13], v2, s[{sWS}:{sWS+3}], s{T0} offen sc1")
            k("s_mov_b64 exec, -1")
        for t in range(3):
            k.wait_lg(toks[2 * t + 1], est=(60 if t == 0 else 0))
            for part in range(2):
                D = V(52 + 16 * part, 16)
                k(f"v_mfma_f32_32x32x16_bf16 {D}, {V(40+4*t,4)}, {A(12*part+4*t,4)}, {'0' if t == 0 else D}")
        self.cmul(52, 84, +1, 160, 8)
        Fr, Fi, NFi = 24, 32, 40
        first = True
        for t in range(2):
            for (dat, cre, cim) in ((160, Fr, Fi), (168, NFi, Fr)):
                k(f"v_mfma_f32_32x32x16_bf16 {V(176,16)}, {V(dat+4*t,4)}, {A(cre+4*t,4)}, {'0' if first else V(176,16)}")
                k(f"v_mfma_f32_32x32x16_bf16 {V(192,16)}, {V(dat+4*t,4)}, {A(cim+4*t,4)}, {'0' if first else V(192,16)}")
                first = False
        main = k.end()
        fill = []
        for c in range(self.pre_chunks, self.opt["P1DMA"]):
            fill += self.dma_chunk(c)
        k.weave(main, fill, start=self.opt["P1START"])
        Lj = k.lab("L_rjb")
        k.wait_vm(self.t_role)
        with k.atomic():
            k(f"s_cmp_eq_u32 s{sWAVE}, 3\ns_cbranch_scc1 {Lj}")
            k("v_cmp_gt_u32 vcc, 160, v0\nv_mov_b32 v2, 0x07060302\nv_mov_b32 v7, 0x05040100\nv_cndmask_b32 v7, v2, v7, vcc")
            k(f"v_min_u32 v8, 161, v0\nv_bfe_u32 v9, v8, 1, 3\nv_lshlrev_b32 v9, 4, v9\nv_lshl_add_u32 v8, v8, 7, v9\nv_add_u32 v8, {L_OUT}, v8")
            for q, lc in enumerate((2, 3, 6, 7)):
                for r in range(4):
                    i = 4 * (q & 1) + r
                    k(f"v_perm_b32 v{240+4*q+r}, v{225+2*i}, v{224+2*i}, v{7 if q < 2 else 2}")
                k(f"v_xor_b32 v9, {16*lc}, v8")
                k.ds(f"ds_write_b128 v9, {V(240+4*q,4)}", opt=True)
            k(f"{Lj}:")
        for p in range(6):
            r0 = 4 * (p >> 1) + 2 * (p & 1)
            k(f"v_cvt_pk_bf16_f32 v{8+(p&1)*2}, v{176+r0}, v{177+r0}\nv_cvt_pk_bf16_f32 v{9+(p&1)*2}, v{192+r0}, v{193+r0}")
            k(f"v_xor_b32 v{9+(p&1)*2}, v220, v{9+(p&1)*2}")
            k.ds(f"ds_write_b32 v{208+p}, v{8+(p&1)*2}")
            k.ds(f"ds_write_b32 v{214+p}, v{9+(p&1)*2}")
        k(f"v_lshlrev_b32 v2, 4, v0\nv_add_u32 v7, {L_OUT}, v2")
        k(f"s_mul_i32 s{T0}, s{sC}, {PFB}\ns_add_u32 s{T0}, s{T0}, {WS_PF}")
        k("v_lshrrev_b32 v8, 4, v1\nv_bfe_u32 v9, v1, 2, 2\nv_mul_u32_u24 v9, 1280, v9\nv_mul_u32_u24 v10, 80, v8")
        k(f"v_and_b32 v11, 1, v1\nv_lshl_add_u32 v10, v11, 3, v10\nv_add3_u32 v10, v10, v9, 0\nv_bfe_u32 v9, v1, 1, 1")
        k(f"s_mov_b32 s{T1}, 276480\nv_mul_lo_u32 v8, v8, s{T1}\nv_and_b32 v11, 15, v1\nv_lshl_add_u32 v8, v11, 4, v8")
        k(f"s_lshr_b32 s{T1}, s{sC}, 2\ns_mul_i32 s{T1}, s{T1}, 5120\ns_and_b32 s{T2}, s{sC}, 3\ns_lshl_b32 s{T2}, s{T2}, 8\ns_add_u32 s{T1}, s{T1}, s{T2}\ns_add_u32 s{T1}, s{T1}, {WS_W2}")
        k(f"s_cmp_ge_u32 s{sC}, 216\ns_cselect_b32 s{T1}, {WS_SIZE}, s{T1}")
        for i in range(3):
            k(f"s_add_u32 s{T2}, s{sWAVE}, {4*i}\ns_cmp_ge_u32 s{T2}, 5\ns_cselect_b32 s{T3}, 1, 0\ns_mul_i32 s{T4}, s{T3}, 5\ns_sub_u32 s{T4}, s{T2}, s{T4}")
            k(f"s_mul_i32 s{T6}, s{T3}, {4*276480}\ns_lshl_b32 s{T7}, s{T4}, 10\ns_add_u32 s{T6}, s{T6}, s{T7}\ns_add_u32 s{sHB+i}, s{T6}, s{T1}")
            if i == 2:
                k(f"s_cmp_ge_u32 s{T2}, 10\ns_cselect_b32 s{sHB+i}, {WS_SIZE}, s{sHB+i}")
            k(f"s_and_b32 s{T6}, s{T4}, 1\ns_lshl_b32 s{T6}, s{T6}, 5\ns_bfe_u32 s{T7}, s{T4}, 0x10001\ns_mul_i32 s{T7}, s{T7}, 640\ns_add_u32 s{T6}, s{T6}, s{T7}")
            k(f"s_cmp_eq_u32 s{T4}, 4\ns_cselect_b32 s{T6}, 64, s{T6}\ns_cselect_b32 s{T7}, 640, 16\ns_mul_i32 s{T3}, s{T3}, 320\ns_add_u32 s{T6}, s{T6}, s{T3}\ns_add_u32 s{T6}, s{T6}, {L_RP}")
            k(f"v_mad_u32_u24 v{12+i}, v9, s{T7}, v10\nv_add_u32 v{12+i}, s{T6}, v{12+i}")
        k.drain_lg()
        k("s_barrier")
        toks = [k.ds(f"ds_read_b128 {V(160+4*i,4)}, v7 offset:{4096*i}") for i in range(6)]
        tr = [k.ds(f"ds_read_b64_tr_b16 {V(184+4*i+2*jj,2)}, v{12+i} offset:{5120*jj}") for i in range(3) for jj in range(2)]
        for i in range(6):
            k.wait_lg(toks[i])
            with k.atomic():
                if i == 5:
                    L = k.lab("L_o6")
                    k(f"s_cmp_lg_u32 s{sWAVE}, 0\ns_cbranch_scc1 {L}\ns_mov_b64 exec, 0xff")
                k.vmem(f"buffer_store_dwordx4 {V(160+4*i,4)}, v2, s[{sWS}:{sWS+3}], s{T0} offen sc1", opt=(i == 5))
                if i == 5:
                    k(f"s_mov_b64 exec, -1\n{L}:")
                else:
                    k(f"s_add_u32 s{T0}, s{T0}, 4096")
        for i in range(3):
            k.wait_lg(tr[2 * i + 1])
            self.t_out = k.vmem(f"buffer_store_dwordx4 {V(184+4*i,4)}, v8, s[{sWS}:{sWS+3}], s{sHB+i} offen sc1")
        self.stamp("p1done")

    def cmul(self, src, c0, sgn, dst, t):
        k = self.k
        n1 = "" if sgn > 0 else " neg_lo:[1,0,0] neg_hi:[1,0,0]"
        n2 = " neg_lo:[1,0,0] neg_hi:[1,0,0]" if sgn > 0 else ""
        for p in range(8):
            re, im, c, s = V(src + 2 * p, 2), V(src + 16 + 2 * p, 2), V(c0 + 2 * p, 2), V(c0 + 16 + 2 * p, 2)
            q = t + 4 * (p & 1)
            k(f"v_pk_mul_f32 {V(q,2)}, {re}, {c}")
            k(f"v_pk_mul_f32 {V(q+2,2)}, {im}, {c}")
            k(f"v_pk_fma_f32 {V(q,2)}, {im}, {s}, {V(q,2)}{n1}")
            k(f"v_pk_fma_f32 {V(q+2,2)}, {re}, {s}, {V(q+2,2)}{n2}")
            k(f"v_cvt_pk_bf16_f32 v{dst+p}, v{q}, v{q+1}")
            k(f"v_cvt_pk_bf16_f32 v{dst+8+p}, v{q+2}, v{q+3}")

    TW1, TW2, F64, F32 = 160, 192, 184, 232

    def sfft_setup(self):
        k = self.k
        TW1, TW2 = self.TW1, self.TW2
        k.begin()
        k(f"v_lshrrev_b32 v2, 3, v1\nv_and_b32 v5, 3, v2\nv_lshrrev_b32 v7, 2, v2\nv_lshl_add_u32 v5, v7, 3, v5")
        k(f"s_mov_b32 s{T3}, {8*PFB}\nv_mul_lo_u32 v5, v5, s{T3}")
        k(f"s_bfe_u32 s{T3}, s{sJOB}, 0x30001\nv_lshrrev_b32 v7, 1, v2\nv_and_b32 v2, 7, v1\nv_xor_b32 v7, v7, v2\nv_xor_b32 v7, s{T3}, v7")
        k(f"s_lshl_b32 s{T3}, s{sJOB}, 7\ns_mul_i32 s{T4}, s{sWAVE}, {2*PFB}\ns_add_u32 s{T3}, s{T3}, s{T4}\ns_add_u32 s{T3}, s{T3}, {WS_PF}")
        k(f"v_add_u32 v5, s{T3}, v5\nv_lshl_add_u32 v224, v7, 4, v5\nv_xor_b32 v7, 4, v7\nv_lshl_add_u32 v225, v7, 4, v5")
        self.pi_v(2, 4, 5)
        k(f"s_and_b32 s{T0}, s{sWAVE}, 1\ns_lshl_b32 s{T0}, s{T0}, 5")
        k(f"v_add_u32 v5, s{T0}, v2\nv_cvt_f32_u32 v5, v5\nv_mul_f32 v5, {fl(1/2048)}, v5")
        k(f"v_cvt_f32_u32 v2, v2\nv_mul_f32 v2, {fl(1/2048)}, v2")
        k(f"v_lshlrev_b32 v7, 3, v3\nv_cvt_f32_u32 v232, v7\nv_mul_f32 v232, v232, v5")
        k(f"v_add_u32 v7, s{T0}, v7\nv_cvt_f32_u32 v233, v7\nv_mul_f32 v233, v233, v2")
        k(f"s_lshr_b32 s{T1}, s{sWAVE}, 1\ns_lshl_b32 s{T1}, s{T1}, 8\ns_or_b32 s{T1}, s{T1}, s{sJOB}\ns_cmp_eq_u32 s{T1}, 0\ns_cselect_b32 s{T2}, 0.5, 1.0\ns_cmp_eq_u32 s{T1}, 160\ns_cselect_b32 s{T2}, 0.5, s{T2}")
        for i in range(16):
            g, r = i >> 2, i & 3
            d = 16 * (g >> 1) + 4 * (g & 1) + r
            k(f"v_fmamk_f32 v7, v5, {fl(float(d))}, v232")
            k(f"v_fmamk_f32 v234, v2, {fl(float(d))}, v233")
            k(f"v_cos_f32 v{TW1+i}, v7")
            k(f"v_sin_f32 v{TW1+16+i}, v7")
            k(f"v_cos_f32 v{TW2+i}, v234")
            k(f"v_sin_f32 v{TW2+16+i}, v234")
        for i in range(32):
            k(f"v_mul_f32 v{TW2+i}, s{T2}, v{TW2+i}")
        k(f"s_lshr_b32 s{T3}, s{sWAVE}, 1\ns_lshl_b32 s{T3}, s{T3}, 2\ns_and_b32 s{T4}, s{sWAVE}, 1")
        k(f"v_bfe_u32 v2, v1, 1, 3\nv_xor_b32 v2, s{T3}, v2\nv_lshlrev_b32 v5, 7, v4\nv_add_u32 v5, {L_INB}, v5")
        k(f"v_lshl_add_u32 v7, v2, 4, v5\nv_lshl_add_u32 v7, v3, 12, v7")
        k(f"s_lshl_b32 s{T3}, s{T4}, 14\nv_add_u32 v226, s{T3}, v7\nv_xor_b32 v227, 16, v226")
        k(f"s_xor_b32 s{T3}, s{T3}, 16384\nv_add_u32 v228, s{T3}, v7\nv_xor_b32 v229, 16, v228")
        k(f"v_xor_b32 v2, 2, v2\nv_xor_b32 v2, v3, v2\nv_lshl_add_u32 v230, v2, 4, v5\ns_lshl_b32 s{T3}, s{T4}, 12\nv_add_u32 v230, s{T3}, v230")
        return k.end()

    def sfft_consts(self):
        k = self.k
        k.begin()
        for i in range(18):
            with k.atomic():
                if i == 0:
                    k(f"s_and_b32 s{F6}, s{sWAVE}, 1\ns_mul_i32 s{F6}, s{F6}, 12288\ns_add_u32 s{F6}, s{F6}, {TAB_F64}")
                elif i in (4, 8, 16):
                    k(f"s_add_u32 s{F6}, s{F6}, 4096")
                elif i == 12:
                    k(f"s_movk_i32 s{F6}, {TAB_F32}")
                self.t_sc = k.vmem(f"buffer_load_dwordx4 {A(self.F64+4*i,4)}, v6, s[{sTAB}:{sTAB+3}], s{F6} offen offset:{(i%4)*1024}")
        return k.end()

    def gen_g(self):
        k = self.k
        k.begin()
        D, P, R2, R26, B = 112, 116, 122, 128, 136
        k(f"s_mul_i32 s{T0}, s{sJ}, 40\nv_and_b32 v158, 15, v1\nv_add_u32 v159, s{T0}, v158\nv_cvt_f32_u32 v{D}, v159\nv_add_f32 v{D+1}, 0x41800000, v{D}")
        k(f"v_and_b32 v159, 7, v158\nv_lshrrev_b32 v158, 3, v158\nv_mul_u32_u24 v158, 320, v158\nv_add3_u32 v159, v159, v158, s{T0}\nv_add_u32 v159, 32, v159\nv_cvt_f32_u32 v{D+2}, v159")
        k(f"s_and_b32 s{T0}, s{sWAVE}, 1\ns_mul_i32 s{T0}, s{T0}, 160\ns_lshr_b32 s{T1}, s{sWAVE}, 1\ns_add_u32 s{T0}, s{T0}, s{T1}")
        k(f"v_lshrrev_b32 v158, 4, v1\nv_lshl_add_u32 v158, v158, 3, s{T0}\nv_cvt_f32_u32 v{D+3}, v158")
        k(f"s_mul_i32 s{T0}, s{sWAVE}, 15360\ns_add_u32 s{T0}, s{T0}, {L_G}\nv_add_u32 v134, s{T0}, v6")
        for blk in range(3):
            k(f"v_mul_f32 v158, 0.5, v{D+blk}\nv_fract_f32 v158, v158\nv_mul_f32 v{D+blk}, {fl(1/640)}, v{D+blk}")
            k(f"v_cos_f32 v158, v158\nv_mul_f32 v159, v{D+3}, v{D+blk}\nv_cvt_pk_bf16_f32 v{160+blk}, 1.0, v158")
            k(f"v_fract_f32 v159, v159\nv_add_f32 v158, v{D+blk}, v{D+blk}\nv_mul_f32 v135, {fl(26.0)}, v{D+blk}")
            k(f"v_cos_f32 v{P+2*blk}, v159")
            k(f"v_sin_f32 v{P+2*blk+1}, -v159")
            k(f"v_cos_f32 v{R2+2*blk}, v158")
            k(f"v_sin_f32 v{R2+2*blk+1}, -v158")
            k(f"v_cos_f32 v{R26+2*blk}, v135")
            k(f"v_sin_f32 v{R26+2*blk+1}, -v135")
        for ks in range(5):
            for jd in range(4):
                for blk in range(3):
                    b = (B if ks & 1 == 0 else 172) + 4 * blk
                    p = V(P + 2 * blk, 2)
                    k(f"v_cvt_pk_bf16_f32 v{b+jd}, v{P+2*blk}, v{P+2*blk+1}")
                    if not (ks == 4 and jd == 3):
                        r = V((R2 if jd < 3 else R26) + 2 * blk, 2)
                        t = V(164 + 2 * blk, 2)
                        k(f"v_pk_mul_f32 {t}, {p}, {r} op_sel_hi:[1,0]")
                        k(f"v_pk_fma_f32 {p}, {p}, {r}, {t} op_sel:[1,1,0] op_sel_hi:[0,1,1] neg_lo:[1,0,0]")
                    if jd == 3:
                        if ks == 0:
                            k(f"v_cmp_eq_f32 vcc, 0, v{D+3}\ns_nop 1\nv_cndmask_b32 v{b}, v{b}, v{160+blk}, vcc")
                        k.ds(f"ds_write_b128 v134, {V(b,4)} offset:{1024*(3*ks+blk)}")
        return k.end()

    def w2reg(self, i, b):
        q = 5 * i + b
        return A(4 * q, 4) if q < 64 else V(232 + 4 * (q - 64), 4)

    def w2_loads(self, steps):
        k = self.k
        k.begin()
        for i in steps:
            for b in range(5):
                with k.atomic():
                    if b == 0:
                        k(f"s_add_u32 s{F5}, s{sR2}, {i}\ns_cmp_ge_u32 s{F5}, 14\ns_cselect_b32 s{F2}, 14, 0\ns_sub_u32 s{F5}, s{F5}, s{F2}")
                        k(f"s_cmp_ge_u32 s{F5}, s{sNS}\ns_mul_i32 s{F5}, s{F5}, {4*5120}\ns_cselect_b32 s{F5}, {WS_SIZE}, s{F5}\ns_add_u32 s{F5}, s{F5}, s{sW2B}")
                    if b == 4:
                        k(f"s_add_u32 s{F5}, s{F5}, 4096")
                    k.vmem(f"buffer_load_dwordx4 {self.w2reg(i,b)}, v6, s[{sWS}:{sWS+3}], s{F5} offen offset:{(b&3)*1024} sc1")
        return k.end()

    def gemm1(self, nb, job):
        k = self.k
        o = self.opt
        F1R = [(8, 12), (9, 13), (10, 14), (11, 15)]

        def cap(f):
            k.begin()
            f()
            return k.end()
        tok = {}

        def reads(c, t, bs):
            slot = c % 5
            st, off0 = slot // 2, (slot % 2) * SLOT
            out = []
            for bi in range(nb):
                k.begin()
                if bi == 0:
                    k.ds(f"ds_read_b128 {V(112+4*bs,4)}, v{128+8*st+t} offset:{off0}")
                for jj in range(2):
                    tok[c, t, bi] = k.ds(f"ds_read_b64_tr_b16 {V(80+16*bs+4*bi+2*jj,2)}, v{132+8*st+bi} offset:{off0 + t*2048 + jj*512}")
                out.append(k.end())
            return out

        vq = []
        for c in range(o["P1DMA"], 10):
            vq += [(max(0, c - 3) if c >= 5 else 0, u) for u in self.dma_chunk(c)]

        def f1i():
            with k.atomic():
                k(f"v_mul_u32_u24 v8, {FS}, v1\nv_add_u32 v8, {WS_F1}, v8")
                for i in range(1, 4):
                    k(f"v_add_u32 v{8+i}, {64*FS*i}, v8")
                self.t_f1 = self.poll_issue(F1R)

        def fs():
            with k.atomic():
                k(f"s_lshl_b32 s{F0}, s{sRB}, 7\ns_lshl_b32 s{F5}, s{sWAVE}, 5\ns_add_u32 s{F0}, s{F0}, s{F5}\ns_lshl_b32 s{F0}, s{F0}, 3")
                k(f"s_add_u32 s{F0}, s{F0}, {WS_ST}\nv_lshlrev_b32 v231, 3, v4\nv_add_u32 v231, s{F0}, v231")
                self.t_st = k.vmem(f"buffer_load_dwordx2 v[158:159], v231, s[{sWS}:{sWS+3}], 0 offen sc1")
        pos = len(vq) - 8 * o.get("F1BACK", 1)
        vq[pos:pos] = [(vq[pos][0], u) for u in cap(f1i) + cap(fs)]
        late = []
        if job:
            late += cap(self.inbox_dma)
            vq += [(0, u) for u in self.sfft_consts()]
        npre = o.get("W2PREJ", 2) if job else o.get("W2PRE", 5)
        late += self.w2_loads(range(npre))

        def epi_addr():
            k(f"s_lshl_b32 s{T0}, s{sWAVE}, 7\ns_add_u32 s{T0}, s{T0}, {L_CS}")
            k(f"v_lshrrev_b32 v2, 4, v1\nv_lshlrev_b32 v2, 4, v2\nv_and_b32 v5, 1, v1\nv_lshl_or_b32 v2, v5, 6, v2\nv_add_u32 v2, s{T0}, v2")
            k(f"s_lshl_b32 s{T0}, s{sRB}, 3\ns_lshl_b32 s{T1}, s{sWAVE}, 1\ns_add_u32 s{T0}, s{T0}, s{T1}\ns_mul_i32 s{T0}, s{T0}, 55296")
            k(f"s_lshl_b32 s{T1}, s{sU0}, 10\ns_add_u32 s{T0}, s{T0}, s{T1}\ns_add_u32 s{T0}, s{T0}, {WS_H}")
            k("v_bfe_u32 v7, v1, 4, 1\nv_mul_u32_u24 v7, 55296, v7\nv_and_b32 v5, 15, v1\nv_lshl_add_u32 v7, v5, 4, v7\nv_lshl_add_u32 v7, v3, 8, v7")
            k(f"v_lshlrev_b32 v5, 4, v3\nv_add_u32 v5, {L_CS}, v5")
            for bi in range(nb):
                k(f"s_lshl_b32 s{T2}, s{sBID+bi}, 10\ns_add_u32 s{sHB+bi}, s{T2}, s{T0}\ns_lshl_b32 s{sBID+bi}, s{sBID+bi}, 7")
        chore = (self.sfft_setup() if job else []) + cap(epi_addr)
        nchore = len(chore)

        k.wait_vm(self.t_chunk[0])
        k("s_barrier")
        for g in reads(0, 0, 0):
            k.put(g)
        step = 0
        done_f1 = False
        for c in range(10):
            for t in range(4):
                bs = step & 1
                rd = [[] for _ in range(nb)]
                extra = []
                it = c
                if t < 3:
                    rd = reads(c, t + 1, bs ^ 1)
                elif c < 9:
                    it = c + 1
                    k.wait_vm(self.t_chunk[c + 1])
                    if c + 1 == o["FLAG_AT"]:
                        k.wait_vm(self.t_out)
                    k("s_barrier")
                    self.stamp(f"B{c+1}") if c + 1 in (1, 7) else None
                    rd = reads(c + 1, 0, bs ^ 1)
                    if c + 1 == o["FLAG_AT"]:
                        extra += cap(lambda: self.flag_store(f"s_mul_i32 s{F0}, s{sC}, {FS}\ns_add_u32 s{F0}, s{F0}, {WS_F1}", F0, 8))
                    if c + 1 == o.get("F1CHK", 7):
                        extra += cap(lambda: self.poll_check(F1R, self.t_f1))
                        done_f1 = True
                nv = o["NV0"] if c < 2 else o["NV"] if not done_f1 else o.get("NVL", 2)
                vm = []
                if done_f1 and not extra and job:
                    while len(vm) < nv and len(late) > 5 * npre:
                        vm.append(late.pop(0))
                while len(vm) < nv and vq and vq[0][0] <= it:
                    vm.append(vq.pop(0)[1])
                if done_f1 and not extra:
                    while len(vm) < nv and late:
                        vm.append(late.pop(0))
                want = nchore * (step + 1) // 39
                ch = []
                while chore and nchore - len(chore) < want:
                    ch.append(chore.pop(0))
                gaps = [list(x) for x in rd]
                gaps[0].append([("i", f"v_mfma_f32_16x16x32_bf16 v[120:123], {V(80+16*bs,4)}, v[124:127], {'0' if step == 0 else 'v[120:123]'}")])
                used = set()
                for i, u in enumerate(vm):
                    gi = nb - 1 - (len(vm) - 1 - i) * nb // max(len(vm), 2) if len(vm) <= nb else i * nb // len(vm)
                    if gi not in used and len(u) > 1 and u[-1][0] == "vm" and all(x[0] == "i" and x[1].startswith("s_") for x in u[:-1]):
                        gaps[gi] = [u[:-1]] + gaps[gi] + [u[-1:]]
                    else:
                        gaps[gi].append(u)
                    used.add(gi)
                gaps[nb - 1] = extra + gaps[nb - 1]
                last = 0
                for u in ch:
                    gi = min(range(last, nb), key=lambda g: sum(k.ucost(x) for x in gaps[g]) - (24 if g == 0 else 0))
                    last = gi
                    gaps[gi].append(u)
                for bi in range(nb):
                    D = V(16 + 16 * bi, 16)
                    k.wait_lg(tok[c, t, bi])
                    k(f"v_mfma_f32_32x32x16_bf16 {D}, {V(80+16*bs+4*bi,4)}, {V(112+4*bs,4)}, {'0' if step == 0 else D}")
                    k.put(gaps[bi])
                step += 1
        assert not chore and done_f1
        rest = [u for _, u in vq] + late
        self.stamp("g1mm")
        with k.atomic():
            k("s_mov_b32 exec_lo, 0x00030003\ns_mov_b32 exec_hi, 0x00030003")
            k.ds("ds_write_b128 v2, v[120:123]")
            k("s_mov_b64 exec, -1")
        for bi in range(nb):
            k(f"v_add_u32 v{9+bi}, s{sBID+bi}, v5")
        L, Ld = k.lab("L_st"), k.lab("L_std")
        with k.atomic():
            k.wait_vm(self.t_st)
            k(f"s_mov_b32 s{sPOLL}, 0")
            k(f"{L}:")
            k(f"v_cmp_ne_u32 vcc, s{sTAG}, v159")
            k(f"s_add_u32 s{sPOLL}, s{sPOLL}, 1")
            k(f"s_cmp_eq_u64 vcc, 0\ns_cbranch_scc1 {Ld}")
            k(f"buffer_load_dwordx2 v[158:159], v231, s[{sWS}:{sWS+3}], 0 offen sc1")
            k("s_waitcnt vmcnt(0)")
            k(f"s_cmp_lt_u32 s{sPOLL}, {SPIN_MAX}\ns_cbranch_scc1 {L}")
            k(f"{Ld}:")
        k("v_lshlrev_b32 v158, 16, v158")
        k.drain_lg()
        k("s_barrier")
        toks = {}

        def csr(bi):
            toks[bi] = [k.ds(f"ds_read_b128 {V(112+16*(bi&1)+4*g,4)}, v{9+bi} offset:{32*g}") for g in range(4)]
        csr(0)
        csr(1)
        for bi in range(nb):
            cb = 112 + 16 * (bi & 1)
            pk = 80 + 8 * bi
            for gg in range(2):
                k.wait_lg(toks[bi][2 * gg + 1])
                for r in range(0, 8, 2):
                    i = 8 * gg + r
                    k(f"v_pk_fma_f32 {V(16+16*bi+i,2)}, v[158:159], {V(cb+i,2)}, {V(16+16*bi+i,2)} op_sel_hi:[0,1,1] neg_lo:[1,0,0] neg_hi:[1,0,0]")
                for r in range(0, 8, 2):
                    i = 8 * gg + r
                    k(f"v_cvt_pk_bf16_f32 v{pk+i//2}, v{16+16*bi+i}, v{17+16*bi+i}")
                for r in range(0, 8, 2):
                    i = 8 * gg + r
                    k(f"v_pk_max_i16 v{pk+i//2}, v{pk+i//2}, 0")
                self.t_h = k.vmem(f"buffer_store_dwordx4 {V(pk+4*gg,4)}, v7, s[{sWS}:{sWS+3}], s{sHB+bi} offen offset:{512*gg} sc1")
            if bi + 2 < nb:
                csr(bi + 2)
        self.stamp("g1done")
        return npre, rest

    def fh_store(self):
        pre = f"s_lshl_b32 s{T0}, s{sRB}, 4\ns_and_b32 s{T1}, s{sXCD}, 1\ns_lshl_b32 s{T1}, s{T1}, 3\ns_add_u32 s{T0}, s{T0}, s{T1}\ns_and_b32 s{T1}, s{sIDX}, 7\ns_add_u32 s{T0}, s{T0}, s{T1}\n"
        pre += f"s_mul_i32 s{T0}, s{T0}, {FS}\ns_add_u32 s{T0}, s{T0}, {WS_FH}"
        self.flag_store(pre, T0, 8)
        self.stamp("fh")

    def middle_nojob(self, npre, rest):
        k = self.k
        o = self.opt
        rest = rest + self.w2_loads(range(npre, 14))
        left = k.weave(self.gen_g(), rest, interval=o.get("W2I", 80), tail=False)
        n1 = o.get("WFH", 4)
        k.put(left[:n1])
        k.wait_vm(self.t_h)
        k.drain_lg()
        k("s_barrier")
        self.fh_store()
        k.put(left[n1:])

    def middle_job(self, npre, rest):
        k = self.k
        o = self.opt
        k.put(rest)
        pre = self.w2_loads(range(npre, 9))
        left = self.sfft_body(pre)
        post = left + self.w2_loads(range(9, 14))
        left = k.weave(self.gen_g(), post, interval=o.get("W2I", 80), tail=False)
        n1 = o.get("WFZ", 4)
        k.put(left[:n1])
        k.wait_vm(self.t_z)
        k.drain_lg()
        k("s_barrier")
        self.flag_store(f"s_mul_i32 s{T0}, s{sJOB}, {FS}\ns_add_u32 s{T0}, s{T0}, {WS_FZ}", T0, 8)
        self.stamp("fz")
        k.put(left[n1:])

    def inbox_dma(self):
        k = self.k
        for n in range(8):
            a = n & 3
            with k.atomic():
                if n == 0:
                    k(f"s_lshl_b32 s{F7}, s{sWAVE}, 13")
                k(f"s_add_u32 m0, s{F7}, {L_INB + n*1024}")
                k(f"s_mov_b32 s{F0}, {(8*(16*(a>>1)+4*(a&1)) + (n>>2))*PFB}")
                self.t_in = k.vmem(f"buffer_load_dwordx4 v{224+(a&1)}, s[{sWS}:{sWS+3}], s{F0} offen sc1 lds")

    def sfft_body(self, fill):
        k = self.k
        o = self.opt
        DAT, ACT, ACX, TM = 16, 48, 80, 112
        TW1, TW2, F64, F32 = self.TW1, self.TW2, self.F64, self.F32
        k.wait_vm(self.t_in)
        k.wait_vm(self.t_sc)
        k("s_barrier")
        self.stamp("inbox")
        k.begin()
        toks = []
        for tau in range(4):
            for part in range(2):
                toks.append(k.ds(f"ds_read_b128 {V(DAT+16*part+4*tau,4)}, v{226+2*(tau>>1)+part} offset:{(tau&1)*8192}"))
        Fr, Fi, NFi = F64, F64 + 16, F64 + 32
        R, Im = V(ACT, 16), V(ACT + 16, 16)
        for tau in range(4):
            k.wait_lg(toks[2 * tau], est=(60 if tau == 0 else 0))
            k(f"v_mfma_f32_32x32x16_bf16 {R}, {V(DAT+4*tau,4)}, {A(Fr+4*tau,4)}, {'0' if tau == 0 else R}")
            k(f"v_mfma_f32_32x32x16_bf16 {Im}, {V(DAT+4*tau,4)}, {A(Fi+4*tau,4)}, {'0' if tau == 0 else Im}")
            k.wait_lg(toks[2 * tau + 1])
            k(f"v_mfma_f32_32x32x16_bf16 {R}, {V(DAT+16+4*tau,4)}, {A(NFi+4*tau,4)}, {R}")
            k(f"v_mfma_f32_32x32x16_bf16 {Im}, {V(DAT+16+4*tau,4)}, {A(Fr+4*tau,4)}, {Im}")
        tw = [k.ds(f"ds_read_b128 {V(DAT+16+4*g,4)}, v230 offset:{g*8192}") for g in range(4)]
        k(f"s_lshl_b32 s{T3}, s{sWAVE}, 12\ns_add_u32 s{T3}, s{T3}, {L_EXC}\nv_add_u32 v120, s{T3}, v6\nv_xor_b32 v121, 4096, v120")
        self.cmul(ACT, TW1, +1, DAT, TM)
        fr, fi, nfi = F32, F32 + 8, F32 + 16
        XR, XI = V(ACX, 16), V(ACX + 16, 16)
        fst = True
        k.wait_lg(tw[-1])
        un = [f"v_lshlrev_b32 v{ACT+i}, 16, v{DAT+16+i}\nv_and_b32 v{ACT+16+i}, 0xffff0000, v{DAT+16+i}" for i in range(16)]
        for t in range(2):
            for (dat, cre, cim) in ((DAT, fr, fi), (DAT + 8, nfi, fr)):
                k(f"v_mfma_f32_32x32x16_bf16 {XR}, {A(cre+4*t,4)}, {V(dat+4*t,4)}, {'0' if fst else XR}")
                k(un.pop(0)), k(un.pop(0))
                k(f"v_mfma_f32_32x32x16_bf16 {XI}, {A(cim+4*t,4)}, {V(dat+4*t,4)}, {'0' if fst else XI}")
                k(un.pop(0)), k(un.pop(0))
                fst = False
        self.cmul(ACX, ACT, -1, DAT, TM)
        k.begin()
        self.pi_v(122, 4, 123)
        k(f"s_and_b32 s{T3}, s{sJOB}, 1\ns_bfe_u32 s{T4}, s{sJOB}, 0x10002\ns_lshl_b32 s{T4}, s{T4}, 1\ns_or_b32 s{T3}, s{T3}, s{T4}")
        k(f"s_and_b32 s{T4}, s{sWAVE}, 1\ns_lshl_b32 s{T4}, s{T4}, 1\ns_xor_b32 s{T3}, s{T3}, s{T4}\ns_lshl_b32 s{T3}, s{T3}, 5")
        k(f"s_lshr_b32 s{T4}, s{sWAVE}, 1\ns_mul_i32 s{T4}, s{T4}, {ZSTU}\ns_add_u32 s{T4}, s{T4}, {L_ZST}")
        k(f"v_mul_u32_u24 v122, 272, v122\nv_lshl_add_u32 v122, v3, 4, v122\nv_add_u32 v122, s{T4}, v122")
        k(f"s_xor_b32 s{T6}, s{T3}, 32\nv_add_u32 v123, s{T6}, v122\nv_add_u32 v122, s{T3}, v122")
        k(f"s_and_b32 s{T3}, s{sWAVE}, 1\ns_mul_i32 s{T6}, s{T3}, {16*272}\ns_add_u32 s{T4}, s{T4}, s{T6}")
        k(f"v_lshrrev_b32 v124, 4, v1\nv_mul_u32_u24 v124, 272, v124\nv_and_b32 v125, 15, v1\nv_lshl_add_u32 v124, v125, 4, v124\nv_add_u32 v124, s{T4}, v124")
        k(f"s_lshr_b32 s{T4}, s{sWAVE}, 1\ns_mul_i32 s{T4}, s{T4}, 160\ns_add_u32 s{T4}, s{T4}, s{sJOB}\ns_lshl_b32 s{T4}, s{T4}, 13")
        k(f"s_cmp_eq_u32 s{sJOB}, 160\ns_cselect_b32 s{T4}, 128, s{T4}\ns_lshl_b32 s{T3}, s{T3}, 12\ns_add_u32 s{T4}, s{T4}, s{T3}\ns_add_u32 s{T4}, s{T4}, {WS_Z}")
        k(f"s_mul_i32 s{T1}, s{sJOB}, 2\ns_lshr_b32 s{T2}, s{sWAVE}, 1\ns_add_u32 s{T1}, s{T1}, s{T2}")
        k(f"s_cmp_eq_u32 s{T1}, 0\ns_cselect_b32 s{sEX}, 0x00ff00ff, -1\ns_cmp_eq_u32 s{T1}, 320\ns_cselect_b32 s{sEX}, 0x00ff00ff, s{sEX}\ns_mov_b32 s{sEX+1}, s{sEX}")
        k(f"s_cmp_eq_u32 s{T1}, 321\ns_cselect_b32 s{T4}, {WS_SIZE}, s{T4}")
        ad = k.end()
        fst = True
        for t in range(2):
            for (dat, cre, cim) in ((DAT, fr, nfi), (DAT + 8, fi, fr)):
                k(f"v_mfma_f32_32x32x16_bf16 {R}, {V(dat+4*t,4)}, {A(cre+4*t,4)}, {'0' if fst else R}")
                k.put(ad[:2]); ad = ad[2:]
                k(f"v_mfma_f32_32x32x16_bf16 {Im}, {V(dat+4*t,4)}, {A(cim+4*t,4)}, {'0' if fst else Im}")
                k.put(ad[:1]); ad = ad[1:]
                fst = False
        k.put(ad)
        self.cmul(ACT, TW2, -1, DAT, TM)
        for q in range(4):
            k.ds(f"ds_write_b128 v120, {V(DAT+4*q,4)} offset:{1024*q}")
        n = 0
        for t in range(2):
            for (dat, cre, cim) in ((DAT, Fr, NFi), (DAT + 8, Fi, Fr)):
                k(f"v_mfma_f32_32x32x16_bf16 {XR}, {A(cre+4*t,4)}, {V(dat+4*t,4)}, {'0' if n == 0 else XR}")
                k(f"v_mfma_f32_32x32x16_bf16 {XI}, {A(cim+4*t,4)}, {V(dat+4*t,4)}, {'0' if n == 0 else XI}")
                if n == 1:
                    with k.atomic():
                        k.drain_lg()
                        k.wait_vm(self.t_h)
                        k("s_barrier")
                    for q in range(4):
                        k.ds(f"ds_read_b128 {V(DAT+16+4*q,4)}, v121 offset:{1024*q}")
                    if not o.get("FHE"):
                        self.fh_store()
                n += 1
        k.drain_lg()
        for t in range(2):
            for (dat, cre, cim) in ((DAT + 16, Fr, NFi), (DAT + 24, Fi, Fr)):
                k(f"v_mfma_f32_32x32x16_bf16 {XR}, {A(cre+8+4*t,4)}, {V(dat+4*t,4)}, {XR}")
                k(f"v_mfma_f32_32x32x16_bf16 {XI}, {A(cim+8+4*t,4)}, {V(dat+4*t,4)}, {XI}")
        main = k.end()
        left = k.weave(main, fill, start=o.get("SFS", 100), interval=o.get("SFI", 110), tail=False)
        for part in range(2):
            for gg in range(2):
                for j in range(4):
                    r = ACX + 16 * part + 8 * gg + 2 * j
                    k(f"v_cvt_pk_bf16_f32 v{DAT+8*part+4*gg+j}, v{r}, v{r+1}")
                k.ds(f"ds_write_b128 v{122+gg}, {V(DAT+8*part+4*gg,4)} offset:{128*part}")
        k.drain_lg()
        k("s_barrier")
        toks = [k.ds(f"ds_read_b128 {V(DAT+16+4*n,4)}, v124 offset:{4*272*n}") for n in range(4)]
        for n in range(4):
            k.wait_lg(toks[n])
            with k.atomic():
                k(f"s_mov_b64 exec, s[{sEX}:{sEX+1}]")
                self.t_z = k.vmem(f"buffer_store_dwordx4 {V(DAT+16+4*n,4)}, v6, s[{sWS}:{sWS+3}], s{T4} offen offset:{1024*n} sc1")
                k("s_mov_b64 exec, -1")
        self.stamp("zst")
        return left

    def tail(self):
        k = self.k
        o = self.opt
        ACC, HB, XR_, EO, ZB = 16, 96, 196, 160, 180
        HD = o['HD']
        NBUF = HD + 1
        k(f"s_lshr_b32 s{T0}, s{sRB2}, 1\ns_lshl_b32 s{T0}, s{T0}, 4\nv_and_b32 v7, 15, v1\nv_add_u32 v7, s{T0}, v7\nv_mul_u32_u24 v7, {FS}, v7\nv_add_u32 v7, {WS_FH}, v7")
        tfh = self.poll_issue([(7, 14)])
        k(f"s_lshl_b32 s{T0}, s{sWAVE}, 9\ns_add_u32 s{T0}, s{T0}, s{sRB2}\ns_mul_i32 s{T0}, s{T0}, 1280\ns_mul_i32 s{T1}, s{sJ}, 80\ns_add_u32 s{T0}, s{T0}, s{T1}")
        k(f"v_and_b32 v10, 15, v1\nv_mul_u32_u24 v11, 40960, v10\nv_add_u32 v11, s{T0}, v11\nv_lshrrev_b32 v12, 4, v1\nv_lshl_add_u32 v8, v12, 3, v11")
        k(f"v_and_b32 v13, 1, v12\nv_lshl_add_u32 v9, v13, 3, v11\nv_lshrrev_b32 v13, 1, v12\nv_mul_u32_u24 v13, 640, v13\nv_add3_u32 v9, v9, v13, 64")
        offs = (0, 32, 640, 672, 0)
        k(f"v_lshlrev_b32 v5, 3, v10")
        for nb in range(4):
            k(f"s_add_u32 s{T0}, s{sWAVE}, {nb}\ns_and_b32 s{T0}, s{T0}, 3\ns_lshl_b32 s{T5}, s{sRB2}, 2\ns_add_u32 s{T0}, s{T0}, s{T5}")
            k(f"s_mul_i32 s{T0}, s{T0}, 55296\ns_lshl_b32 s{T5}, s{sWAVE}, 10\ns_add_u32 s{T0}, s{T0}, s{T5}\ns_add_u32 s{T0}, s{T0}, {WS_H}")
            k(f"v_add_u32 v{10+nb}, s{T0}, v6")
        k(f"v_mul_u32_u24 v208, {FS}, v1\nv_add_u32 v208, {WS_FZ}, v208\nv_add_u32 v209, {64*FS}, v208\nv_add_u32 v210, 128, v1\nv_min_u32 v210, 160, v210\nv_mul_u32_u24 v210, {FS}, v210\nv_add_u32 v210, {WS_FZ}, v210")
        k(f"s_lshl_b32 s{T0}, s{sRB2}, 8\ns_lshl_b32 s{T1}, s{sWAVE}, 15\ns_add_u32 s{T0}, s{T0}, s{T1}\ns_add_u32 s{T0}, s{T0}, {WS_Z}")
        k(f"v_lshrrev_b32 v211, 4, v1\nv_lshlrev_b32 v211, 13, v211\nv_and_b32 v2, 15, v1\nv_lshl_add_u32 v211, v2, 4, v211\nv_add_u32 v211, s{T0}, v211")
        k(f"v_lshrrev_b32 v2, 4, v1\nv_bfe_u32 v212, v1, 2, 2\nv_lshlrev_b32 v213, 10, v2\nv_lshl_add_u32 v213, v212, 7, v213")
        k(f"v_lshrrev_b32 v212, 1, v212\nv_and_b32 v2, 1, v2\nv_lshl_or_b32 v212, v2, 1, v212\nv_xor_b32 v212, s{sWAVE}, v212\nv_lshl_add_u32 v213, v212, 5, v213")
        k(f"v_and_b32 v2, 3, v1\nv_lshl_add_u32 v213, v2, 3, v213\nv_add_u32 v212, {L_Z}, v213\nv_add_u32 v213, {L_Z + 40960}, v213")
        k(f"v_add_u32 v214, {L_G}, v6")
        k(f"s_lshl_b32 s{F3}, s{sWAVE}, 10")
        self.poll_check([(7, 14)], tfh)
        self.stamp("fhok")
        th = {}

        def cap(f):
            k.begin()
            f()
            return k.end()

        def hload(i):
            k.begin()
            for nb in range(4):
                with k.atomic():
                    if nb == 0:
                        k(f"s_add_u32 s{F0}, s{sR2}, {i}\ns_cmp_ge_u32 s{F0}, 14\ns_cselect_b32 s{F2}, 14, 0\ns_sub_u32 s{F0}, s{F0}, s{F2}")
                        k(f"s_cmp_ge_u32 s{F0}, s{sNS}\ns_cselect_b32 s{F0}, 0, s{F0}\ns_lshl_b32 s{F0}, s{F0}, 12")
                    th[i] = k.vmem(f"buffer_load_dwordx4 {V(HB+16*(i%NBUF)+4*nb,4)}, v{10+nb}, s[{sWS}:{sWS+3}], s{F0} offen sc1")
            return k.end()
        for i in range(HD):
            k.put(hload(i))
        FZR = [(208, 215), (209, 216), (210, 217)]
        tz = []

        def zd():
            for ks in range(20):
                with k.atomic():
                    k(f"s_add_u32 m0, s{F3}, {L_Z + ks*4096}\ns_mov_b32 s{F1_}, {ks*16*8192}")
                    tz.append(k.vmem(f"buffer_load_dwordx4 v211, s[{sWS}:{sWS+3}], s{F1_} offen sc1 lds"))
        zq = cap(zd)

        def xres():
            with k.atomic():
                k(f"s_lshl_b32 s{T0}, s{sRB2}, 6\ns_lshl_b32 s{T1}, s{sWAVE}, 4\ns_add_u32 s{T0}, s{T0}, s{T1}\ns_lshl_b32 s{T0}, s{T0}, 3\ns_add_u32 s{T0}, s{T0}, {WS_ST}")
                k.vmem(f"buffer_load_dword v206, v5, s[{sWS}:{sWS+3}], s{T0} offen sc1")
            for b in range(5):
                self.t_xr = k.vmem(f"buffer_load_dwordx2 {V(XR_+2*b,2)}, v{9 if b == 4 else 8}, s[{sX}:{sX+3}], 0 offen offset:{offs[b]}")
        xq = cap(xres)
        FZ = o["FZAT"]
        for i in range(14):
            fill = []
            if i + HD < 14:
                fill += hload(i + HD)
            if 1 <= i <= 6:
                fill.append(xq.pop(0))
            if i == FZ:
                fill += cap(lambda: setattr(self, "t_fz", self.poll_issue(FZR)))
            if i == FZ + 2:
                fill = cap(lambda: self.poll_check(FZR, self.t_fz)) + fill
            if i >= FZ + 2:
                nz = o.get('NZ', 5)
                fill += zq[:nz]
                zq = zq[nz:]
            rd = []
            if 1 <= i <= 12:
                rd = cap(lambda: [k.ds(f"ds_read_b128 {A(4*q,4)}, v214 offset:{1024*q}") for q in range(5 * (i - 1), 5 * i)])
            k.wait_vm(th[i])
            pos = {}
            for n_, u in enumerate(fill):
                pos.setdefault(1 + n_ * 19 // max(len(fill), 1), []).append(u)
            for n_, u in enumerate(rd):
                pos.setdefault(2 + 4 * n_, []).append(u)
            n = 0
            for nb in range(4):
                for b in range(5):
                    D = V(ACC + 20 * nb + 4 * b, 4)
                    k(f"v_mfma_f32_16x16x32_bf16 {D}, {self.w2reg(i,b)}, {V(HB+16*(i%NBUF)+4*nb,4)}, {'0' if i == 0 else D}")
                    n += 1
                    k.put(pos.pop(n, []))
            assert not pos
        self.stamp("g2")
        L = k.lab("L_gen")
        with k.atomic():
            k(f"s_cmp_lg_u32 s{sC}, 0\ns_cbranch_scc1 {L}")
            self.flag_store(f"s_mov_b32 s{T0}, {WS_GEN}", T0, 10)
            k(f"{L}:")
        for nb in range(1, 4):
            k(f"s_add_u32 s{T0}, s{sWAVE}, {nb}\ns_and_b32 s{T0}, s{T0}, 3\ns_mul_i32 s{T0}, s{T0}, 15360\ns_add_u32 s{T0}, s{T0}, {L_RED + (nb-1)*5120}")
            k(f"v_add_u32 v{10+nb}, s{T0}, v6")
        k(f"s_mul_i32 s{T0}, s{sWAVE}, 15360\ns_add_u32 s{T0}, s{T0}, {L_RED}\nv_add_u32 v10, s{T0}, v6")
        k.put(zq)

        def zread(ks):
            base, off = (212, ks * 4096) if ks < 10 else (213, (ks - 10) * 4096)
            return [k.ds(f"ds_read_b64_tr_b16 {V(ZB+4*(ks&3)+2*jj,2)}, v{base} offset:{off+512*jj}") for jj in range(2)][-1]

        def idft(k0, k1, valu, per):
            tk = {}
            for ks in range(k0, k0 + 3):
                tk[ks] = zread(ks)
            for ks in range(k0, k1):
                k.wait_lg(tk[ks])
                P = ks // 10
                for blk in range(3):
                    d = EO + (16 if blk == 2 else 8 * P + 4 * blk)
                    first = (ks % 10 == 0) if blk < 2 else ks == 0
                    k(f"v_mfma_f32_16x16x32_bf16 {V(d,4)}, {A(4*(3*ks+blk),4)}, {V(ZB+4*(ks&3),4)}, {'0' if first else V(d,4)}")
                    if blk == 0 and ks + 3 < k1:
                        tk[ks + 3] = zread(ks + 3)
                    else:
                        k.put(valu[:per])
                        del valu[:per]
            k.put(valu)
        k.wait_vm(tz[9])
        k.drain_lg()
        k("s_barrier")
        k.begin()
        for nb in range(1, 4):
            for b in range(5):
                k.ds(f"ds_write_b128 v{10+nb}, {V(ACC+20*nb+4*b,4)} offset:{1024*b}")
        idft(0, 10, k.end(), 1)
        k("v_and_b32 v14, 0xffff0000, v206\nv_rcp_f32 v14, v14")
        for i in range(10):
            k(f"v_lshlrev_b32 v{ACC+20+2*i}, 16, v{XR_+i}\nv_and_b32 v{ACC+21+2*i}, 0xffff0000, v{XR_+i}")
        k(f"v_mul_f32 v15, {fl(-math.log2(math.e))}, v14\nv_mul_f32 v14, {fl(2.0/(640*2048))}, v14")
        k.wait_vm(tz[19])
        k.drain_lg()
        k("s_barrier")
        self.stamp("red")
        toks = [k.ds(f"ds_read_b128 {V(HB+4*q,4)}, v10 offset:{1024*q}") for q in range(15)]
        k.begin()
        for s_ in range(3):
            for i in range(20):
                k(f"v_add_f32 v{ACC+i}, v{ACC+i}, v{HB+20*s_+i}")
        idft(10, 20, k.end(), 3)
        for i in range(0, 20, 2):
            k(f"v_pk_mul_f32 {V(HB+i,2)}, {V(ACC+i,2)}, v[14:15] op_sel:[0,1] op_sel_hi:[1,1]")
        for i in range(20):
            k(f"v_exp_f32 v{HB+i}, v{HB+i}")
        for i in range(0, 20, 2):
            k(f"v_pk_mul_f32 {V(ACC+i,2)}, {V(ACC+i,2)}, v[14:15] op_sel_hi:[1,0]")
        for i in range(0, 20, 2):
            k(f"v_pk_add_f32 {V(HB+i,2)}, {V(HB+i,2)}, 1.0 op_sel_hi:[1,0]")
        for i in range(20):
            k(f"v_rcp_f32 v{HB+i}, v{HB+i}")
        for i in range(0, 20, 2):
            k(f"v_pk_mul_f32 {V(ACC+i,2)}, {V(ACC+i,2)}, {V(HB+i,2)}")
        for b in range(5):
            for r in range(0, 4, 2):
                t = 10 + r
                if b < 4:
                    e, o_ = V(EO + 4 * (b & 1) + r, 2), V(EO + 8 + 4 * (b & 1) + r, 2)
                    k(f"v_pk_add_f32 {V(t,2)}, {e}, {o_}" + (" neg_lo:[0,1] neg_hi:[0,1]" if b >= 2 else ""))
                    src = V(t, 2)
                else:
                    src = V(EO + 16 + r, 2)
                k(f"v_pk_fma_f32 {V(t,2)}, {src}, {V(ACC+4*b+r,2)}, {V(ACC+20+4*b+r,2)}")
                k(f"v_cvt_pk_bf16_f32 v{XR_+2*b+r//2}, v{t}, v{t+1}")
            k.vmem(f"buffer_store_dwordx2 {V(XR_+2*b,2)}, v{9 if b == 4 else 8}, s[{sOUT}:{sOUT+3}], 0 offen offset:{offs[b]} {o.get('OST', '')}")

    def build(self):
        k = self.k
        self.startup()
        self.pre_chunks = 0
        for ch in self.opt.get("ORDER", "argb"):
            if ch == "a":
                self.setup_a()
            elif ch == "r":
                self.tlb_warm()
                self.role_loads()
            elif ch == "g":
                self.geometry()
            elif ch == "b":
                k.put(self.setup_b())
            elif ch == "c":
                k.put(self.dma_chunk(self.pre_chunks))
                self.pre_chunks += 1
        self.stamp("setup")
        self.phase1()
        Ln, Lw, Lg = k.lab("L_narrow"), k.lab("L_widejob"), k.lab("L_join")
        k(f"s_cmp_eq_u32 s{sWIDE}, 0\ns_cbranch_scc1 {Ln}")
        k(f"s_cmp_eq_u32 s{sC}, 0\ns_cbranch_scc1 {Lw}")
        snap = k.snapshot()
        tch = dict(self.t_chunk)
        self.middle_nojob(*self.gemm1(4, False))
        k(f"s_branch {Lg}")
        k(f"{Lw}:")
        k.restore(snap)
        self.t_chunk = dict(tch)
        self.middle_job(*self.gemm1(4, True))
        k(f"s_branch {Lg}")
        k(f"{Ln}:")
        k.restore(snap)
        self.t_chunk = dict(tch)
        self.middle_job(*self.gemm1(3, True))
        k(f"{Lg}:")
        k.all_opt()
        k.clear_lg()
        self.tail()
        self.finish()
        body = k.text(self.opt.get('ALIGN', 1), f'{KN}:\n.set tab_data, {KN}+0x12340\n.set tab_end, {KN}+0x23450\n')
        hdr = open("recurrent_scan__spectral_gfnet__dense_activation_relu__prompt.s.ref").read().split("; Override launch")[0]
        s = hdr + f"; @launch grid=(256,1,1) block=(256,1,1) lds={LDS_BYTES}\n"
        s += f'.amdgcn_target "amdgcn-amd-amdhsa--gfx950"\n.text\n.globl {KN}\n.p2align 8\n.type {KN},@function\n{KN}:\n'
        s += body
        s += ".p2align 8\n.type tab_data,@object\ntab_data:\n"
        for f in tables():
            u = bf16(f).reshape(-1).view(np.uint32)
            for i in range(0, 256, 8):
                s += ".long " + ",".join("0x%x" % x for x in u[i:i + 8]) + "\n"
        u = lane_table().reshape(-1)
        for i in range(0, len(u), 8):
            s += ".long " + ",".join("0x%x" % x for x in u[i:i + 8]) + "\n"
        s += f"tab_end:\n.size tab_data, {TAB_BYTES}\n"
        s += f""".section .rodata,"a"
.p2align 6
.amdhsa_kernel {KN}
  .amdhsa_next_free_vgpr 512
  .amdhsa_next_free_sgpr 102
  .amdhsa_accum_offset 256
  .amdhsa_group_segment_fixed_size 0
  .amdhsa_kernarg_size 72
  .amdhsa_user_sgpr_count 2
  .amdhsa_user_sgpr_kernarg_segment_ptr 1
  .amdhsa_system_sgpr_workgroup_id_x 1
.end_amdhsa_kernel
"""
        return s


if __name__ == "__main__":
    out = sys.argv[1] if len(sys.argv) > 1 else "k.s"
    stop = sys.argv[2] if len(sys.argv) > 2 and sys.argv[2] != "-" else None
    g = Gen(stop=stop, stamps=(len(sys.argv) > 3 and sys.argv[3] == "1"))
    open(out, "w").write(g.build())
    print("written", out, "nops inserted", fix_hazards.total, "align", getattr(align8, "stats", None), "stamps", g.stn)
```

```python
import math, sys
import numpy as np
from kf import *

KN = "recurrent_scan__spectral_gfnet__dense_activation_relu__prompt_kernel"

WS_GEN = 0
WS_F1 = 0x20000
WS_FH = 0x40000
WS_FZ = 0x80000
WS_ST = 0x10000
PFB = 161 * 128
WS_PF = 0x100000
WS_W2 = 0x700000
WS_H = 0xA00000
WS_Z = 0x1200000
WS_STAMP = 0x2000000
WS_SIZE = 268435456

SLOT = 32768
NSLOT = 4
L_OUT = 131072
L_RP = L_OUT + 162 * 128
L_XN = 98304
L_CT = L_XN + 10240
L_CS = 65536
L_XR = 147456
L_G = 0
L_RED = 0
L_Z = 65536
L_INB = 131072
L_EXC = 98304
L_ZST = 114688
ZSTU = 32 * 272
LDS_BYTES = 163840

sX, sWS, sWR, sWI, sW1, sW2, sOUT, sTAB = 4, 8, 12, 16, 20, 24, 28, 32
sRB, sU0, sVAR, sJOB, sRB2, sJ, sROT, sR2, sW2B, sXB, sW1B, sOB, sRPB, sXRB, sHB0, sFHO = range(36, 52)
sWAVE, sC, sXCD, sIDX, sTAG, sNS = range(52, 58)
sEX = 58
sST = 60
sM = 62
sWROW = 64
sBID = 64
sHB = 68
F0, F1_, F2, F3, F4, F5 = range(72, 78)
F6, F7 = 2, 3
sPOLL = 79
STAMP_REGS = list(range(80, 92)) + [78, 100, 101]
T0, T1, T2, T3, T4, T5, T6, T7 = range(92, 100)

SPIN_MAX = 200000


def sRI(i):
    return (list(range(12, 20)) + list(range(24, 28)) + [57])[i]


DEF_ST = 'x B0 B2 B4 B7 g1mm g1done inbox zst fz fhok g2 red'.split()


def pi_(m):
    return (m & ~12) | ((m & 4) << 1) | ((m & 8) >> 1)


def bf16(x):
    u = np.asarray(x, dtype=np.float32).view(np.uint32).astype(np.uint64)
    return (((u + 0x7FFF + ((u >> 16) & 1)) >> 16) & 0xFFFF).astype(np.uint16)


def tables():
    fr = []
    for part in range(2):
        for t in range(3):
            f = np.zeros((64, 8))
            for l in range(64):
                n, h = l & 31, l >> 5
                f1, e1 = n >> 1, n & 1
                for j in range(8):
                    Q = 4 * t + 2 * h + (j >> 2)
                    if Q >= 10 or n >= 22 or Q // 5 != e1:
                        continue
                    d1 = 4 * (Q % 5) + (j & 3)
                    th = 2 * math.pi * ((d1 * f1) % 20) / 20
                    f[l, j] = math.cos(th) if part == 0 else -math.sin(th)
            fr.append(f)
    for kind in range(3):
        for t in range(2):
            f = np.zeros((64, 8))
            for l in range(64):
                a = pi_(l & 31)
                for j in range(8):
                    b = 16 * t + 8 * (l >> 5) + j
                    th = 2 * math.pi * ((a * b) % 32) / 32
                    f[l, j] = [math.cos(th), -math.sin(th), math.sin(th)][kind]
            fr.append(f)
    for hb in range(2):
        for kind in range(3):
            for tau in range(4):
                t = tau ^ (2 * hb)
                f = np.zeros((64, 8))
                for l in range(64):
                    a = 32 * hb + pi_(l & 31)
                    for j in range(8):
                        b = 16 * t + 8 * (l >> 5) + j
                        th = 2 * math.pi * ((a * b) % 64) / 64
                        f[l, j] = [math.cos(th), -math.sin(th), math.sin(th)][kind]
                fr.append(f)
    return fr


def lane_table():
    t = np.zeros((4, 64, 16), np.uint32)
    for w in range(4):
        for l in range(64):
            h, n = l >> 5, l & 31
            f2 = pi_(n)
            for p in range(6):
                f1 = 4 * (p >> 1) + 2 * h + (p & 1)
                f = f1 + 20 * f2
                U = 322
                if f1 <= 10 and f <= 320:
                    U = f
                elif 1 <= f1 <= 9:
                    U = 640 - f
                line = U >> 1
                for part in range(2):
                    t[w, l, 6 * part + p] = L_OUT + line * 128 + ((4 * (U & 1) + part) ^ ((line >> 1) & 7)) * 16 + 4 * w
            t[w, l, 12] = 0x80008000 if f2 > 15 else 0
            t[w, l, 13] = L_XN + 2560 * w + 1280 * h + 8 * n
            kk, c, G = (l >> 2) & 3, l & 3, (l >> 4) & 1
            b = L_XN + 2560 * w + kk * 64 + (16 * G + 8 * (c & 1) + 4 * (c >> 1)) * 2
            t[w, l, 14] = b + 512 * h
            t[w, l, 15] = b
    return t[:, :, :12].reshape(4, 64, 3, 4).transpose(0, 2, 1, 3).copy()


def wg_geometry(wg):
    xcd, idx = wg & 7, wg >> 3
    c = xcd * 32 + idx
    rg, cg, cb = xcd >> 1, xcd & 1, idx & 7
    RB = rg * 4 + (idx >> 3)
    RB2 = rg * 8 + (idx >> 2)
    j = cg * 4 + (idx & 3)
    wide = cb < 3
    u0 = 4 * cb + 30 * cg if wide else (27 if (cg, cb) == (1, 3) else 3 * cb + 3 + 27 * cg)
    job = 160 if c == 0 else xcd * 20 + (idx >> 3) * 5 + cb - 3 if not wide else 0
    return xcd, idx, c, rg, cg, cb, RB, RB2, j, wide, u0, job


def wg_table(o):
    t = np.zeros((256, 16), np.uint32)
    for wg in range(256):
        xcd, idx, c, rg, cg, cb, RB, RB2, j, wide, u0, job = wg_geometry(wg)
        if o.get("G2MAP", 81) == 81:
            RB2, j = xcd * 4 + (idx >> 3), idx & 7
        if o.get("G2MAP", 81) == 24:
            RB2, j = (xcd >> 2) * 16 + (idx >> 1), (xcd & 3) * 2 + (idx & 1)
        rot = (cb + 8 * cg + 3 * RB) % 10 if o["ROT"] else 0
        r2 = (o.get("ROTJ", 0) * j + o.get("ROTR", 0) * RB2) % 13
        var = 0 if wide else 1 + (u0 & 1)
        t[wg] = [RB, u0, var, job, RB2, j, rot, r2, WS_W2 + j * 276480, 2 * RB * 1280, (u0 >> 1) * 128, WS_PF + c * PFB,
                 WS_W2 + (c >> 2) * 5120 + (c & 3) * 256 if c < 216 else WS_SIZE, RB2 * 1280 + 80 * j,
                 WS_H + RB * 8 * 55296 + u0 * 1024, WS_FH + (RB * 64 + (cg * 8 + cb) * 2) * o['FSH']]
    return t


def lane_table2():
    t = np.zeros((4, 64, 12), np.uint32)
    v = np.zeros((3, 4, 64, 4), np.uint32)
    for w in range(4):
        for l in range(64):
            h, n = l >> 5, l & 31
            u, m, kk, cc = l >> 4, l & 15, (l >> 2) & 3, l & 3
            for tt in range(4):
                t[w, l, tt] = w * 4096 + n * 128 + (((2 * tt + h) ^ ((n >> 1) & 7)) * 16)
            t[w, l, 4] = (16 * w + m) * 40960 + 8 * u
            t[w, l, 5] = (16 * w + m) * 40960 + 64 + 8 * (u & 1) + 640 * (u >> 1)
            for i in range(3):
                q = w + 4 * i
                jh, b = min(q // 5, 1), q % 5
                col = (0, 32, 640, 672)[b] + 8 * cc if b < 4 else 64 + 8 * (cc & 1) + 640 * (cc >> 1)
                t[w, l, 6 + i] = L_RP + kk * 1280 + 80 * (4 * jh + u) + col
                t[w, l, 9 + i] = (4 * jh + u) * 276480 + b * 1024 + m * 16 if q < 10 else WS_SIZE
            lane = (8 * h + kk) * 128 + ((l >> 4) & 1) * 32 + (cc & 1) * 16 + (cc >> 1) * 8
            for var in range(3):
                nb, hf0 = (4, 0) if var == 0 else (3, var - 1)
                for bi in range(4):
                    b = hf0 + (bi + w) % nb
                    v[var, w, l, bi] = 16384 + (b >> 1) * 8192 + lane + (((b & 1) ^ (kk >> 1)) * 64)
    return np.concatenate([t.reshape(4, 64, 3, 4).transpose(0, 2, 1, 3).reshape(-1), v.reshape(-1)])


TAB_F20, TAB_LC, TAB_L2, TAB_LV, TAB_WG = 0, 12 * 1024, 24 * 1024, 36 * 1024, 48 * 1024
TAB_BYTES = 64 * 1024


NOTES = """; One persistent workgroup per CU (generated by a script; straight-line code, three role variants):
;  1. layer norm + 640-point DFT (20 x 32 on MFMA) of 8 rows; transpose of 8 rows of W; repack of 8 rows of w2 -> d_ws
;  2. GEMM1 tile relu(x.w1 - mean * colsum(w1)) (1/std is applied at the end) -> d_ws
; Hand-offs: write-through stores, acknowledged, then a flag that holds a per-launch tag; readers poll (bounded) and bypass L1.
"""


class Gen:
    def __init__(self, stop=None, stamps=False, **opt):
        self.k = K()
        self.stop = stop
        self.stamps = stamps
        self.nst = 0
        self.stn = []
        self.opt = dict(FS1=16, FSH=16, FSZ=16, RPE=1, FLAG_AT=3, F1CHK=8, ROT=1, P1DMA=3, P1START=1000, F1AT=5, FZAT=8, NV0=4, NV=2, HD=4)
        self.opt.update(opt)

    def nt(self, key):
        return " nt" if key in self.opt.get("NT", "") else ""

    def stamp(self, name):
        if not self.stamps:
            return
        sel = self.opt.get("ST")
        if name not in ("start", "end") and ((sel and name not in sel.split()) or (not sel and name not in DEF_ST)):
            return
        k = self.k
        if name in self.stn:
            i = self.stn.index(name)
        else:
            i = len(self.stn)
            self.stn.append(name)
        with k.atomic():
            k(f"{'s_memtime' if self.stamps == 'cyc' else 's_memrealtime'} s[{sST}:{sST+1}]")
            k.drain_lg()
            k(f"s_mov_b32 s{STAMP_REGS[i]}, s{sST}")

    def pi_v(self, d, s, t):
        k = self.k
        k(f"v_and_b32 v{d}, 0x13, v{s}")
        k(f"v_bfe_u32 v{t}, v{s}, 2, 1")
        k(f"v_lshl_or_b32 v{d}, v{t}, 3, v{d}")
        k(f"v_bfe_u32 v{t}, v{s}, 3, 1")
        k(f"v_lshl_or_b32 v{d}, v{t}, 2, v{d}")

    def poll_issue(self, regs, opt=False):
        k = self.k
        return [k.vmem(f"buffer_load_dword v{dr}, v{ar}, s[{sWS}:{sWS+3}], 0 offen sc1", opt=opt) for ar, dr in regs][-1]

    def poll_check(self, regs, tok, wave0=False):
        k = self.k
        L, Ld = k.lab("L_poll"), k.lab("L_polld")
        with k.atomic():
            if wave0:
                snap = k.snapshot()
                k(f"s_cmp_lg_u32 s{sWAVE}, 0\ns_cbranch_scc1 {Ld}")
            k.wait_vm(tok)
            if wave0:
                k.restore(snap)
            k(f"s_mov_b32 s{sPOLL}, 0")
            k(f"{L}:")
            for i, (ar, dr) in enumerate(regs):
                if i == 0:
                    k(f"v_cmp_ne_u32 vcc, s{sTAG}, v{dr}")
                else:
                    k(f"v_cmp_ne_u32 s[{sM}:{sM+1}], s{sTAG}, v{dr}")
                    k(f"s_or_b64 vcc, vcc, s[{sM}:{sM+1}]")
            k(f"s_add_u32 s{sPOLL}, s{sPOLL}, 1")
            k("s_cmp_eq_u64 vcc, 0")
            k(f"s_cbranch_scc1 {Ld}")
            for ar, dr in regs:
                k(f"buffer_load_dword v{dr}, v{ar}, s[{sWS}:{sWS+3}], 0 offen sc1")
            k("s_waitcnt vmcnt(0)")
            k(f"s_cmp_lt_u32 s{sPOLL}, {SPIN_MAX}")
            k(f"s_cbranch_scc1 {L}")
            k(f"{Ld}:")

    def flag_store(self, pre, sreg, vtmp):
        k = self.k
        L = k.lab("L_fs")
        with k.atomic():
            k(f"s_cmp_lg_u32 s{sWAVE}, 0")
            k(f"s_cbranch_scc1 {L}")
            k(pre)
            k(f"v_mov_b32 v{vtmp}, s{sTAG}")
            k(f"v_mov_b32 v{vtmp+1}, 0")
            k("s_mov_b64 exec, 1")
            k.vmem(f"buffer_store_dword v{vtmp}, v{vtmp+1}, s[{sWS}:{sWS+3}], s{sreg} offen sc1", opt=True)
            k("s_mov_b64 exec, -1")
            k(f"{L}:")

    def finish(self):
        k = self.k
        k("L_fin:")
        if self.opt.get("DELAY"):
            k(f"s_mov_b32 s{T0}, 0\nL_dl:")
            for i in range(50):
                k("v_add_f32 v2, v2, v2")
            k(f"s_add_u32 s{T0}, s{T0}, 1\ns_cmp_lt_u32 s{T0}, {self.opt['DELAY']}\ns_cbranch_scc1 L_dl")
        if self.opt.get("DBG"):
            k("s_waitcnt vmcnt(0)\ns_memrealtime s[80:81]\ns_memtime s[82:83]\ns_waitcnt lgkmcnt(0)")
            k(f"s_cmp_lg_u32 s{sWAVE}, 0\ns_cbranch_scc1 L_end")
            k("s_mov_b32 s86, 256\ns_mov_b32 s87, 0x20000\ns_not_b32 s90, s90\ns_sub_u32 s82, s82, s88")
            k("v_mov_b32 v2, 0\nv_mov_b32 v3, s90\nv_mov_b32 v4, s80\nv_mov_b32 v5, s82\ns_mov_b64 exec, 1")
            k("buffer_atomic_umax v3, v2, s[84:87], 0 offen\nbuffer_atomic_umax v4, v2, s[84:87], 0 offen offset:4\nbuffer_atomic_umax v5, v2, s[84:87], 0 offen offset:8")
        if self.stamps:
            self.stamp("end")
            k(f"s_cmp_lg_u32 s{sWAVE}, 0\ns_cbranch_scc1 L_end")
            k(f"s_lshl_b32 s{T0}, s{sIDX}, 3\ns_add_u32 s{T0}, s{T0}, s{sXCD}\ns_lshl_b32 s{T0}, s{T0}, 8\ns_add_u32 s{T0}, s{T0}, {WS_STAMP}\nv_mov_b32 v2, 0")
            k("s_mov_b64 exec, 1")
            for i in range(len(self.stn)):
                k(f"v_mov_b32 v3, s{STAMP_REGS[i]}")
                k(f"buffer_store_dword v3, v2, s[{sWS}:{sWS+3}], s{T0} offen offset:{4*i}")
        k("L_end:")
        k("s_endpgm")

    def startup(self):
        k = self.k
        o = self.opt
        if self.stamps:
            for i in STAMP_REGS:
                k(f"s_mov_b32 s{i}, 0")
        self.stamp("start")
        if o.get("DBG"):
            k("s_memrealtime s[90:91]\ns_memtime s[88:89]\ns_load_dwordx2 s[84:85], s[0:1], 56")
        k("s_cmp_ge_u32 s2, 256\ns_cbranch_scc1 L_end")
        k(f"s_load_dwordx2 s[{sX}:{sX+1}], s[0:1], 0")
        k(f"s_load_dwordx2 s[{sWR}:{sWR+1}], s[0:1], 8")
        k(f"s_load_dwordx2 s[{sWI}:{sWI+1}], s[0:1], 16")
        k(f"s_load_dwordx2 s[{sW2}:{sW2+1}], s[0:1], 40")
        k(f"s_load_dwordx2 s[{sWS}:{sWS+1}], s[0:1], 64")
        k(f"v_lshrrev_b32 v2, 6, v0\nv_and_b32 v1, 63, v0")
        k(f"s_and_b32 s{sXCD}, s2, 7\ns_lshr_b32 s{sIDX}, s2, 3")
        k(f"v_readfirstlane_b32 s{sWAVE}, v2")
        k(f"s_lshl_b32 s{sC}, s{sXCD}, 5\ns_add_u32 s{sC}, s{sC}, s{sIDX}")
        k(f"s_and_b32 s{T0}, s{sC}, 7\ns_lshl_b32 s{T0}, s{T0}, 2\ns_add_u32 s{T0}, s{T0}, s{sWAVE}\ns_lshl_b32 s{T0}, s{T0}, 6")
        k(f"s_lshr_b32 s{T1}, s{sC}, 3\ns_add_u32 s{T0}, s{T0}, s{T1}\ns_mul_i32 s{T0}, s{T0}, 1280")
        k("v_lshrrev_b32 v3, 5, v1")
        k("v_and_b32 v4, 31, v1")
        k("v_mul_u32_u24 v5, 40960, v3\nv_lshl_add_u32 v5, v4, 3, v5")
        k(f"s_mov_b32 s{sX+2}, 2621440\ns_mov_b32 s{sX+3}, 0x20000")
        k(f"s_getpc_b64 s[{T4}:{T4+1}]\nL_pc:\ns_sub_u32 s{T4}, s{T4}, L_pc-{KN}\ns_subb_u32 s{T4+1}, s{T4+1}, 0")
        k(f"s_mov_b32 s{T4+2}, tab_pf-{KN}\ns_mov_b32 s{T4+3}, 0x20000")
        k(f"s_lshl_b32 s{T2}, s{sIDX}, 2\ns_add_u32 s{T2}, s{T2}, s{sWAVE}\ns_lshl_b32 s{T2}, s{T2}, 7\nv_lshlrev_b32 v7, 14, v1")
        k("v_lshrrev_b32 v20, 3, v1\nv_mul_u32_u24 v8, 40960, v20\nv_lshrrev_b32 v9, 4, v1\nv_and_b32 v2, 7, v1\nv_xor_b32 v9, v9, v2")
        k(f"v_lshl_add_u32 v152, v9, 4, v8")
        k("s_waitcnt lgkmcnt(0)")
        self.t_x = [k.vmem(f"buffer_load_dwordx2 v[{10+2*i}:{11+2*i}], v5, s[{sX}:{sX+3}], s{T0} offen offset:{256*i}{self.nt('x')}") for i in range(5)]
        with k.atomic():
            k("s_mov_b64 exec, 0x7f")
            k.vmem(f"buffer_load_dword v5, v7, s[{T4}:{T4+3}], s{T2} offen{self.nt('p')}")
            k("s_mov_b64 exec, -1")
        k(f"s_add_u32 s{sTAB}, s{T4}, tab_data-{KN}\ns_addc_u32 s{sTAB+1}, s{T4+1}, 0")
        k(f"s_lshl_b32 s{T1}, s2, 6\ns_add_u32 s{T1}, s{T1}, {TAB_WG}")
        k(f"s_load_dwordx16 s[{sRB}:{sRB+15}], s[{sTAB}:{sTAB+1}], s{T1}")
        k(f"s_load_dword s{sTAG}, s[{sWS}:{sWS+1}], {WS_GEN}")
        k(f"s_load_dwordx2 s[{sW1}:{sW1+1}], s[0:1], 32")
        k(f"s_load_dwordx2 s[{sOUT}:{sOUT+1}], s[0:1], 48")
        for s_, n in ((sWR, 2048 * 642), (sWI, 2048 * 642), (sW2, 1728 * 1280)):
            k(f"s_mov_b32 s{s_+2}, {n}\ns_mov_b32 s{s_+3}, 0x20000")
        k(f"v_subrev_u32 v151, s{sWAVE}, v0\nv_min_u32 v150, 160, v151\nv_lshlrev_b32 v150, 2, v150\nv_lshlrev_b32 v6, 4, v1")
        k(f"s_mov_b32 s{sTAB+2}, {TAB_BYTES}\ns_mov_b32 s{sTAB+3}, 0x20000")
        if o.get("CEARLY", 1) == 1:
            k.put(self.const_loads())
        self.role = self.role_loads()
        if o.get("RPF"):
            self.role = self.role[16:] + self.role[:16]
        if o.get("CEARLY", 1) == 2:
            self.role[16:16] = self.const_loads()
        n0 = o.get("ROLE0", 20)
        k.put(self.role[:n0])
        self.role = self.role[n0:]
        self.stamp("or")
        k(f"s_lshr_b32 s{T5}, s{sWAVE}, 1\ns_and_b32 s{T6}, s{sWAVE}, 1\ns_lshl_b32 s{T6}, s{T6}, 10\ns_add_u32 s{T5}, s{T5}, s{T6}\ns_mul_i32 s{T5}, s{T5}, 1280")
        k(f"v_add_u32 v152, s{T5}, v152\nv_xor_b32 v153, 64, v152")
        k(f"v_add_u32 v153, 327680, v153\nv_add_u32 v154, 655360, v152\nv_add_u32 v155, 655360, v153")
        k(f"s_mul_i32 s{T5}, s{sWAVE}, {16*3456}\ns_mov_b32 s{sW1+2}, {640*3456}\ns_mov_b32 s{sW1+3}, 0x20000")
        k("v_mul_u32_u24 v8, 3456, v20\nv_bfe_u32 v9, v1, 4, 1\nv_lshlrev_b32 v9, 2, v9\nv_xor_b32 v9, v9, v2")
        k(f"v_lshl_add_u32 v156, v9, 4, v8\nv_add_u32 v156, s{T5}, v156\nv_add_u32 v157, {8*3456}, v156")
        k(f"s_lshl_b32 s{F3}, s{sWAVE}, 12\ns_lshl_b32 s{F4}, s{sWAVE}, 11")
        self.t_chunk = {}

    def const_loads(self):
        k = self.k
        k.begin()
        with k.atomic():
            k(f"s_mul_i32 s{F0}, s{sWAVE}, 3072\ns_add_u32 m0, s{F0}, {L_CT}\nv_add_u32 v121, {L_CT}, v6")
            for i in range(3):
                self.t_c = k.vmem(f"buffer_load_dwordx4 v6, s[{sTAB}:{sTAB+3}], s{F0} offen offset:{i*1024} lds")
        return k.end()

    def table_loads(self):
        k = self.k
        k.begin()
        for i, r in enumerate((128, 136, 140)):
            with k.atomic():
                if i == 0:
                    k(f"s_mul_i32 s{F5}, s{sWAVE}, 3072\ns_add_u32 s{F5}, s{F5}, {TAB_L2}")
                k.vmem(f"buffer_load_dwordx4 {V(r,4)}, v6, s[{sTAB}:{sTAB+3}], s{F5} offen offset:{i*1024}")
        with k.atomic():
            k(f"s_lshl_b32 s{F5}, s{sVAR}, 2\ns_add_u32 s{F5}, s{F5}, s{sWAVE}\ns_lshl_b32 s{F5}, s{F5}, 10\ns_add_u32 s{F5}, s{F5}, {TAB_LV}")
            k.vmem(f"buffer_load_dwordx4 {V(132,4)}, v6, s[{sTAB}:{sTAB+3}], s{F5} offen")
        for i in range(3):
            with k.atomic():
                if i == 0:
                    k(f"s_mul_i32 s{F5}, s{sWAVE}, 3072\ns_add_u32 s{F5}, s{F5}, {TAB_LC}")
                self.t_l2 = k.vmem(f"buffer_load_dwordx4 {V(208+4*i,4)}, v6, s[{sTAB}:{sTAB+3}], s{F5} offen offset:{i*1024}")
        return k.end()

    def role_loads(self):
        k = self.k
        k.begin()
        for i in range(16):
            with k.atomic():
                if i == 0:
                    k(f"s_and_b32 s{F5}, s{sC}, 1\ns_lshl_b32 s{F5}, s{F5}, 5\ns_lshr_b32 s{F0}, s{sC}, 3\ns_add_u32 s{F5}, s{F5}, s{F0}")
                    k(f"s_bfe_u32 s{F0}, s{sC}, 0x10002\ns_lshl_b32 s{F0}, s{F0}, 10\ns_add_u32 s{F5}, s{F5}, s{F0}")
                    k(f"s_bfe_u32 s{F0}, s{sC}, 0x10001\ns_lshl_b32 s{F0}, s{F0}, 8\ns_add_u32 s{F5}, s{F5}, s{F0}")
                    k(f"s_mul_i32 s{F5}, s{F5}, 642\ns_and_b32 s{F5}, s{F5}, -4")
                elif i % 2 == 0:
                    k(f"s_add_u32 s{F5}, s{F5}, {(5 if i == 8 else 1)*64*642}")
                srd = sWI if i & 1 else sWR
                self.t_w = k.vmem(f"buffer_load_dword v{self.WRAW+i}, v150, s[{srd}:{srd+3}], s{F5} offen{self.nt('w')}")
        for n in range(3):
            with k.atomic():
                k(f"s_lshl_b32 s{F0}, s{sWAVE}, 10\ns_add_u32 m0, s{F0}, {L_RP + n*4096}\ns_mul_i32 s{F5}, s{sC}, 10240\ns_add_u32 s{F5}, s{F5}, s{F0}")
                if n:
                    k(f"s_add_u32 s{F5}, s{F5}, {n*4096}")
                if n == 2:
                    k(f"s_cmp_ge_u32 s{sWAVE}, 2\ns_cselect_b32 m0, {LDS_BYTES}, m0")
                self.t_rp = k.vmem(f"buffer_load_dwordx4 v6, s[{sW2}:{sW2+3}], s{F5} offen{self.nt('r')} lds")
        return k.end()

    WRAW, WPK = 184, 20

    def w_pack(self):
        k = self.k
        W = self.WRAW
        k.begin()
        k(f"s_bitcmp1_b32 s{sC}, 3\ns_mov_b32 s{T2}, 0x07060302\ns_mov_b32 s{T3}, 0x05040100\ns_cselect_b32 s{T6}, s{T2}, s{T3}\ns_cselect_b32 s{T7}, s{T3}, s{T2}")
        k(f"v_cmp_eq_u32 vcc, 63, v1\nv_min_u32 v8, 161, v151\nv_mov_b32 v9, 161\nv_cndmask_b32 v8, v8, v9, vcc")
        k(f"v_bfe_u32 v9, v8, 1, 3\nv_lshlrev_b32 v9, 4, v9\nv_lshl_add_u32 v8, v8, 7, v9\nv_add_u32 v8, {L_OUT}, v8")
        k.wait_vm(self.t_w)
        for q, lc in enumerate((2, 3, 6, 7)):
            if q == 2:
                L = k.lab("L_wsh")
                with k.atomic():
                    k(f"s_bitcmp0_b32 s{sC}, 3\ns_cbranch_scc1 {L}")
                    for i in range(16):
                        k(f"v_mov_b32_dpp v{W+i}, v{W+i} wave_shl:1 row_mask:0xf bank_mask:0xf")
                    k(f"{L}:")
            for r in range(4):
                i = 4 * (q & 1) + r
                k(f"v_perm_b32 v{self.WPK+4*q+r}, v{W+1+2*i}, v{W+2*i}, s{T6 if q < 2 else T7}")
            with k.atomic():
                k(f"v_xor_b32 v9, {16*lc}, v8")
                self.t_wp = k.ds(f"ds_write_b128 v9, {V(self.WPK+4*q,4)}")
        return k.end()

    def geometry(self):
        k = self.k
        k("v_lshrrev_b32 v7, 4, v1\nv_xor_b32 v7, v7, v1\nv_and_b32 v7, 1, v7\nv_cmp_eq_u32 vcc, 0, v7\nv_mov_b32 v8, 0x3f803f80\nv_lshlrev_b32 v252, 4, v0\nv_cndmask_b32 v124, 0, v8, vcc")
        k(f"v_mov_b32 v125, v124\nv_mov_b32 v126, v124\nv_mov_b32 v127, v124\nv_add_u32 v253, {L_OUT}, v252")
        k(f"s_mul_i32 s{T0}, s{sWAVE}, 2560\ns_add_u32 s{T0}, s{T0}, {L_XN}")
        k(f"v_mul_u32_u24 v7, 1280, v3\nv_lshl_add_u32 v7, v4, 3, v7\nv_add_u32 v221, s{T0}, v7")
        k("v_bfe_u32 v7, v1, 2, 2\nv_lshlrev_b32 v7, 6, v7\nv_bfe_u32 v8, v1, 4, 1\nv_lshl_or_b32 v7, v8, 5, v7\nv_mul_u32_u24 v220, 0x8000, v8")
        k("v_and_b32 v8, 1, v1\nv_lshl_or_b32 v7, v8, 4, v7\nv_bfe_u32 v8, v1, 1, 1\nv_lshl_or_b32 v7, v8, 3, v7\nv_lshl_or_b32 v220, v220, 16, v220")
        k(f"v_add_u32 v223, s{T0}, v7\nv_lshl_add_u32 v222, v3, 9, v223")
        k.drain_lg()
        for s_, n in ((sWS, WS_SIZE), (sOUT, 2621440)):
            k(f"s_mov_b32 s{s_+2}, {n}\ns_mov_b32 s{s_+3}, 0x20000")
        k(f"s_mul_i32 s{sTAG}, s{sTAG}, 1664525\ns_add_u32 s{sTAG}, s{sTAG}, 1013904223")
        k(f"s_mul_i32 s{T5}, s{sWAVE}, 5120\ns_add_u32 s{sW2B}, s{sW2B}, s{T5}")

    F20V, F32V = 160, 224

    def gen_consts(self):
        k = self.k
        self.pi_v(7, 4, 8)
        k(f"v_cvt_f32_u32 v7, v7\nv_lshlrev_b32 v8, 3, v3\nv_cvt_f32_u32 v8, v8\nv_mul_f32 v7, {fl(1/32)}, v7\nv_mul_f32 v8, v8, v7")
        for t in range(2):
            for jp in range(4):
                b = 16 * t + 2 * jp
                k(f"v_fmamk_f32 v9, v7, {fl(float(b))}, v8\nv_add_f32 v2, v9, v7")
                k("v_cos_f32 v20, v9\nv_cos_f32 v21, v2\nv_sin_f32 v22, v9\nv_sin_f32 v23, v2")
                r = self.F32V + 4 * t + jp
                k(f"v_cvt_pk_bf16_f32 v{r}, v20, v21\nv_cvt_pk_bf16_f32 v{r+8}, -v22, -v23\nv_cvt_pk_bf16_f32 v{r+16}, v22, v23")
        k(f"v_lshrrev_b32 v7, 1, v4\nv_cvt_f32_u32 v7, v7\nv_cvt_f32_u32 v8, v3\nv_mul_f32 v7, {fl(1/20)}, v7\nv_mul_f32 v8, v8, v7")
        for t in range(3):
            for jj in range(2):
                q0, q1 = 4 * t + jj, 4 * t + jj + 2
                m = 0
                for l in range(64):
                    Q = q1 if l >> 5 else q0
                    if Q < 10 and (l & 31) < 22 and Q // 5 == (l & 1):
                        m |= 1 << l
                d0, d1 = 4 * (q0 % 5), 4 * (q1 % 5)
                k(f"s_mov_b32 s{sM}, 0x{m & 0xffffffff:x}\ns_mov_b32 s{sM+1}, 0x{m >> 32:x}")
                k(f"v_mul_f32 v9, {fl(float(d1 - d0))}, v8\nv_fmamk_f32 v9, v7, {fl(float(d0))}, v9")
                for jp in range(2):
                    k("v_add_f32 v2, v9, v7\nv_cos_f32 v20, v9\nv_cos_f32 v21, v2\nv_sin_f32 v22, v9\nv_sin_f32 v23, v2")
                    r = self.F20V + 4 * t + 2 * jj + jp
                    if jp == 0:
                        k("v_add_f32 v9, v2, v7")
                    k(f"v_cvt_pk_bf16_f32 v20, v20, v21\nv_cvt_pk_bf16_f32 v22, -v22, -v23")
                    k(f"v_cndmask_b32 v{r}, 0, v20, s[{sM}:{sM+1}]\nv_cndmask_b32 v{r+12}, 0, v22, s[{sM}:{sM+1}]")

    def slot_of(self, c):
        return [0, 1, 2, 3, 0, 4, 1, 2, 3, 0][c] if self.opt.get("S5") else c % NSLOT

    def earliest(self, c):
        prev = [p for p in range(c) if self.slot_of(p) == self.slot_of(c)]
        return prev[-1] + 2 if prev else (1 if c == 5 else 0)

    def dma_chunk(self, c):
        k = self.k
        slot = self.slot_of(c) * SLOT
        k.begin()
        for n in range(8):
            with k.atomic():
                if n == 0:
                    k(f"s_add_u32 s{F0}, s{sROT}, {c}\ns_cmp_ge_u32 s{F0}, 10\ns_cselect_b32 s{F1_}, 10, 0\ns_sub_u32 s{F0}, s{F0}, s{F1_}")
                    k(f"s_lshl_b32 s{F1_}, s{F0}, 7\ns_mul_i32 s{F2}, s{F0}, {64*3456}\ns_add_u32 s{F1_}, s{F1_}, s{sXB}\ns_add_u32 s{F2}, s{F2}, s{sW1B}")
                m = n >> 1
                if n & 1 == 0:
                    k(f"s_add_u32 m0, s{F3}, {slot + m*1024}")
                    self.t_chunk[c] = k.vmem(f"buffer_load_dwordx4 v{152+m}, s[{sX}:{sX+3}], s{F1_} offen{self.nt('c') if self.opt.get('NTC0', 0) <= c < self.opt.get('NTC', 10) else ''} lds")
                else:
                    L, rg = m & 1, m >> 1
                    k(f"s_add_u32 m0, s{F4}, {slot + 16384 + L*(8192-128) + rg*1024}")
                    self.t_chunk[c] = k.vmem(f"buffer_load_dwordx4 v{156+rg}, s[{sW1}:{sW1+3}], s{F2} offen offset:{128*L}{self.nt('1') if self.opt.get('NTC0', 0) <= c < self.opt.get('NTC', 10) else ''} lds")
        return k.end()

    def setup_a(self):
        k = self.k
        k("v_lshrrev_b32 v7, 1, v4\nv_cvt_f32_u32 v7, v7")
        k(f"v_mul_f32 v7, {fl(1/640)}, v7")
        k("v_lshlrev_b32 v8, 3, v3\nv_cvt_f32_u32 v8, v8\nv_mul_f32 v8, v8, v7")
        for i in range(16):
            g, r = i >> 2, i & 3
            d = 16 * (g >> 1) + 4 * (g & 1) + r
            k(f"v_fmamk_f32 v9, v7, {fl(float(d))}, v8")
            k(f"v_cos_f32 v{84+i}, v9")
            k(f"v_sin_f32 v{100+i}, v9")

    def xres_loads(self):
        k = self.k
        k.begin()
        for b in range(5):
            k.vmem(f"buffer_load_dwordx2 {V(240+2*b,2)}, v{251 if b == 4 else 250}, s[{sX}:{sX+3}], 0 offen offset:{(0, 32, 640, 672, 0)[b]}")
        return k.end()

    def setup_b(self):
        k = self.k
        k.begin()
        k.wait_vm(self.t_l2)
        for i in range(6):
            k(f"v_mov_b32 v{144+i}, v{138+i}")
        for i in range(8):
            k(f"v_add_u32 v{136+i}, 0x10000, v{128+i}")
        return k.end()

    def reduce32(self, r, t):
        k = self.k
        for sh in (8, 4, 2, 1):
            k(f"v_add_f32_dpp v{r}, v{r}, v{r} row_ror:{sh} row_mask:0xf bank_mask:0xf")
        k(f"v_mov_b32 v{t}, v{r}")
        k(f"v_permlane16_swap_b32 v{t}, v{r}")
        k(f"v_add_f32 v{r}, v{r}, v{t}")

    def phase1(self):
        k = self.k
        o = self.opt
        k.wait_vm(self.t_x[-1])
        self.stamp("x")
        k.begin()
        for i in range(10):
            k(f"v_lshlrev_b32 v{20+2*i}, 16, v{10+i}\nv_and_b32 v{21+2*i}, 0xffff0000, v{10+i}")
        k("v_pk_add_f32 v[8:9], v[20:21], v[22:23]\nv_pk_add_f32 v[10:11], v[24:25], v[26:27]")
        for i in range(4, 10, 2):
            k(f"v_pk_add_f32 v[8:9], v[8:9], v[{20+2*i}:{21+2*i}]\nv_pk_add_f32 v[10:11], v[10:11], v[{22+2*i}:{23+2*i}]")
        k("v_pk_add_f32 v[8:9], v[8:9], v[10:11]\nv_add_f32 v8, v8, v9")
        self.reduce32(8, 9)
        k(f"v_mul_f32 v8, {fl(1/640)}, v8")
        for i in range(10):
            k(f"v_pk_add_f32 v[{20+2*i}:{21+2*i}], v[{20+2*i}:{21+2*i}], v[8:9] op_sel_hi:[1,0] neg_lo:[0,1] neg_hi:[0,1]")
        k("v_pk_mul_f32 v[10:11], v[20:21], v[20:21]\nv_pk_mul_f32 v[12:13], v[22:23], v[22:23]")
        for i in range(2, 10, 2):
            k(f"v_pk_fma_f32 v[10:11], v[{20+2*i}:{21+2*i}], v[{20+2*i}:{21+2*i}], v[10:11]")
            k(f"v_pk_fma_f32 v[12:13], v[{22+2*i}:{23+2*i}], v[{22+2*i}:{23+2*i}], v[12:13]")
        k("v_pk_add_f32 v[10:11], v[10:11], v[12:13]\nv_add_f32 v10, v10, v11")
        self.stamp("ln1")
        self.reduce32(10, 11)
        k(f"v_mul_f32 v10, {fl(1/640)}, v10")
        k("v_cvt_pk_bf16_f32 v12, v8, v10")
        k("v_and_b32 v13, 0xffff0000, v12")
        k(f"v_add_f32 v13, {fl(1e-5)}, v13\nv_cvt_pk_bf16_f32 v13, v13, v13\nv_and_b32 v13, 0xffff0000, v13")
        k("v_sqrt_f32 v13, v13\nv_lshlrev_b32 v15, 16, v12\nv_cvt_pk_bf16_f32 v13, v13, v13\nv_and_b32 v13, 0xffff0000, v13")
        k("v_rcp_f32 v14, v13\nv_sub_f32 v15, v8, v15")
        k("v_mul_f32 v15, v15, v14")
        with k.atomic():
            k.wait_vm(self.t_c)
            if o.get("RPE"):
                k.wait_vm(self.t_rp)
            k("s_barrier")
        rds = [f"ds_read_b128 {A(208+4*i,4)}, v121 offset:{1024*i}" for i in range(12)]
        self.stamp("cb")
        for i in range(10):
            k(f"v_pk_fma_f32 v[{20+2*i}:{21+2*i}], v[{20+2*i}:{21+2*i}], v[14:15], v[14:15] op_sel:[0,0,1] op_sel_hi:[1,0,1]")
            if i < 6:
                k.ds(rds[i])
            if i & 1:
                k(f"v_cvt_pk_bf16_f32 v{39+i}, v{18+2*i}, v{19+2*i}\nv_cvt_pk_bf16_f32 v{40+i}, v{20+2*i}, v{21+2*i}")
                tw = k.ds(f"ds_write_b64 v221, v[{39+i}:{40+i}] offset:{128*(i-1)}")
        k("v_and_b32 v12, 0xffff, v12\nv_or_b32 v12, v12, v13")
        k(f"v_mov_b32 v13, s{sTAG}")
        k(f"s_lshl_b32 s{T0}, s{sC}, 6\ns_lshl_b32 s{T1}, s{sWAVE}, 4\ns_add_u32 s{T0}, s{T0}, s{T1}\ns_add_u32 s{T0}, s{T0}, {WS_ST}")
        k("v_lshlrev_b32 v2, 3, v3")
        k.wait_lg(tw, est=40)
        toks = []
        for t in range(3):
            for jj in range(2):
                ar = 222 if t < 2 else 223
                toks.append(k.ds(f"ds_read_b64_tr_b16 v[{40+4*t+2*jj}:{41+4*t+2*jj}], v{ar} offset:{t*1024+jj*256}"))
        for r in rds[6:]:
            tc = k.ds(r)
        with k.atomic():
            k("s_mov_b32 exec_lo, 1\ns_mov_b32 exec_hi, 1")
            k.vmem(f"buffer_store_dwordx2 v[12:13], v2, s[{sWS}:{sWS+3}], s{T0} offen sc1")
            k("s_mov_b64 exec, -1")
        for t in range(3):
            k.wait_lg(toks[2 * t + 1], est=(60 if t == 0 else 0))
            for part in range(2):
                D = V(52 + 16 * part, 16)
                k(f"v_mfma_f32_32x32x16_bf16 {D}, {V(40+4*t,4)}, {A(208+12*part+4*t,4)}, {'0' if t == 0 else D}")
        self.stamp("dst1")
        if o.get("RPE"):
            rrd, rst = self.rp_units()
            k.put(rrd)
            k.begin()
            self.cmul(52, 84, +1, 160, 8)
            k.weave(k.end(), rst, start=40)
        else:
            self.cmul(52, 84, +1, 160, 8)
        main = k.end()
        fill = self.p1_fill
        k.begin()
        k.weave(main, fill[:self.n_fast], interval=o.get("P1T", 60))
        main = k.end()
        fill = k.weave(main, fill[self.n_fast:], start=o["P1START"], interval=o.get("P1I", 80), tail=False)
        assert not any(op[0] == "vm" and op[2] is self.t_l2 for u in fill for op in u)
        sb = self.setup_b() + self.w_pack()
        Fr, Fi, NFi = 232, 240, 248
        n = 0
        k.wait_lg(tc)
        for t in range(2):
            for (dat, cre, cim) in ((160, Fr, Fi), (168, NFi, Fr)):
                for D, cc in ((52, cre), (68, cim)):
                    k(f"v_mfma_f32_32x32x16_bf16 {V(D,16)}, {V(dat+4*t,4)}, {A(cc+4*t,4)}, {'0' if n < 2 else V(D,16)}")
                    n += 1
                    k.put(sb[:5]); sb = sb[5:]
        k.put(sb)
        self.p1_left = fill
        self.stamp("wpk")
        for p in range(6):
            r0 = 4 * (p >> 1) + 2 * (p & 1)
            k(f"v_cvt_pk_bf16_f32 v{8+(p&1)*2}, v{52+r0}, v{53+r0}\nv_cvt_pk_bf16_f32 v{9+(p&1)*2}, v{68+r0}, v{69+r0}")
            k(f"v_xor_b32 v{9+(p&1)*2}, v220, v{9+(p&1)*2}")
            k.ds(f"ds_write_b32 v{208+p}, v{8+(p&1)*2}")
            k.ds(f"ds_write_b32 v{214+p}, v{9+(p&1)*2}")
        self.stamp("p1done")

    def rp_units(self):
        k = self.k
        k.begin()
        k.wait_vm(self.t_l2)
        tr = [k.ds(f"ds_read_b64_tr_b16 {A(24+4*i+2*jj,2)}, v{138+i} offset:{5120*jj}") for i in range(3) for jj in range(2)]
        rd = k.end()
        k.begin()
        for i in range(3):
            with k.atomic():
                k.wait_lg(tr[2 * i + 1])
                k.vmem(f"buffer_store_dwordx4 {A(24+4*i,4)}, v{141+i}, s[{sWS}:{sWS+3}], s{sRPB} offen sc1")
        return rd, k.end()

    def out_units(self):
        k = self.k
        k.begin()
        toks = [k.ds(f"ds_read_b128 {A(4*i,4)}, v253 offset:{4096*i}") for i in range(6)]
        if not self.opt.get("RPE"):
            tr = [k.ds(f"ds_read_b64_tr_b16 {A(24+4*i+2*jj,2)}, v{144+i} offset:{5120*jj}") for i in range(3) for jj in range(2)]
        rd = k.end()
        k.begin()
        for i in range(6):
            with k.atomic():
                if i == 5:
                    L = k.lab("L_o6")
                    k(f"s_cmp_lg_u32 s{sWAVE}, 0\ns_cbranch_scc1 {L}\ns_mov_b64 exec, 0xff")
                if i:
                    k(f"s_add_u32 s{sOB}, s{sOB}, 4096")
                self.t_out = k.vmem(f"buffer_store_dwordx4 {A(4*i,4)}, v252, s[{sWS}:{sWS+3}], s{sOB} offen sc1", opt=(i == 5))
                if i == 5:
                    k(f"s_mov_b64 exec, -1\n{L}:")
        for i in range(0 if self.opt.get("RPE") else 3):
            self.t_out = k.vmem(f"buffer_store_dwordx4 {A(24+4*i,4)}, v{147+i}, s[{sWS}:{sWS+3}], s{sRPB} offen sc1")
        return rd, k.end()

    def cmul(self, src, c0, sgn, dst, t):
        k = self.k
        n1 = "" if sgn > 0 else " neg_lo:[1,0,0] neg_hi:[1,0,0]"
        n2 = " neg_lo:[1,0,0] neg_hi:[1,0,0]" if sgn > 0 else ""
        for p in range(8):
            re, im, c, s = V(src + 2 * p, 2), V(src + 16 + 2 * p, 2), V(c0 + 2 * p, 2), V(c0 + 16 + 2 * p, 2)
            q = t + 4 * (p & 1)
            k(f"v_pk_mul_f32 {V(q,2)}, {re}, {c}")
            k(f"v_pk_mul_f32 {V(q+2,2)}, {im}, {c}")
            k(f"v_pk_fma_f32 {V(q,2)}, {im}, {s}, {V(q,2)}{n1}")
            k(f"v_pk_fma_f32 {V(q+2,2)}, {re}, {s}, {V(q+2,2)}{n2}")
            k(f"v_cvt_pk_bf16_f32 v{dst+p}, v{q}, v{q+1}")
            k(f"v_cvt_pk_bf16_f32 v{dst+8+p}, v{q+2}, v{q+3}")

    TW1, TW2, F64, F32 = 160, 192, 184, 232

    def sfft_setup(self):
        k = self.k
        TW1, TW2 = self.TW1, self.TW2
        k.begin()
        k(f"v_lshrrev_b32 v2, 3, v1\nv_and_b32 v5, 3, v2\nv_lshrrev_b32 v7, 2, v2\nv_lshl_add_u32 v5, v7, 3, v5")
        k(f"s_mov_b32 s{T3}, {8*PFB}\nv_mul_lo_u32 v5, v5, s{T3}")
        k(f"s_bfe_u32 s{T3}, s{sJOB}, 0x30001\nv_lshrrev_b32 v7, 1, v2\nv_and_b32 v2, 7, v1\nv_xor_b32 v7, v7, v2\nv_xor_b32 v7, s{T3}, v7")
        k(f"s_lshl_b32 s{T3}, s{sJOB}, 7\ns_mul_i32 s{T4}, s{sWAVE}, {2*PFB}\ns_add_u32 s{T3}, s{T3}, s{T4}\ns_add_u32 s{T3}, s{T3}, {WS_PF}")
        k(f"v_add_u32 v5, s{T3}, v5\nv_lshl_add_u32 v224, v7, 4, v5\nv_xor_b32 v7, 4, v7\nv_lshl_add_u32 v225, v7, 4, v5")
        self.pi_v(2, 4, 5)
        k(f"s_and_b32 s{T0}, s{sWAVE}, 1\ns_lshl_b32 s{T0}, s{T0}, 5")
        k(f"v_add_u32 v5, s{T0}, v2\nv_cvt_f32_u32 v5, v5\nv_mul_f32 v5, {fl(1/2048)}, v5")
        k(f"v_cvt_f32_u32 v2, v2\nv_mul_f32 v2, {fl(1/2048)}, v2")
        k(f"v_lshlrev_b32 v7, 3, v3\nv_cvt_f32_u32 v232, v7\nv_mul_f32 v232, v232, v5")
        k(f"v_add_u32 v7, s{T0}, v7\nv_cvt_f32_u32 v233, v7\nv_mul_f32 v233, v233, v2")
        k(f"s_lshr_b32 s{T1}, s{sWAVE}, 1\ns_lshl_b32 s{T1}, s{T1}, 8\ns_or_b32 s{T1}, s{T1}, s{sJOB}\ns_cmp_eq_u32 s{T1}, 0\ns_cselect_b32 s{T2}, 0.5, 1.0\ns_cmp_eq_u32 s{T1}, 160\ns_cselect_b32 s{T2}, 0.5, s{T2}")
        for i in range(16):
            g, r = i >> 2, i & 3
            d = 16 * (g >> 1) + 4 * (g & 1) + r
            k(f"v_fmamk_f32 v7, v5, {fl(float(d))}, v232")
            k(f"v_fmamk_f32 v234, v2, {fl(float(d))}, v233")
            k(f"v_cos_f32 v{TW1+i}, v7")
            k(f"v_sin_f32 v{TW1+16+i}, v7")
            k(f"v_cos_f32 v{TW2+i}, v234")
            k(f"v_sin_f32 v{TW2+16+i}, v234")
        L = k.lab("L_tw2")
        with k.atomic():
            k(f"s_cmp_eq_u32 s{T2}, 1.0\ns_cbranch_scc1 {L}")
            for i in range(32):
                k(f"v_mul_f32 v{TW2+i}, 0.5, v{TW2+i}")
            k(f"{L}:")
        k(f"s_lshr_b32 s{T3}, s{sWAVE}, 1\ns_lshl_b32 s{T3}, s{T3}, 2\ns_and_b32 s{T4}, s{sWAVE}, 1")
        k(f"v_bfe_u32 v2, v1, 1, 3\nv_xor_b32 v2, s{T3}, v2\nv_lshlrev_b32 v5, 7, v4\nv_add_u32 v5, {L_INB}, v5")
        k(f"v_lshl_add_u32 v7, v2, 4, v5\nv_lshl_add_u32 v7, v3, 12, v7")
        k(f"s_lshl_b32 s{T3}, s{T4}, 14\nv_add_u32 v226, s{T3}, v7\nv_xor_b32 v227, 16, v226")
        k(f"s_xor_b32 s{T3}, s{T3}, 16384\nv_add_u32 v228, s{T3}, v7\nv_xor_b32 v229, 16, v228")
        k(f"v_xor_b32 v2, 2, v2\nv_xor_b32 v2, v3, v2\nv_lshl_add_u32 v230, v2, 4, v5\ns_lshl_b32 s{T3}, s{T4}, 12\nv_add_u32 v230, s{T3}, v230")
        return k.end()

    def sfft_consts(self):
        k = self.k
        k.begin()
        self.pi_v(2, 4, 5)
        k(f"s_and_b32 s{T0}, s{sWAVE}, 1\ns_lshl_b32 s{T0}, s{T0}, 5\nv_add_u32 v2, s{T0}, v2\nv_cvt_f32_u32 v2, v2\nv_mul_f32 v2, {fl(1/64)}, v2")
        k(f"v_lshl_add_u32 v5, v3, 3, s{T0}\nv_xor_b32 v7, 32, v5\nv_cvt_f32_u32 v5, v5\nv_cvt_f32_u32 v7, v7\nv_mul_f32 v5, v5, v2\nv_mul_f32 v7, v7, v2")
        for tau in range(4):
            for jp in range(4):
                r = self.F64 + 4 * tau + jp
                k(f"v_fmamk_f32 v232, v2, {fl(float(16*(tau&1) + 2*jp))}, v{5 if tau < 2 else 7}")
                k("v_add_f32 v233, v232, v2")
                k("v_cos_f32 v234, v232")
                k("v_cos_f32 v235, v233")
                k("v_sin_f32 v236, v232")
                k("v_sin_f32 v237, v233")
                k("v_cvt_pk_bf16_f32 v234, v234, v235")
                k("v_cvt_pk_bf16_f32 v238, -v236, -v237")
                k("v_cvt_pk_bf16_f32 v239, v236, v237")
                k(f"v_accvgpr_write_b32 a{r}, v234")
                k(f"v_accvgpr_write_b32 a{r+16}, v238")
                k(f"v_accvgpr_write_b32 a{r+32}, v239")
        return k.end()

    def gen_g(self):
        k = self.k
        k.begin()
        D, P, R2, R26, B = 112, 116, 122, 128, 136
        k(f"s_mul_i32 s{T0}, s{sJ}, 40\nv_and_b32 v158, 15, v1\nv_add_u32 v159, s{T0}, v158\nv_cvt_f32_u32 v{D}, v159\nv_add_f32 v{D+1}, 0x41800000, v{D}")
        k(f"v_and_b32 v159, 7, v158\nv_lshrrev_b32 v158, 3, v158\nv_mul_u32_u24 v158, 320, v158\nv_add3_u32 v159, v159, v158, s{T0}\nv_add_u32 v159, 32, v159\nv_cvt_f32_u32 v{D+2}, v159")
        k(f"s_and_b32 s{T0}, s{sWAVE}, 1\ns_mul_i32 s{T0}, s{T0}, 160\ns_lshr_b32 s{T1}, s{sWAVE}, 1\ns_add_u32 s{T0}, s{T0}, s{T1}")
        k(f"v_lshrrev_b32 v158, 4, v1\nv_lshl_add_u32 v158, v158, 3, s{T0}\nv_cvt_f32_u32 v{D+3}, v158")
        k(f"s_mul_i32 s{T0}, s{sWAVE}, 15360\ns_add_u32 s{T0}, s{T0}, {L_G}\nv_add_u32 v134, s{T0}, v6")
        for blk in range(3):
            k(f"v_mul_f32 v158, 0.5, v{D+blk}\nv_fract_f32 v158, v158\nv_mul_f32 v{D+blk}, {fl(1/640)}, v{D+blk}")
            k(f"v_cos_f32 v158, v158\nv_mul_f32 v159, v{D+3}, v{D+blk}\nv_cvt_pk_bf16_f32 v{160+blk}, 1.0, v158")
            k(f"v_fract_f32 v159, v159\nv_add_f32 v158, v{D+blk}, v{D+blk}\nv_mul_f32 v135, {fl(26.0)}, v{D+blk}")
            k(f"v_cos_f32 v{P+2*blk}, v159")
            k(f"v_sin_f32 v{P+2*blk+1}, -v159")
            k(f"v_cos_f32 v{R2+2*blk}, v158")
            k(f"v_sin_f32 v{R2+2*blk+1}, -v158")
            k(f"v_cos_f32 v{R26+2*blk}, v135")
            k(f"v_sin_f32 v{R26+2*blk+1}, -v135")
        for ks in range(5 if "gg" not in self.opt.get("SKIP", "") else 0):
            for jd in range(4):
                for blk in range(3):
                    b = (B if ks & 1 == 0 else 172) + 4 * blk
                    p = V(P + 2 * blk, 2)
                    k(f"v_cvt_pk_bf16_f32 v{b+jd}, v{P+2*blk}, v{P+2*blk+1}")
                    if not (ks == 4 and jd == 3):
                        r = V((R2 if jd < 3 else R26) + 2 * blk, 2)
                        t = V(164 + 2 * blk, 2)
                        k(f"v_pk_mul_f32 {t}, {p}, {r} op_sel_hi:[1,0]")
                        k(f"v_pk_fma_f32 {p}, {p}, {r}, {t} op_sel:[1,1,0] op_sel_hi:[0,1,1] neg_lo:[1,0,0]")
                    if jd == 3:
                        if ks == 0:
                            k(f"v_cmp_eq_f32 vcc, 0, v{D+3}\ns_nop 1\nv_cndmask_b32 v{b}, v{b}, v{160+blk}, vcc")
                        k.ds(f"ds_write_b128 v134, {V(b,4)} offset:{1024*(3*ks+blk)}")
        return k.end()

    def w2reg(self, i, b):
        q = 5 * i + b
        return A(4 * q, 4) if q < 64 else V(208 + 4 * (q - 64), 4)

    def w2_loads(self, steps):
        k = self.k
        k.begin()
        for i in steps:
            if "w2" in self.opt.get("SKIP", "") and i >= 7:
                continue
            if i == 13:
                L = k.lab("L_w13")
                with k.atomic():
                    k(f"s_cmp_ge_u32 s{sWAVE}, 2\ns_cbranch_scc1 {L}\ns_mov_b32 s{F5}, {13*4*5120}")
                    for b in range(5):
                        k.vmem(f"buffer_load_dwordx4 {self.w2reg(i,b)}, v{246 if b < 4 else 247}, s[{sWS}:{sWS+3}], s{F5} offen offset:{(b&3)*1024} sc1", opt=True)
                    k(f"{L}:")
                continue
            for b in range(5):
                with k.atomic():
                    if b == 0:
                        k(f"s_mul_i32 s{F5}, s{sRI(i)}, 5")
                    k.vmem(f"buffer_load_dwordx4 {self.w2reg(i,b)}, v{246 if b < 4 else 247}, s[{sWS}:{sWS+3}], s{F5} offen offset:{(b&3)*1024} sc1")
        return k.end()

    def gemm1(self, nb, job):
        k = self.k
        o = self.opt
        F1R = [(8, 12), (9, 13), (10, 14), (11, 15)]

        def cap(f):
            k.begin()
            f()
            return k.end()
        tok = {}

        def reads(c, t, bs):
            slot = self.slot_of(c)
            st, off0 = slot // 2, (slot % 2) * SLOT
            out = []
            for bi in range(nb):
                k.begin()
                if bi == 0:
                    k.ds(f"ds_read_b128 {V(112+4*bs,4)}, v{128+8*st+t} offset:{off0}")
                for jj in range(2):
                    tok[c, t, bi] = k.ds(f"ds_read_b64_tr_b16 {V(80+16*bs+4*bi+2*jj,2)}, v{132+8*st+bi} offset:{off0 + t*2048 + jj*512}")
                out.append(k.end())
            return out

        ord_, ost = self.out_units()
        if "out" in o.get("SKIP", ""):
            ost = ost[-1:]
        OB = 0
        nost = len(ost)
        vq = [(0, u) for u in self.p1_left]
        for c in range(o["P1DMA"], 10):
            vq += [(max(self.earliest(c), c - o.get('LA', 3)), u) for u in self.dma_chunk(c)]

        def f1i():
            L = k.lab("L_f1i")
            with k.atomic():
                k(f"s_cmp_lg_u32 s{sWAVE}, 0\ns_cbranch_scc1 {L}")
                k(f"v_mul_u32_u24 v8, {o['FS1']}, v1\nv_add_u32 v8, {WS_F1}, v8")
                for i in range(1, 4):
                    k(f"v_add_u32 v{8+i}, {64*o['FS1']*i}, v8")
                self.t_f1 = self.poll_issue(F1R, opt=True)
                k(f"{L}:")

        def fs():
            with k.atomic():
                k(f"s_lshl_b32 s{F0}, s{sRB}, 7\ns_lshl_b32 s{F5}, s{sWAVE}, 5\ns_add_u32 s{F0}, s{F0}, s{F5}\ns_lshl_b32 s{F0}, s{F0}, 3")
                k(f"s_add_u32 s{F0}, s{F0}, {WS_ST}\nv_lshlrev_b32 v231, 3, v4\nv_add_u32 v231, s{F0}, v231")
                self.t_st = k.vmem(f"buffer_load_dwordx2 v[158:159], v231, s[{sWS}:{sWS+3}], 0 offen sc1")
        f1u = cap(f1i)
        vq += [(0, u) for u in cap(fs)]
        ntail = 0
        late = []
        if job:
            late += cap(self.inbox_dma)
        npre = o.get("W2PREJ", 2) if job else o.get("W2PRE", 5)
        late += self.w2_loads(range(npre))

        def epi_addr():
            k(f"s_lshl_b32 s{T0}, s{sWAVE}, 7\ns_add_u32 s{T0}, s{T0}, {L_CS}")
            k(f"v_lshrrev_b32 v2, 4, v1\nv_lshlrev_b32 v2, 4, v2\nv_and_b32 v5, 1, v1\nv_lshl_or_b32 v2, v5, 6, v2\nv_add_u32 v2, s{T0}, v2")
            k(f"s_mul_i32 s{T0}, s{sWAVE}, {2*55296}\ns_add_u32 s{T0}, s{T0}, s{sHB0}")
            k("v_bfe_u32 v7, v1, 4, 1\nv_mul_u32_u24 v7, 55296, v7\nv_and_b32 v5, 15, v1\nv_lshl_add_u32 v7, v5, 4, v7\nv_lshl_add_u32 v7, v3, 8, v7")
            k(f"v_lshlrev_b32 v5, 4, v3\nv_add_u32 v5, {L_CS}, v5")
            for bi in range(nb):
                k(f"s_add_u32 s{T2}, s{sWAVE}, {bi}\ns_cmp_ge_u32 s{T2}, {nb}\ns_cselect_b32 s{T3}, {nb}, 0\ns_sub_u32 s{T2}, s{T2}, s{T3}")
                if nb == 3:
                    k(f"s_cmp_ge_u32 s{T2}, {nb}\ns_cselect_b32 s{T3}, {nb}, 0\ns_sub_u32 s{T2}, s{T2}, s{T3}")
                k(f"s_lshl_b32 s{sBID+bi}, s{T2}, 7\ns_lshl_b32 s{T2}, s{T2}, 10\ns_add_u32 s{sHB+bi}, s{T2}, s{T0}")

        def rot_idx():
            k(f"s_lshl_b32 s{sRI(0)}, s{sR2}, 12\nv_add_u32 v246, s{sW2B}, v6\nv_add_u32 v247, 4096, v246")
            for i in range(1, 13):
                k(f"s_add_u32 s{sRI(i)}, s{sRI(i-1)}, 4096\ns_cmp_eq_u32 s{sRI(i)}, {13*4096}\ns_cselect_b32 s{sRI(i)}, 0, s{sRI(i)}")

        def f32copy():
            for i in range(24):
                k(f"v_accvgpr_write_b32 a{self.F32+i}, v{self.F32V+i}")
        early = []
        def set5():
            for i in range(8 if o.get("S5") else 0):
                k(f"v_add_u32 v{144+i}, 0x20000, v{128+i}")
        pre5 = cap(set5)
        chore = cap(rot_idx) + (self.sfft_setup() + self.sfft_consts() if job else []) + cap(epi_addr)
        if "chore" in o.get("SKIP", "") and job:
            chore = cap(rot_idx) + self.sfft_setup()[:8] + cap(epi_addr)
        nchore = len(chore)
        CH0 = 0
        xq = []

        k.wait_vm(self.t_chunk[0])
        k.wait_vm(self.t_rp)
        k.drain_lg()
        k("s_barrier")
        self.stamp("B0")
        k.put(ord_)
        for g in reads(0, 0, 0):
            k.put(g)
        step = 0
        done_f1 = False
        for c in range(10):
            for t in range(4):
                bs = step & 1
                rd = [[] for _ in range(nb)]
                extra = []
                it = c
                if t < 3:
                    rd = reads(c, t + 1, bs ^ 1)
                elif c < 9:
                    it = c + 1
                    k.wait_vm(self.t_chunk[c + 1])
                    if c + 1 == o["FLAG_AT"]:
                        self.stamp("oa")
                        k.wait_vm(self.t_out)
                        self.stamp("ob")
                    if c + 1 == 5:
                        k.put(pre5)
                    if c + 1 == o["F1CHK"]:
                        self.stamp("f1a")
                        self.poll_check(F1R, self.t_f1, wave0=True)
                        self.stamp("f1b")
                        done_f1 = True
                    k("s_barrier")
                    self.stamp(f"B{c+1}")
                    rd = reads(c + 1, 0, bs ^ 1)
                    if c + 1 == o["FLAG_AT"]:
                        extra += cap(lambda: self.flag_store(f"s_mul_i32 s{F0}, s{sC}, {o['FS1']}\ns_add_u32 s{F0}, s{F0}, {WS_F1}", F0, 8))
                nv = o["NV"] if not done_f1 else o.get("NVL", 2)
                avail = 0
                while avail < len(vq) - ntail and vq[avail][0] <= it:
                    avail += 1
                nv = min(max(nv, -(-avail // ((3 - t) if t < 3 else 4))), o["NV0"])
                vm = []
                if step >= o.get("OSTEP", 2) and (avail == 0 or not o.get("OAFT") or len(ost) < nost):
                    for _ in range(o.get("NVO", 1)):
                        if ost:
                            vm.append(ost.pop(0))
                            nv += 1
                if step == o.get("F1STEP", 29):
                    vm += f1u
                    nv += 1
                if step >= o.get('XQ', 16) and xq:
                    vm.append(xq.pop(0))
                    nv += 1
                if done_f1 and not extra and job:
                    while len(vm) < nv and len(late) > 5 * npre:
                        vm.append(late.pop(0))
                while len(vm) < nv and vq and vq[0][0] <= it:
                    vm.append(vq.pop(0)[1])
                if done_f1 and not extra:
                    while len(vm) < nv and late:
                        vm.append(late.pop(0))
                want = nchore * max(step + 1 - CH0, 0) // (39 - CH0)
                ch = []
                if step < 6:
                    ch += early[:4]
                    del early[:4]
                while chore and nchore - len(chore) < want:
                    ch.append(chore.pop(0))
                gaps = [list(x) for x in rd]
                if "cs" not in o.get("SKIP", "") or step == 0:
                  gaps[0].append([("i", f"v_mfma_f32_16x16x32_bf16 v[120:123], {V(80+16*bs,4)}, v[124:127], {'0' if step == 0 else 'v[120:123]'}")])
                used = set()
                for i, u in enumerate(vm):
                    gi = nb - 1 - (len(vm) - 1 - i) * nb // max(len(vm), 2) if len(vm) <= nb else i * nb // len(vm)
                    if gi not in used and len(u) > 1 and u[-1][0] == "vm" and all(x[0] == "i" and x[1].startswith("s_") for x in u[:-1]):
                        gaps[gi] = [u[:-1]] + gaps[gi] + [u[-1:]]
                    else:
                        gaps[gi].append(u)
                    used.add(gi)
                gaps[nb - 1] = extra + gaps[nb - 1]
                last = 0
                for u in ch:
                    gi = min(range(last, nb), key=lambda g: sum(k.ucost(x) for x in gaps[g]) - (24 if g == 0 else 0))
                    last = gi
                    gaps[gi].append(u)
                for bi in range(nb):
                    D = V(16 + 16 * bi, 16)
                    if o.get("WM", 1) == 1:
                        k.wait_lg(tok[c, t, bi])
                    elif bi % 2 == 0:
                        k.wait_lg(tok[c, t, min(bi + 1, nb - 1)])
                    if "g1mm" not in o.get("SKIP", "") or step == 0 or bi == 0:
                        k(f"v_mfma_f32_32x32x16_bf16 {D}, {V(80+16*bs+4*bi,4)}, {V(112+4*bs,4)}, {'0' if step == 0 else D}")
                    k.put(gaps[bi])
                step += 1
        assert not chore and done_f1 and not ost and not xq and not early
        rest = [u for _, u in vq] + late
        self.stamp("g1mm")
        with k.atomic():
            k("s_mov_b32 exec_lo, 0x00030003\ns_mov_b32 exec_hi, 0x00030003")
            k.ds("ds_write_b128 v2, v[120:123]")
            k("s_mov_b64 exec, -1")
        for bi in range(nb):
            k(f"v_add_u32 v{9+bi}, s{sBID+bi}, v5")
        L, Ld = k.lab("L_st"), k.lab("L_std")
        with k.atomic():
            k.wait_vm(self.t_st)
            k(f"s_mov_b32 s{sPOLL}, 0")
            k(f"{L}:")
            k(f"v_cmp_ne_u32 vcc, s{sTAG}, v159")
            k(f"s_add_u32 s{sPOLL}, s{sPOLL}, 1")
            k(f"s_cmp_eq_u64 vcc, 0\ns_cbranch_scc1 {Ld}")
            k(f"buffer_load_dwordx2 v[158:159], v231, s[{sWS}:{sWS+3}], 0 offen sc1")
            k("s_waitcnt vmcnt(0)")
            k(f"s_cmp_lt_u32 s{sPOLL}, {SPIN_MAX}\ns_cbranch_scc1 {L}")
            k(f"{Ld}:")
        k("v_lshlrev_b32 v158, 16, v158")
        k.drain_lg()
        k("s_barrier")
        toks = {}

        def csr(bi):
            toks[bi] = [k.ds(f"ds_read_b128 {V(112+16*(bi&1)+4*g,4)}, v{9+bi} offset:{32*g}") for g in range(4)]
        csr(0)
        csr(1)
        for bi in range(nb):
            cb = 112 + 16 * (bi & 1)
            pk = 80 + 8 * bi
            for gg in range(2):
                k.wait_lg(toks[bi][2 * gg + 1])
                for r in range(0, 8, 2):
                    i = 8 * gg + r
                    k(f"v_pk_fma_f32 {V(16+16*bi+i,2)}, v[158:159], {V(cb+i,2)}, {V(16+16*bi+i,2)} op_sel_hi:[0,1,1] neg_lo:[1,0,0] neg_hi:[1,0,0]")
                for r in range(0, 8, 2):
                    i = 8 * gg + r
                    k(f"v_cvt_pk_bf16_f32 v{pk+i//2}, v{16+16*bi+i}, v{17+16*bi+i}")
                for r in range(0, 8, 2):
                    i = 8 * gg + r
                    k(f"v_pk_max_i16 v{pk+i//2}, v{pk+i//2}, 0")
                self.t_h = k.vmem(f"buffer_store_dwordx4 {V(pk+4*gg,4)}, v7, s[{sWS}:{sWS+3}], s{sHB+bi} offen offset:{512*gg} sc1")
            if bi + 2 < nb:
                csr(bi + 2)
        self.stamp("g1done")
        return npre, rest

    def fh_store(self):
        k = self.k
        with k.atomic():
            k.wait_vm(self.t_h)
            k(f"s_lshr_b32 s{T0}, s{sWAVE}, 1\ns_lshl_b32 s{T0}, s{T0}, 5\ns_and_b32 s{T1}, s{sWAVE}, 1\ns_add_u32 s{T0}, s{T0}, s{T1}\ns_mul_i32 s{T0}, s{T0}, {self.opt['FSH']}\ns_add_u32 s{T0}, s{T0}, s{sFHO}")
            k(f"v_mov_b32 v8, s{sTAG}\nv_mov_b32 v9, 0\ns_mov_b64 exec, 1")
            k.vmem(f"buffer_store_dword v8, v9, s[{sWS}:{sWS+3}], s{T0} offen sc1")
            k("s_mov_b64 exec, -1")
        self.stamp("fh")

    def middle_end(self, left, nback):
        k = self.k
        ts = self.tail_setup()
        nlast = min(nback, len(left))
        k.weave(ts[:-1], left[:len(left) - nlast], interval=self.opt.get("W2I", 80))
        k.put(ts[-1:])
        k.put(left[len(left) - nlast:])
        self.stamp("fha")
        self.poll_check([(7, 14)], self.t_fh)

    def middle_nojob(self, npre, rest):
        k = self.k
        o = self.opt
        rest = rest + self.w2_loads(range(npre, o.get('W2LATE', 14)))
        g = self.gen_g()
        n1 = len(g) * o.get("GFH", 100) // 100
        left = k.weave(g[:n1], rest, start=o.get("W2S", 0), interval=o.get("W2I", 80), tail=False)
        k.put(left[:o.get("WFH", 4)])
        self.fh_store()
        left = k.weave(g[n1:], left[o.get("WFH", 4):], interval=o.get("W2I", 80), tail=False)
        k.drain_lg()
        k("s_barrier")
        self.middle_end(left, o.get('FHB', 8))

    def middle_job(self, npre, rest):
        k = self.k
        o = self.opt
        isw2 = lambda u: not any(op[0] == "vm" and op[1].endswith("lds") for op in u)
        k.put([u for u in rest if not isw2(u)])
        pre = [u for u in rest if isw2(u)] + self.w2_loads(range(npre, min(9, o.get('W2LATE', 14))))
        left = self.sfft_body(pre)
        post = left + self.w2_loads(range(9, o.get('W2LATE', 14)))
        left = k.weave(self.gen_g(), post, interval=o.get("W2I", 80), tail=False)
        n1 = o.get("WFZ", 4)
        k.put(left[:n1])
        k.wait_vm(self.t_z)
        k.drain_lg()
        k("s_barrier")
        pre = f"s_bfe_u32 s{T0}, s{sJOB}, 0x20002\ns_mul_i32 s{T0}, s{T0}, 41\ns_lshr_b32 s{T1}, s{sJOB}, 4\ns_lshl_b32 s{T1}, s{T1}, 2\ns_add_u32 s{T0}, s{T0}, s{T1}\n"
        pre += f"s_and_b32 s{T1}, s{sJOB}, 3\ns_add_u32 s{T0}, s{T0}, s{T1}\ns_mul_i32 s{T0}, s{T0}, {o['FSZ']}\ns_add_u32 s{T0}, s{T0}, {WS_FZ}"
        self.flag_store(pre, T0, 8)
        self.stamp("fz")
        self.middle_end(left[n1:], o.get('FHBJ', 8))

    def inbox_dma(self):
        k = self.k
        for n in range(8):
            a = n & 3
            with k.atomic():
                if n == 0:
                    k(f"s_lshl_b32 s{F7}, s{sWAVE}, 13")
                k(f"s_add_u32 m0, s{F7}, {L_INB + n*1024}")
                k(f"s_mov_b32 s{F0}, {(8*(16*(a>>1)+4*(a&1)) + (n>>2))*PFB}")
                self.t_in = k.vmem(f"buffer_load_dwordx4 v{224+(a&1)}, s[{sWS}:{sWS+3}], s{F0} offen sc1 lds")

    def sfft_body(self, fill):
        k = self.k
        o = self.opt
        DAT, ACT, ACX, TM = 16, 48, 80, 112
        TW1, TW2, F64, F32 = self.TW1, self.TW2, self.F64, self.F32
        k.wait_vm(self.t_in)
        k("s_barrier")
        self.stamp("inbox")
        k.begin()
        toks = []
        for tau in range(4):
            for part in range(2):
                toks.append(k.ds(f"ds_read_b128 {V(DAT+16*part+4*tau,4)}, v{226+2*(tau>>1)+part} offset:{(tau&1)*8192}"))
        Fr, Fi, NFi = F64, F64 + 16, F64 + 32
        R, Im = V(ACT, 16), V(ACT + 16, 16)
        for tau in range(4):
            k.wait_lg(toks[2 * tau], est=(60 if tau == 0 else 0))
            k(f"v_mfma_f32_32x32x16_bf16 {R}, {V(DAT+4*tau,4)}, {A(Fr+4*tau,4)}, {'0' if tau == 0 else R}")
            k(f"v_mfma_f32_32x32x16_bf16 {Im}, {V(DAT+4*tau,4)}, {A(Fi+4*tau,4)}, {'0' if tau == 0 else Im}")
            k.wait_lg(toks[2 * tau + 1])
            k(f"v_mfma_f32_32x32x16_bf16 {R}, {V(DAT+16+4*tau,4)}, {A(NFi+4*tau,4)}, {R}")
            k(f"v_mfma_f32_32x32x16_bf16 {Im}, {V(DAT+16+4*tau,4)}, {A(Fr+4*tau,4)}, {Im}")
        tw = [k.ds(f"ds_read_b128 {V(DAT+16+4*g,4)}, v230 offset:{g*8192}") for g in range(4)]
        k(f"s_lshl_b32 s{T3}, s{sWAVE}, 12\ns_add_u32 s{T3}, s{T3}, {L_EXC}\nv_add_u32 v120, s{T3}, v6\nv_xor_b32 v121, 4096, v120")
        self.cmul(ACT, TW1, +1, DAT, TM)
        fr, fi, nfi = F32, F32 + 8, F32 + 16
        XR, XI = V(ACX, 16), V(ACX + 16, 16)
        fst = True
        k.wait_lg(tw[-1])
        un = [f"v_lshlrev_b32 v{ACT+i}, 16, v{DAT+16+i}\nv_and_b32 v{ACT+16+i}, 0xffff0000, v{DAT+16+i}" for i in range(16)]
        for t in range(2):
            for (dat, cre, cim) in ((DAT, fr, fi), (DAT + 8, nfi, fr)):
                k(f"v_mfma_f32_32x32x16_bf16 {XR}, {A(cre+4*t,4)}, {V(dat+4*t,4)}, {'0' if fst else XR}")
                k(un.pop(0)), k(un.pop(0))
                k(f"v_mfma_f32_32x32x16_bf16 {XI}, {A(cim+4*t,4)}, {V(dat+4*t,4)}, {'0' if fst else XI}")
                k(un.pop(0)), k(un.pop(0))
                fst = False
        if o.get("FHPOS", 1) == 2:
            self.fh_store()
        self.cmul(ACX, ACT, -1, DAT, TM)
        if o.get("FHPOS", 1) == 1:
            self.fh_store()
        k.begin()
        self.pi_v(122, 4, 123)
        k(f"s_and_b32 s{T3}, s{sJOB}, 1\ns_bfe_u32 s{T4}, s{sJOB}, 0x10002\ns_lshl_b32 s{T4}, s{T4}, 1\ns_or_b32 s{T3}, s{T3}, s{T4}")
        k(f"s_and_b32 s{T4}, s{sWAVE}, 1\ns_lshl_b32 s{T4}, s{T4}, 1\ns_xor_b32 s{T3}, s{T3}, s{T4}\ns_lshl_b32 s{T3}, s{T3}, 5")
        k(f"s_lshr_b32 s{T4}, s{sWAVE}, 1\ns_mul_i32 s{T4}, s{T4}, {ZSTU}\ns_add_u32 s{T4}, s{T4}, {L_ZST}")
        k(f"v_mul_u32_u24 v122, 272, v122\nv_lshl_add_u32 v122, v3, 4, v122\nv_add_u32 v122, s{T4}, v122")
        k(f"s_xor_b32 s{T6}, s{T3}, 32\nv_add_u32 v123, s{T6}, v122\nv_add_u32 v122, s{T3}, v122")
        k(f"s_and_b32 s{T3}, s{sWAVE}, 1\ns_mul_i32 s{T6}, s{T3}, {16*272}\ns_add_u32 s{T4}, s{T4}, s{T6}")
        k(f"v_lshrrev_b32 v124, 4, v1\nv_mul_u32_u24 v124, 272, v124\nv_and_b32 v125, 15, v1\nv_lshl_add_u32 v124, v125, 4, v124\nv_add_u32 v124, s{T4}, v124")
        k(f"s_lshr_b32 s{T4}, s{sWAVE}, 1\ns_mul_i32 s{T4}, s{T4}, 160\ns_add_u32 s{T4}, s{T4}, s{sJOB}\ns_lshl_b32 s{T4}, s{T4}, 13")
        k(f"s_cmp_eq_u32 s{sJOB}, 160\ns_cselect_b32 s{T4}, 128, s{T4}\ns_lshl_b32 s{T3}, s{T3}, 12\ns_add_u32 s{T4}, s{T4}, s{T3}\ns_add_u32 s{T4}, s{T4}, {WS_Z}")
        k(f"s_mul_i32 s{T1}, s{sJOB}, 2\ns_lshr_b32 s{T2}, s{sWAVE}, 1\ns_add_u32 s{T1}, s{T1}, s{T2}")
        k(f"s_cmp_eq_u32 s{T1}, 0\ns_cselect_b32 s{sEX}, 0x00ff00ff, -1\ns_cmp_eq_u32 s{T1}, 320\ns_cselect_b32 s{sEX}, 0x00ff00ff, s{sEX}\ns_mov_b32 s{sEX+1}, s{sEX}")
        k(f"s_cmp_eq_u32 s{T1}, 321\ns_cselect_b32 s{T4}, {WS_SIZE}, s{T4}")
        ad = k.end()
        fst = True
        for t in range(2):
            for (dat, cre, cim) in ((DAT, fr, nfi), (DAT + 8, fi, fr)):
                k(f"v_mfma_f32_32x32x16_bf16 {R}, {V(dat+4*t,4)}, {A(cre+4*t,4)}, {'0' if fst else R}")
                k.put(ad[:2]); ad = ad[2:]
                k(f"v_mfma_f32_32x32x16_bf16 {Im}, {V(dat+4*t,4)}, {A(cim+4*t,4)}, {'0' if fst else Im}")
                k.put(ad[:1]); ad = ad[1:]
                fst = False
        k.put(ad)
        self.cmul(ACT, TW2, -1, DAT, TM)
        for q in range(4):
            k.ds(f"ds_write_b128 v120, {V(DAT+4*q,4)} offset:{1024*q}")
        n = 0
        for t in range(2):
            for (dat, cre, cim) in ((DAT, Fr, NFi), (DAT + 8, Fi, Fr)):
                k(f"v_mfma_f32_32x32x16_bf16 {XR}, {A(cre+4*t,4)}, {V(dat+4*t,4)}, {'0' if n == 0 else XR}")
                k(f"v_mfma_f32_32x32x16_bf16 {XI}, {A(cim+4*t,4)}, {V(dat+4*t,4)}, {'0' if n == 0 else XI}")
                if n == 1:
                    with k.atomic():
                        k.drain_lg()
                        k("s_barrier")
                    for q in range(4):
                        k.ds(f"ds_read_b128 {V(DAT+16+4*q,4)}, v121 offset:{1024*q}")
                    if o.get("FHPOS", 1) == 0:
                        self.fh_store()
                n += 1
        k.drain_lg()
        for t in range(2):
            for (dat, cre, cim) in ((DAT + 16, Fr, NFi), (DAT + 24, Fi, Fr)):
                k(f"v_mfma_f32_32x32x16_bf16 {XR}, {A(cre+8+4*t,4)}, {V(dat+4*t,4)}, {XR}")
                k(f"v_mfma_f32_32x32x16_bf16 {XI}, {A(cim+8+4*t,4)}, {V(dat+4*t,4)}, {XI}")
        main = k.end()
        left = k.weave(main, fill, start=o.get("SFS", 100), interval=o.get("SFI", 110), tail=False)
        for part in range(2):
            for gg in range(2):
                for j in range(4):
                    r = ACX + 16 * part + 8 * gg + 2 * j
                    k(f"v_cvt_pk_bf16_f32 v{DAT+8*part+4*gg+j}, v{r}, v{r+1}")
                k.ds(f"ds_write_b128 v{122+gg}, {V(DAT+8*part+4*gg,4)} offset:{128*part}")
        k.drain_lg()
        k("s_barrier")
        toks = [k.ds(f"ds_read_b128 {V(DAT+16+4*n,4)}, v124 offset:{4*272*n}") for n in range(4)]
        for n in range(4):
            k.wait_lg(toks[n])
            with k.atomic():
                k(f"s_mov_b64 exec, s[{sEX}:{sEX+1}]")
                self.t_z = k.vmem(f"buffer_store_dwordx4 {V(DAT+16+4*n,4)}, v6, s[{sWS}:{sWS+3}], s{T4} offen offset:{1024*n} sc1")
                k("s_mov_b64 exec, -1")
        self.stamp("zst")
        return left

    def tail_setup(self):
        k = self.k
        k.begin()
        k(f"v_and_b32 v5, 15, v1\nv_lshrrev_b32 v2, 4, v1")
        for nb in range(4):
            k(f"s_add_u32 s{T0}, s{sWAVE}, {nb}\ns_and_b32 s{T0}, s{T0}, 3\ns_lshl_b32 s{T5}, s{sRB2}, 2\ns_add_u32 s{T0}, s{T0}, s{T5}")
            k(f"s_mul_i32 s{T0}, s{T0}, 55296\ns_lshl_b32 s{T5}, s{sWAVE}, 10\ns_add_u32 s{T0}, s{T0}, s{T5}\ns_add_u32 s{T0}, s{T0}, {WS_H}")
            k(f"v_add_u32 v{10+nb}, s{T0}, v6")
        k(f"s_cmp_eq_u32 s{sWAVE}, 0\ns_cselect_b32 s{T0}, 40, 39\ns_mul_i32 s{T1}, s{sWAVE}, {41*self.opt['FSZ']}\ns_add_u32 s{T1}, s{T1}, {WS_FZ}")
        k(f"v_min_u32 v196, s{T0}, v1\nv_mul_u32_u24 v196, {self.opt['FSZ']}, v196\nv_add_u32 v196, s{T1}, v196")
        k(f"s_lshl_b32 s{T0}, s{sRB2}, 8\ns_lshl_b32 s{T1}, s{sWAVE}, 15\ns_add_u32 s{T0}, s{T0}, s{T1}\ns_add_u32 s{T0}, s{T0}, {WS_Z}")
        k(f"v_lshlrev_b32 v199, 13, v2\nv_lshl_add_u32 v199, v5, 4, v199\nv_add_u32 v199, s{T0}, v199")
        k(f"v_bfe_u32 v200, v1, 2, 2\nv_lshlrev_b32 v201, 10, v2\nv_lshl_add_u32 v201, v200, 7, v201")
        k(f"v_lshrrev_b32 v200, 1, v200\nv_and_b32 v7, 1, v2\nv_lshl_or_b32 v200, v7, 1, v200\nv_xor_b32 v200, s{sWAVE}, v200\nv_lshl_add_u32 v201, v200, 5, v201")
        k(f"v_and_b32 v200, 3, v1\nv_lshl_add_u32 v201, v200, 3, v201\nv_add_u32 v200, {L_Z}, v201\nv_add_u32 v201, {L_Z + 40960}, v201")
        k(f"v_add_u32 v202, {L_G}, v6")
        k(f"s_mul_i32 s{T0}, s{sWAVE}, 2560\ns_add_u32 s{F4}, s{T0}, {L_XR}\nv_mul_u32_u24 v243, 160, v5\nv_add_u32 v243, s{F4}, v243")
        k(f"v_lshl_add_u32 v244, v7, 3, v243\nv_lshrrev_b32 v7, 1, v2\nv_mul_u32_u24 v7, 80, v7\nv_add3_u32 v244, v244, v7, 64\nv_lshl_add_u32 v243, v2, 3, v243")
        k(f"v_add_u32 v197, s{F4}, v6\ns_mul_i32 s{T0}, s{sWAVE}, {16*40960}\ns_add_u32 s{T0}, s{T0}, s{sXRB}")
        for n in range(3):
            k(f"v_add_u32 v7, {64*n}, v1\nv_mul_u32_u24 v2, 6554, v7\nv_lshrrev_b32 v2, 16, v2\nv_mul_u32_u24 v198, 10, v2\nv_sub_u32 v7, v7, v198")
            k(f"v_mul_u32_u24 v2, 40960, v2\nv_cmp_lt_u32 vcc, 4, v7\nv_lshl_add_u32 v2, v7, 4, v2\nv_add_u32 v7, 560, v2\nv_cndmask_b32 v2, v2, v7, vcc")
            k(f"v_add_u32 v{240+n}, s{T0}, v2")
        if self.opt.get("OUTD"):
            k(f"v_mul_u32_u24 v7, 40960, v5\nv_add_u32 v7, s{T0}, v7\nv_lshrrev_b32 v2, 4, v1\nv_lshl_add_u32 v248, v2, 3, v7")
            k(f"v_and_b32 v198, 1, v2\nv_lshl_add_u32 v249, v198, 3, v7\nv_lshrrev_b32 v2, 1, v2\nv_mul_u32_u24 v2, 640, v2\nv_add3_u32 v249, v249, v2, 64")
        k(f"v_lshlrev_b32 v5, 3, v5\ns_lshl_b32 s{F3}, s{sWAVE}, 10")
        with k.atomic():
            k(f"s_lshl_b32 s{T0}, s{sRB2}, 5\nv_add_u32 v7, s{T0}, v4\nv_mul_u32_u24 v7, {self.opt['FSH']}, v7\nv_add_u32 v7, {WS_FH}, v7")
            self.t_fh = self.poll_issue([(7, 14)])
        return k.end()

    def tail(self):
        k = self.k
        o = self.opt
        ACC, HB, XR_, EO, ZB = 16, 96, 208, 160, 180
        HD = o['HD']
        NBUF = HD + 1
        self.stamp("fhok")
        th = {}

        def cap(f):
            k.begin()
            f()
            return k.end()

        def hload(i):
            k.begin()
            if i == 13:
                L = k.lab("L_h13")
                with k.atomic():
                    k(f"s_cmp_ge_u32 s{sWAVE}, 2\ns_cbranch_scc1 {L}\ns_mov_b32 s{F0}, {13*4096}")
                    for nb in range(4):
                        th[i] = k.vmem(f"buffer_load_dwordx4 {V(HB+16*(i%NBUF)+4*nb,4)}, v{10+nb}, s[{sWS}:{sWS+3}], s{F0} offen sc1", opt=True)
                    k(f"{L}:")
                return k.end()
            for nb in range(4):
                th[i] = k.vmem(f"buffer_load_dwordx4 {V(HB+16*(i%NBUF)+4*nb,4)}, v{10+nb}, s[{sWS}:{sWS+3}], s{sRI(i)} offen sc1")
            return k.end()
        for i in range(HD):
            k.put(hload(i))
        FZR = [(196, 203)]
        tz = []

        def zd():
            for ks in range(20):
                with k.atomic():
                    k(f"s_add_u32 m0, s{F3}, {L_Z + ks*4096}\ns_mov_b32 s{F1_}, {ks*16*8192}")
                    tz.append(k.vmem(f"buffer_load_dwordx4 v199, s[{sWS}:{sWS+3}], s{F1_} offen sc1 lds"))
        zq = cap(zd)

        def xres():
            for n in range(3):
                with k.atomic():
                    k(f"s_add_u32 m0, s{F4}, {1024*n}")
                    if n == 2:
                        k("s_mov_b32 exec_hi, 0")
                    k.vmem(f"buffer_load_dwordx4 v{240+n}, s[{sX}:{sX+3}], 0 offen lds")
                    if n == 2:
                        k("s_mov_b32 exec_hi, -1")

        def stat():
            with k.atomic():
                k(f"s_lshl_b32 s{T0}, s{sRB2}, 6\ns_lshl_b32 s{T1}, s{sWAVE}, 4\ns_add_u32 s{T0}, s{T0}, s{T1}\ns_lshl_b32 s{T0}, s{T0}, 3\ns_add_u32 s{T0}, s{T0}, {WS_ST}")
                self.t_stat = k.vmem(f"buffer_load_dword v206, v5, s[{sWS}:{sWS+3}], s{T0} offen sc1")
        xq = cap(xres)
        lateq = [(i, self.w2_loads([i])) for i in range(o.get("W2LATE", 14), 14)]
        FZ = o["FZAT"]
        for i in range(14):
            fill = []
            if lateq and i % o.get("W2LS", 1) == 0:
                assert lateq[0][0] >= i + HD
                fill += lateq.pop(0)[1]
            if i + HD < 14:
                fill += hload(i + HD)
            if i >= o.get("XRAT", 2) and xq:
                fill.append(xq.pop(0))
            if i == FZ:
                fill += cap(lambda: setattr(self, "t_fz", self.poll_issue(FZR)))
            if i == FZ + 2:
                fill = cap(lambda: (self.stamp("fza"), self.poll_check(FZR, self.t_fz), self.stamp("fzb"))) + cap(stat) + fill
            if FZ + 2 <= i < 13:
                nz = o.get('NZ', 5)
                fill += zq[:nz]
                zq = zq[nz:]
            rd = []
            if 1 <= i <= 12:
                rd = cap(lambda: [k.ds(f"ds_read_b128 {A(4*q,4)}, v202 offset:{1024*q}") for q in range(5 * (i - 1), 5 * i)])
            if i == 13:
                L13 = k.lab("L_s13")
                k.put(zq[:o.get("NZ13", 5)])
                zq = zq[o.get("NZ13", 5):]
                snap = k.snapshot()
                k(f"s_cmp_ge_u32 s{sWAVE}, 2\ns_cbranch_scc1 {L13}")
            k.wait_vm(th[i])
            self.stamp(f"s{i}")
            pos = {}
            for n_, u in enumerate(fill):
                pos.setdefault(1 + n_ * 19 // max(len(fill), 1), []).append(u)
            for n_, u in enumerate(rd):
                pos.setdefault(2 + 4 * n_, []).append(u)
            n = 0
            for nb in (range(4) if i < 13 else (1, 2, 3, 0)):
                for b in range(5):
                    if "g2mm" in o.get("SKIP", "") and i and b:
                        n += 1
                        k.put(pos.pop(n, []))
                        continue
                    D = V(ACC + 20 * nb + 4 * b, 4)
                    k(f"v_mfma_f32_16x16x32_bf16 {D}, {self.w2reg(i,b)}, {V(HB+16*(i%NBUF)+4*nb,4)}, {'0' if i == 0 else D}")
                    n += 1
                    k.put(pos.pop(n, []))
            assert not pos
            if i == 13:
                k(f"{L13}:")
                k.restore(snap)
        self.stamp("g2")
        L = k.lab("L_gen")
        with k.atomic():
            k(f"s_cmp_lg_u32 s{sC}, 0\ns_cbranch_scc1 {L}")
            self.flag_store(f"s_mov_b32 s{T0}, {WS_GEN}", T0, 8)
            k(f"{L}:")
        for nb in range(1, 4):
            k(f"s_add_u32 s{T0}, s{sWAVE}, {nb}\ns_and_b32 s{T0}, s{T0}, 3\ns_mul_i32 s{T0}, s{T0}, 15360\ns_add_u32 s{T0}, s{T0}, {L_RED + (nb-1)*5120}")
            k(f"v_add_u32 v{10+nb}, s{T0}, v6")
        k(f"s_mul_i32 s{T0}, s{sWAVE}, 15360\ns_add_u32 s{T0}, s{T0}, {L_RED}\nv_add_u32 v10, s{T0}, v6")

        def zread(ks):
            base, off = (200, ks * 4096) if ks < 10 else (201, (ks - 10) * 4096)
            return [k.ds(f"ds_read_b64_tr_b16 {V(ZB+4*(ks&3)+2*jj,2)}, v{base} offset:{off+512*jj}") for jj in range(2)][-1]

        def idft(k0, k1, valu, per, tk):
            for ks in range(k0, k1):
                k.wait_lg(tk[ks])
                P = ks // 10
                for blk in range(3):
                    d = EO + (16 if blk == 2 else 8 * P + 4 * blk)
                    first = (ks % 10 == 0) if blk < 2 else ks == 0
                    k(f"v_mfma_f32_16x16x32_bf16 {V(d,4)}, {A(4*(3*ks+blk),4)}, {V(ZB+4*(ks&3),4)}, {'0' if first else V(d,4)}")
                    if blk == 0 and ks + 3 < 20:
                        tk[ks + 3] = zread(ks + 3)
                    else:
                        k.put(valu[:per])
                        del valu[:per]
            k.put(valu)
        loff = (0, 32, 80, 112, 0)
        k.drain_lg()
        k("s_barrier")
        self.stamp("red0")
        k.begin()
        for nb in range(1, 4 if "red" not in o.get("SKIP", "") else 1):
            for b in range(5):
                k.ds(f"ds_write_b128 v{10+nb}, {V(ACC+20*nb+4*b,4)} offset:{1024*b}")
        k.weave(k.end(), zq)
        self.stamp("redw")
        k.wait_vm(self.t_stat)
        for b in range(5):
            tx = k.ds(f"ds_read_b64 {V(XR_+2*b,2)}, v{244 if b == 4 else 243} offset:{loff[b]}")
        k("v_and_b32 v14, 0xffff0000, v206\nv_rcp_f32 v14, v14")
        k(f"s_nop 0\nv_mul_f32 v15, {fl(-math.log2(math.e))}, v14\nv_mul_f32 v14, {fl(2.0/(640*2048))}, v14")
        k.wait_vm(tz[19])
        k.drain_lg()
        k("s_barrier")
        self.stamp("red")
        K0 = o.get("IK0", 4)
        tk0 = {ks: zread(ks) for ks in range(3)}
        toks = [k.ds(f"ds_read_b128 {V(HB+4*q,4)}, v10 offset:{1024*q}") for q in range(15)]
        k.begin()
        for i in range(10):
            k(f"v_lshlrev_b32 v{ACC+20+2*i}, 16, v{XR_+i}\nv_and_b32 v{ACC+21+2*i}, 0xffff0000, v{XR_+i}")
        idft(0, K0, k.end(), 1, tk0)
        for s_ in range(3):
            k.wait_lg(toks[5 * s_ + 4])
            for i in range(0, 20, 2):
                k(f"v_pk_add_f32 {V(ACC+i,2)}, {V(ACC+i,2)}, {V(HB+20*s_+i,2)}")
        for i in range(0, 20, 2):
            k(f"v_pk_mul_f32 {V(HB+i,2)}, {V(ACC+i,2)}, v[14:15] op_sel:[0,1] op_sel_hi:[1,1]")
        for i in range(0, 20, 2):
            k(f"v_pk_mul_f32 {V(ACC+i,2)}, {V(ACC+i,2)}, v[14:15] op_sel_hi:[1,0]")
        k.begin()
        for i in range(20):
            k(f"v_exp_f32 v{HB+i}, v{HB+i}")
        for i in range(21):
            k((f"v_add_f32 v{HB+i}, 1.0, v{HB+i}\n" if i < 20 else "") + (f"v_rcp_f32 v{HB+i-1}, v{HB+i-1}" if i else ""))
        idft(K0, 20, k.end(), 1, tk0)
        self.stamp("idft")
        for i in range(0, 20, 2):
            k(f"v_pk_mul_f32 {V(ACC+i,2)}, {V(ACC+i,2)}, {V(HB+i,2)}")
        for b in range(5):
            for r in range(0, 4, 2):
                t = 10 + r
                if b < 4:
                    e, o_ = V(EO + 4 * (b & 1) + r, 2), V(EO + 8 + 4 * (b & 1) + r, 2)
                    k(f"v_pk_add_f32 {V(t,2)}, {e}, {o_}" + (" neg_lo:[0,1] neg_hi:[0,1]" if b >= 2 else ""))
                    src = V(t, 2)
                else:
                    src = V(EO + 16 + r, 2)
                k(f"v_pk_fma_f32 {V(t,2)}, {src}, {V(ACC+4*b+r,2)}, {V(ACC+20+4*b+r,2)}")
                k(f"v_cvt_pk_bf16_f32 v{HB+2*b+r//2}, v{t}, v{t+1}")
            if o.get("OUTD"):
                k.vmem(f"buffer_store_dwordx2 {V(HB+2*b,2)}, v{249 if b == 4 else 248}, s[{sOUT}:{sOUT+3}], 0 offen offset:{(0, 32, 640, 672, 0)[b]} {o.get('OST', '')}")
            else:
                k.ds(f"ds_write_b64 v{244 if b == 4 else 243}, {V(HB+2*b,2)} offset:{loff[b]}")
        if o.get("OUTD"):
            return
        self.stamp("fin")
        k.drain_lg()
        toks = [k.ds(f"ds_read_b128 {V(HB+12+4*n,4)}, v197 offset:{1024*n}") for n in range(3)]
        for n in range(3):
            k.wait_lg(toks[n])
            if n == 2:
                k("s_mov_b32 exec_hi, 0")
            k.vmem(f"buffer_store_dwordx4 {V(HB+12+4*n,4)}, v{240+n}, s[{sOUT}:{sOUT+3}], 0 offen {o.get('OST', '')}")
        k("s_mov_b32 exec_hi, -1")

    def build(self):
        k = self.k
        self.startup()
        o = self.opt
        self.stamp("iss0")
        self.setup_a()
        self.geometry()
        self.stamp("setup")
        k.put(self.role)
        if not o.get("CEARLY", 1):
            k.put(self.const_loads())
        fill = []
        for ch in o.get("P1ORD", "t0"):
            fill += self.dma_chunk(0) if ch == "0" else self.table_loads()
        self.n_fast = len(fill)
        for c in range(1, o["P1DMA"]):
            fill += self.dma_chunk(c)
        self.p1_fill = fill
        self.phase1()
        Ln, Lw, Lg = k.lab("L_narrow"), k.lab("L_widejob"), k.lab("L_join")
        k(f"s_cmp_lg_u32 s{sVAR}, 0\ns_cbranch_scc1 {Ln}")
        k(f"s_cmp_eq_u32 s{sC}, 0\ns_cbranch_scc1 {Lw}")
        snap = k.snapshot()
        tch = dict(self.t_chunk)
        self.middle_nojob(*self.gemm1(4, False))
        k(f"s_branch {Lg}")
        k(f"{Lw}:")
        k.restore(snap)
        self.t_chunk = dict(tch)
        self.middle_job(*self.gemm1(4, True))
        k(f"s_branch {Lg}")
        k(f"{Ln}:")
        k.restore(snap)
        self.t_chunk = dict(tch)
        self.middle_job(*self.gemm1(3, True))
        k(f"{Lg}:")
        k.all_opt()
        k.clear_lg()
        self.tail()
        self.finish()
        body = k.text(self.opt.get('ALIGN', 1), f'{KN}:\n.set tab_data, {KN}+0x12340\n.set tab_end, {KN}+0x23450\n.set tab_pf, {KN}+0x23000\n')
        hdr = open("recurrent_scan__spectral_gfnet__dense_activation_relu__prompt.s.ref").read().split("; Override launch")[0]
        s = hdr + f"; @launch grid=(256,1,1) block=(256,1,1) lds={LDS_BYTES}\n"
        s += NOTES
        s += f'.amdgcn_target "amdgcn-amd-amdhsa--gfx950"\n.text\n.globl {KN}\n.p2align 8\n.type {KN},@function\n{KN}:\n'
        s += body
        s += ".p2align 8\n.type tab_data,@object\ntab_data:\n"
        for f in tables()[:12]:
            u = bf16(f).reshape(-1).view(np.uint32)
            for i in range(0, 256, 8):
                s += ".long " + ",".join("0x%x" % x for x in u[i:i + 8]) + "\n"
        u = np.concatenate([lane_table().reshape(-1), lane_table2(), wg_table(self.opt).reshape(-1)])
        for i in range(0, len(u), 8):
            s += ".long " + ",".join("0x%x" % x for x in u[i:i + 8]) + "\n"
        s += f"tab_end:\n.set tab_pf, tab_data + {TAB_WG}\n.size tab_data, {TAB_BYTES}\n"
        s += f""".section .rodata,"a"
.p2align 6
.amdhsa_kernel {KN}
  .amdhsa_next_free_vgpr 512
  .amdhsa_next_free_sgpr 102
  .amdhsa_accum_offset 256
  .amdhsa_group_segment_fixed_size 0
  .amdhsa_kernarg_size 72
  .amdhsa_user_sgpr_count 2
  .amdhsa_user_sgpr_kernarg_segment_ptr 1
  .amdhsa_system_sgpr_workgroup_id_x 1
.end_amdhsa_kernel
"""
        return s


if __name__ == "__main__":
    out = sys.argv[1] if len(sys.argv) > 1 else "k.s"
    stop = sys.argv[2] if len(sys.argv) > 2 and sys.argv[2] != "-" else None
    g = Gen(stop=stop, stamps=(len(sys.argv) > 3 and sys.argv[3] == "1"))
    open(out, "w").write(g.build())
    print("written", out, "nops inserted", fix_hazards.total, "align", getattr(align8, "stats", None), "stamps", g.stn)
```

```python
import math, sys
import numpy as np
from kf import *

KN = "recurrent_scan__spectral_gfnet__dense_activation_relu__prompt_kernel"

WS_GEN = 0
WS_F1 = 0x20000
WS_FH = 0x40000
WS_FZ = 0x80000
WS_ST = 0x10000
PFB = 161 * 128
WS_PF = 0x100000
WS_W2 = 0x700000
WS_H = 0xA00000
WS_Z = 0x1200000
WS_STAMP = 0x2000000
WS_SIZE = 268435456

SLOT = 32768
NSLOT = 4
L_OUT = 131072
L_RP = L_OUT + 162 * 128
L_XN = 98304
L_CT = L_XN + 10240
L_CS = 65536
L_XR = 147456
L_G = 0
L_RED = 0
L_Z = 65536
L_INB = 131072
L_EXC = 98304
L_ZST = 114688
ZSTU = 32 * 272
LDS_BYTES = 163840

sX, sWS, sWR, sWI, sW1, sW2, sOUT, sTAB = 4, 8, 12, 16, 20, 24, 28, 32
sRB, sU0, sVAR, sJOB, sRB2, sJ, sROT, sR2, sW2B, sXB, sW1B, sOB, sRPB, sXRB, sHB0, sFHO = range(36, 52)
sWAVE, sC, sXCD, sIDX, sTAG, sNS = range(52, 58)
sEX = 58
sST = 60
sM = 62
sWROW = 64
sBID = 64
sHB = 68
F0, F1_, F2, F3, F4, F5 = range(72, 78)
F6, F7 = 2, 3
sPOLL = 79
STAMP_REGS = list(range(80, 92)) + [78, 100, 101]
T0, T1, T2, T3, T4, T5, T6, T7 = range(92, 100)

SPIN_MAX = 200000


def sRI(i):
    return (list(range(12, 20)) + list(range(24, 28)) + [57])[i]


DEF_ST = 'x B0 B2 B4 B7 g1mm g1done inbox zst fz fhok g2 red'.split()


def pi_(m):
    return (m & ~12) | ((m & 4) << 1) | ((m & 8) >> 1)


def bf16(x):
    u = np.asarray(x, dtype=np.float32).view(np.uint32).astype(np.uint64)
    return (((u + 0x7FFF + ((u >> 16) & 1)) >> 16) & 0xFFFF).astype(np.uint16)


def tables():
    fr = []
    for part in range(2):
        for t in range(3):
            f = np.zeros((64, 8))
            for l in range(64):
                n, h = l & 31, l >> 5
                f1, e1 = n >> 1, n & 1
                for j in range(8):
                    Q = 4 * t + 2 * h + (j >> 2)
                    if Q >= 10 or n >= 22 or Q // 5 != e1:
                        continue
                    d1 = 4 * (Q % 5) + (j & 3)
                    th = 2 * math.pi * ((d1 * f1) % 20) / 20
                    f[l, j] = math.cos(th) if part == 0 else -math.sin(th)
            fr.append(f)
    for kind in range(3):
        for t in range(2):
            f = np.zeros((64, 8))
            for l in range(64):
                a = pi_(l & 31)
                for j in range(8):
                    b = 16 * t + 8 * (l >> 5) + j
                    th = 2 * math.pi * ((a * b) % 32) / 32
                    f[l, j] = [math.cos(th), -math.sin(th), math.sin(th)][kind]
            fr.append(f)
    for hb in range(2):
        for kind in range(3):
            for tau in range(4):
                t = tau ^ (2 * hb)
                f = np.zeros((64, 8))
                for l in range(64):
                    a = 32 * hb + pi_(l & 31)
                    for j in range(8):
                        b = 16 * t + 8 * (l >> 5) + j
                        th = 2 * math.pi * ((a * b) % 64) / 64
                        f[l, j] = [math.cos(th), -math.sin(th), math.sin(th)][kind]
                fr.append(f)
    return fr


def lane_table():
    t = np.zeros((4, 64, 16), np.uint32)
    for w in range(4):
        for l in range(64):
            h, n = l >> 5, l & 31
            f2 = pi_(n)
            for p in range(6):
                f1 = 4 * (p >> 1) + 2 * h + (p & 1)
                f = f1 + 20 * f2
                U = 322
                if f1 <= 10 and f <= 320:
                    U = f
                elif 1 <= f1 <= 9:
                    U = 640 - f
                line = U >> 1
                for part in range(2):
                    t[w, l, 6 * part + p] = L_OUT + line * 128 + ((4 * (U & 1) + part) ^ ((line >> 1) & 7)) * 16 + 4 * w
            t[w, l, 12] = 0x80008000 if f2 > 15 else 0
            t[w, l, 13] = L_XN + 2560 * w + 1280 * h + 8 * n
            kk, c, G = (l >> 2) & 3, l & 3, (l >> 4) & 1
            b = L_XN + 2560 * w + kk * 64 + (16 * G + 8 * (c & 1) + 4 * (c >> 1)) * 2
            t[w, l, 14] = b + 512 * h
            t[w, l, 15] = b
    return t[:, :, :12].reshape(4, 64, 3, 4).transpose(0, 2, 1, 3).copy()


def wg_geometry(wg):
    xcd, idx = wg & 7, wg >> 3
    c = xcd * 32 + idx
    rg, cg, cb = xcd >> 1, xcd & 1, idx & 7
    RB = rg * 4 + (idx >> 3)
    RB2 = rg * 8 + (idx >> 2)
    j = cg * 4 + (idx & 3)
    wide = cb < 3
    u0 = 4 * cb + 30 * cg if wide else (27 if (cg, cb) == (1, 3) else 3 * cb + 3 + 27 * cg)
    job = 160 if c == 0 else xcd * 20 + (idx >> 3) * 5 + cb - 3 if not wide else 0
    return xcd, idx, c, rg, cg, cb, RB, RB2, j, wide, u0, job


def wg_table(o):
    t = np.zeros((256, 16), np.uint32)
    for wg in range(256):
        xcd, idx, c, rg, cg, cb, RB, RB2, j, wide, u0, job = wg_geometry(wg)
        if o.get("G2MAP", 81) == 81:
            RB2, j = xcd * 4 + (idx >> 3), idx & 7
        if o.get("G2MAP", 81) == 24:
            RB2, j = (xcd >> 2) * 16 + (idx >> 1), (xcd & 3) * 2 + (idx & 1)
        rot = (cb + 8 * cg + 3 * RB) % 10 if o["ROT"] else 0
        r2 = (o.get("ROTJ", 0) * j + o.get("ROTR", 0) * RB2) % 13
        var = 0 if wide else 1 + (u0 & 1)
        t[wg] = [RB, u0, var, job, RB2, j, rot, r2, WS_W2 + j * 276480, 2 * RB * 1280, (u0 >> 1) * 128, WS_PF + c * PFB,
                 WS_W2 + (c >> 2) * 5120 + (c & 3) * 256 if c < 216 else WS_SIZE, RB2 * 1280 + 80 * j,
                 WS_H + RB * 8 * 55296 + u0 * 1024, WS_FH + (RB * 64 + (cg * 8 + cb) * 2) * o['FSH']]
    return t


def lane_table2():
    t = np.zeros((4, 64, 12), np.uint32)
    v = np.zeros((3, 4, 64, 4), np.uint32)
    for w in range(4):
        for l in range(64):
            h, n = l >> 5, l & 31
            u, m, kk, cc = l >> 4, l & 15, (l >> 2) & 3, l & 3
            for tt in range(4):
                t[w, l, tt] = w * 4096 + n * 128 + (((2 * tt + h) ^ ((n >> 1) & 7)) * 16)
            t[w, l, 4] = (16 * w + m) * 40960 + 8 * u
            t[w, l, 5] = (16 * w + m) * 40960 + 64 + 8 * (u & 1) + 640 * (u >> 1)
            for i in range(3):
                q = w + 4 * i
                jh, b = min(q // 5, 1), q % 5
                col = (0, 32, 640, 672)[b] + 8 * cc if b < 4 else 64 + 8 * (cc & 1) + 640 * (cc >> 1)
                t[w, l, 6 + i] = L_RP + kk * 1280 + 80 * (4 * jh + u) + col
                t[w, l, 9 + i] = (4 * jh + u) * 276480 + b * 1024 + m * 16 if q < 10 else WS_SIZE
            lane = (8 * h + kk) * 128 + ((l >> 4) & 1) * 32 + (cc & 1) * 16 + (cc >> 1) * 8
            for var in range(3):
                nb, hf0 = (4, 0) if var == 0 else (3, var - 1)
                for bi in range(4):
                    b = hf0 + (bi + w) % nb
                    v[var, w, l, bi] = 16384 + (b >> 1) * 8192 + lane + (((b & 1) ^ (kk >> 1)) * 64)
    return np.concatenate([t.reshape(4, 64, 3, 4).transpose(0, 2, 1, 3).reshape(-1), v.reshape(-1)])


TAB_F20, TAB_LC, TAB_L2, TAB_LV, TAB_WG = 0, 12 * 1024, 24 * 1024, 36 * 1024, 48 * 1024
TAB_BYTES = 64 * 1024


NOTES = """; One persistent workgroup per CU (generated by a script; straight-line code, three role variants):
;  1. layer norm + 640-point DFT (20 x 32 on MFMA) of 8 rows; transpose of 8 rows of W; repack of 8 rows of w2 -> d_ws
;  2. GEMM1 tile relu(x.w1 - mean * colsum(w1)) (1/std is applied at the end) -> d_ws
; Hand-offs: write-through stores, acknowledged, then a flag that holds a per-launch tag; readers poll (bounded) and bypass L1.
"""


class Gen:
    def __init__(self, stop=None, stamps=False, **opt):
        self.k = K()
        self.stop = stop
        self.stamps = stamps
        self.nst = 0
        self.stn = []
        self.opt = dict(FS1=16, FSH=16, FSZ=16, RPE=1, FLAG_AT=3, F1CHK=8, ROT=1, P1DMA=3, P1START=1000, F1AT=5, FZAT=8, NV0=4, NV=2, HD=4)
        self.opt.update(opt)

    def nt(self, key):
        return " nt" if key in self.opt.get("NT", "") else ""

    def stamp(self, name):
        if not self.stamps:
            return
        sel = self.opt.get("ST")
        if name not in ("start", "end") and ((sel and name not in sel.split()) or (not sel and name not in DEF_ST)):
            return
        k = self.k
        if name in self.stn:
            i = self.stn.index(name)
        else:
            i = len(self.stn)
            self.stn.append(name)
        with k.atomic():
            k(f"{'s_memtime' if self.stamps == 'cyc' else 's_memrealtime'} s[{sST}:{sST+1}]")
            k.drain_lg()
            k(f"s_mov_b32 s{STAMP_REGS[i]}, s{sST}")

    def pi_v(self, d, s, t):
        k = self.k
        k(f"v_and_b32 v{d}, 0x13, v{s}")
        k(f"v_bfe_u32 v{t}, v{s}, 2, 1")
        k(f"v_lshl_or_b32 v{d}, v{t}, 3, v{d}")
        k(f"v_bfe_u32 v{t}, v{s}, 3, 1")
        k(f"v_lshl_or_b32 v{d}, v{t}, 2, v{d}")

    def poll_issue(self, regs, opt=False):
        k = self.k
        return [k.vmem(f"buffer_load_dword v{dr}, v{ar}, s[{sWS}:{sWS+3}], 0 offen sc1", opt=opt) for ar, dr in regs][-1]

    def poll_check(self, regs, tok, wave0=False):
        k = self.k
        L, Ld = k.lab("L_poll"), k.lab("L_polld")
        with k.atomic():
            if wave0:
                snap = k.snapshot()
                k(f"s_cmp_lg_u32 s{sWAVE}, 0\ns_cbranch_scc1 {Ld}")
            k.wait_vm(tok)
            if wave0:
                k.restore(snap)
            k(f"s_mov_b32 s{sPOLL}, 0")
            k(f"{L}:")
            for i, (ar, dr) in enumerate(regs):
                if i == 0:
                    k(f"v_cmp_ne_u32 vcc, s{sTAG}, v{dr}")
                else:
                    k(f"v_cmp_ne_u32 s[{sM}:{sM+1}], s{sTAG}, v{dr}")
                    k(f"s_or_b64 vcc, vcc, s[{sM}:{sM+1}]")
            k(f"s_add_u32 s{sPOLL}, s{sPOLL}, 1")
            k("s_cmp_eq_u64 vcc, 0")
            k(f"s_cbranch_scc1 {Ld}")
            for ar, dr in regs:
                k(f"buffer_load_dword v{dr}, v{ar}, s[{sWS}:{sWS+3}], 0 offen sc1")
            k("s_waitcnt vmcnt(0)")
            k(f"s_cmp_lt_u32 s{sPOLL}, {SPIN_MAX}")
            k(f"s_cbranch_scc1 {L}")
            k(f"{Ld}:")

    def flag_store(self, pre, sreg, vtmp):
        k = self.k
        L = k.lab("L_fs")
        with k.atomic():
            k(f"s_cmp_lg_u32 s{sWAVE}, 0")
            k(f"s_cbranch_scc1 {L}")
            k(pre)
            k(f"v_mov_b32 v{vtmp}, s{sTAG}")
            k(f"v_mov_b32 v{vtmp+1}, 0")
            k("s_mov_b64 exec, 1")
            k.vmem(f"buffer_store_dword v{vtmp}, v{vtmp+1}, s[{sWS}:{sWS+3}], s{sreg} offen sc1", opt=True)
            k("s_mov_b64 exec, -1")
            k(f"{L}:")

    def finish(self):
        k = self.k
        k("L_fin:")
        if self.opt.get("DELAY"):
            k(f"s_mov_b32 s{T0}, 0\nL_dl:")
            for i in range(50):
                k("v_add_f32 v2, v2, v2")
            k(f"s_add_u32 s{T0}, s{T0}, 1\ns_cmp_lt_u32 s{T0}, {self.opt['DELAY']}\ns_cbranch_scc1 L_dl")
        if self.opt.get("DBG"):
            k("s_waitcnt vmcnt(0)\ns_memrealtime s[80:81]\ns_memtime s[82:83]\ns_waitcnt lgkmcnt(0)")
            k(f"s_cmp_lg_u32 s{sWAVE}, 0\ns_cbranch_scc1 L_end")
            k("s_mov_b32 s86, 256\ns_mov_b32 s87, 0x20000\ns_not_b32 s90, s90\ns_sub_u32 s82, s82, s88")
            k("v_mov_b32 v2, 0\nv_mov_b32 v3, s90\nv_mov_b32 v4, s80\nv_mov_b32 v5, s82\ns_mov_b64 exec, 1")
            k("buffer_atomic_umax v3, v2, s[84:87], 0 offen\nbuffer_atomic_umax v4, v2, s[84:87], 0 offen offset:4\nbuffer_atomic_umax v5, v2, s[84:87], 0 offen offset:8")
        if self.stamps:
            self.stamp("end")
            k(f"s_cmp_lg_u32 s{sWAVE}, 0\ns_cbranch_scc1 L_end")
            if self.opt.get("DBGW") is not None:
                k(f"s_cmp_lg_u32 s{sC}, {self.opt['DBGW']}\ns_cbranch_scc1 L_end")
                k(f"s_load_dwordx2 s[{sX}:{sX+1}], s[0:1], 56\ns_waitcnt lgkmcnt(0)\ns_mov_b32 s{sX+2}, 256\nv_mov_b32 v2, 0\ns_mov_b64 exec, 1")
                for i in range(len(self.stn)):
                    k(f"s_sub_u32 s{T0}, s{STAMP_REGS[i]}, s{STAMP_REGS[0]}\nv_mov_b32 v3, s{T0}")
                    k(f"buffer_store_dword v3, v2, s[{sX}:{sX+3}], 0 offen offset:{4*i}")
                k("s_branch L_end")
            k(f"s_lshl_b32 s{T0}, s{sIDX}, 3\ns_add_u32 s{T0}, s{T0}, s{sXCD}\ns_lshl_b32 s{T0}, s{T0}, 8\ns_add_u32 s{T0}, s{T0}, {WS_STAMP}\nv_mov_b32 v2, 0")
            k("s_mov_b64 exec, 1")
            for i in range(len(self.stn)):
                k(f"v_mov_b32 v3, s{STAMP_REGS[i]}")
                k(f"buffer_store_dword v3, v2, s[{sWS}:{sWS+3}], s{T0} offen offset:{4*i}")
        k("L_end:")
        k("s_endpgm")

    def startup(self):
        k = self.k
        o = self.opt
        if self.stamps:
            for i in STAMP_REGS:
                k(f"s_mov_b32 s{i}, 0")
        self.stamp("start")
        if o.get("DBG"):
            k("s_memrealtime s[90:91]\ns_memtime s[88:89]\ns_load_dwordx2 s[84:85], s[0:1], 56")
        k("s_cmp_ge_u32 s2, 256\ns_cbranch_scc1 L_end")
        k(f"s_load_dwordx2 s[{sX}:{sX+1}], s[0:1], 0")
        k(f"s_load_dwordx2 s[{sWR}:{sWR+1}], s[0:1], 8")
        k(f"s_load_dwordx2 s[{sWI}:{sWI+1}], s[0:1], 16")
        k(f"s_load_dwordx2 s[{sW2}:{sW2+1}], s[0:1], 40")
        k(f"s_load_dwordx2 s[{sWS}:{sWS+1}], s[0:1], 64")
        k(f"v_lshrrev_b32 v2, 6, v0\nv_and_b32 v1, 63, v0")
        k(f"s_and_b32 s{sXCD}, s2, 7\ns_lshr_b32 s{sIDX}, s2, 3")
        k(f"v_readfirstlane_b32 s{sWAVE}, v2")
        k(f"s_lshl_b32 s{sC}, s{sXCD}, 5\ns_add_u32 s{sC}, s{sC}, s{sIDX}")
        k(f"s_and_b32 s{T0}, s{sC}, 7\ns_lshl_b32 s{T0}, s{T0}, 2\ns_add_u32 s{T0}, s{T0}, s{sWAVE}\ns_lshl_b32 s{T0}, s{T0}, 6")
        k(f"s_lshr_b32 s{T1}, s{sC}, 3\ns_add_u32 s{T0}, s{T0}, s{T1}\ns_mul_i32 s{T0}, s{T0}, 1280")
        k("v_lshrrev_b32 v3, 5, v1")
        k("v_and_b32 v4, 31, v1")
        k("v_mul_u32_u24 v5, 40960, v3\nv_lshl_add_u32 v5, v4, 3, v5")
        k(f"s_mov_b32 s{sX+2}, 2621440\ns_mov_b32 s{sX+3}, 0x20000")
        k(f"s_getpc_b64 s[{T4}:{T4+1}]\nL_pc:\ns_sub_u32 s{T4}, s{T4}, L_pc-{KN}\ns_subb_u32 s{T4+1}, s{T4+1}, 0")
        k(f"s_mov_b32 s{T4+2}, tab_pf-{KN}\ns_mov_b32 s{T4+3}, 0x20000")
        k(f"s_lshl_b32 s{T2}, s{sIDX}, 2\ns_add_u32 s{T2}, s{T2}, s{sWAVE}\ns_lshl_b32 s{T2}, s{T2}, 7\nv_lshlrev_b32 v7, 14, v1")
        k("v_lshrrev_b32 v20, 3, v1\nv_mul_u32_u24 v8, 40960, v20\nv_lshrrev_b32 v9, 4, v1\nv_and_b32 v2, 7, v1\nv_xor_b32 v9, v9, v2")
        k(f"v_lshl_add_u32 v152, v9, 4, v8")
        k("s_waitcnt lgkmcnt(0)")
        self.t_x = [k.vmem(f"buffer_load_dwordx2 v[{10+2*i}:{11+2*i}], v5, s[{sX}:{sX+3}], s{T0} offen offset:{256*i}{self.nt('x')}") for i in range(5)]
        with k.atomic():
            k("s_mov_b64 exec, 0x7f")
            k.vmem(f"buffer_load_dword v5, v7, s[{T4}:{T4+3}], s{T2} offen{self.nt('p')}")
            k("s_mov_b64 exec, -1")
        k(f"s_add_u32 s{sTAB}, s{T4}, tab_data-{KN}\ns_addc_u32 s{sTAB+1}, s{T4+1}, 0")
        k(f"s_lshl_b32 s{T1}, s2, 6\ns_add_u32 s{T1}, s{T1}, {TAB_WG}")
        k(f"s_load_dwordx16 s[{sRB}:{sRB+15}], s[{sTAB}:{sTAB+1}], s{T1}")
        k(f"s_load_dword s{sTAG}, s[{sWS}:{sWS+1}], {WS_GEN}")
        k(f"s_load_dwordx2 s[{sW1}:{sW1+1}], s[0:1], 32")
        k(f"s_load_dwordx2 s[{sOUT}:{sOUT+1}], s[0:1], 48")
        for s_, n in ((sWR, 2048 * 642), (sWI, 2048 * 642), (sW2, 1728 * 1280)):
            k(f"s_mov_b32 s{s_+2}, {n}\ns_mov_b32 s{s_+3}, 0x20000")
        k(f"v_subrev_u32 v151, s{sWAVE}, v0\nv_min_u32 v150, 160, v151\nv_lshlrev_b32 v150, 2, v150\nv_lshlrev_b32 v6, 4, v1")
        k(f"s_mov_b32 s{sTAB+2}, {TAB_BYTES}\ns_mov_b32 s{sTAB+3}, 0x20000")
        if o.get("CEARLY", 1) == 1:
            k.put(self.const_loads())
        self.role = self.role_loads()
        if o.get("RPF"):
            self.role = self.role[16:] + self.role[:16]
        if o.get("CEARLY", 1) == 2:
            self.role[16:16] = self.const_loads()
        n0 = o.get("ROLE0", 20)
        k.put(self.role[:n0])
        self.role = self.role[n0:]
        self.stamp("or")
        k(f"s_lshr_b32 s{T5}, s{sWAVE}, 1\ns_and_b32 s{T6}, s{sWAVE}, 1\ns_lshl_b32 s{T6}, s{T6}, 10\ns_add_u32 s{T5}, s{T5}, s{T6}\ns_mul_i32 s{T5}, s{T5}, 1280")
        k(f"v_add_u32 v152, s{T5}, v152\nv_xor_b32 v153, 64, v152")
        k(f"v_add_u32 v153, 327680, v153\nv_add_u32 v154, 655360, v152\nv_add_u32 v155, 655360, v153")
        k(f"s_mul_i32 s{T5}, s{sWAVE}, {16*3456}\ns_mov_b32 s{sW1+2}, {640*3456}\ns_mov_b32 s{sW1+3}, 0x20000")
        k("v_mul_u32_u24 v8, 3456, v20\nv_bfe_u32 v9, v1, 4, 1\nv_lshlrev_b32 v9, 2, v9\nv_xor_b32 v9, v9, v2")
        k(f"v_lshl_add_u32 v156, v9, 4, v8\nv_add_u32 v156, s{T5}, v156\nv_add_u32 v157, {8*3456}, v156")
        k(f"s_lshl_b32 s{F3}, s{sWAVE}, 12\ns_lshl_b32 s{F4}, s{sWAVE}, 11")
        self.t_chunk = {}

    def const_loads(self):
        k = self.k
        k.begin()
        with k.atomic():
            k(f"s_mul_i32 s{F0}, s{sWAVE}, 3072\ns_add_u32 m0, s{F0}, {L_CT}\nv_add_u32 v121, {L_CT}, v6")
            for i in range(3):
                self.t_c = k.vmem(f"buffer_load_dwordx4 v6, s[{sTAB}:{sTAB+3}], s{F0} offen offset:{i*1024} lds")
        return k.end()

    def table_loads(self):
        k = self.k
        k.begin()
        for i, r in enumerate((128, 136, 140)):
            with k.atomic():
                if i == 0:
                    k(f"s_mul_i32 s{F5}, s{sWAVE}, 3072\ns_add_u32 s{F5}, s{F5}, {TAB_L2}")
                k.vmem(f"buffer_load_dwordx4 {V(r,4)}, v6, s[{sTAB}:{sTAB+3}], s{F5} offen offset:{i*1024}")
        with k.atomic():
            k(f"s_lshl_b32 s{F5}, s{sVAR}, 2\ns_add_u32 s{F5}, s{F5}, s{sWAVE}\ns_lshl_b32 s{F5}, s{F5}, 10\ns_add_u32 s{F5}, s{F5}, {TAB_LV}")
            k.vmem(f"buffer_load_dwordx4 {V(132,4)}, v6, s[{sTAB}:{sTAB+3}], s{F5} offen")
        for i in range(3):
            with k.atomic():
                if i == 0:
                    k(f"s_mul_i32 s{F5}, s{sWAVE}, 3072\ns_add_u32 s{F5}, s{F5}, {TAB_LC}")
                self.t_l2 = k.vmem(f"buffer_load_dwordx4 {V(208+4*i,4)}, v6, s[{sTAB}:{sTAB+3}], s{F5} offen offset:{i*1024}")
        return k.end()

    def role_loads(self):
        k = self.k
        k.begin()
        for i in range(16):
            with k.atomic():
                if i == 0:
                    k(f"s_and_b32 s{F5}, s{sC}, 1\ns_lshl_b32 s{F5}, s{F5}, 5\ns_lshr_b32 s{F0}, s{sC}, 3\ns_add_u32 s{F5}, s{F5}, s{F0}")
                    k(f"s_bfe_u32 s{F0}, s{sC}, 0x10002\ns_lshl_b32 s{F0}, s{F0}, 10\ns_add_u32 s{F5}, s{F5}, s{F0}")
                    k(f"s_bfe_u32 s{F0}, s{sC}, 0x10001\ns_lshl_b32 s{F0}, s{F0}, 8\ns_add_u32 s{F5}, s{F5}, s{F0}")
                    k(f"s_mul_i32 s{F5}, s{F5}, 642\ns_and_b32 s{F5}, s{F5}, -4")
                elif i % 2 == 0:
                    k(f"s_add_u32 s{F5}, s{F5}, {(5 if i == 8 else 1)*64*642}")
                srd = sWI if i & 1 else sWR
                self.t_w = k.vmem(f"buffer_load_dword v{self.WRAW+i}, v150, s[{srd}:{srd+3}], s{F5} offen{self.nt('w')}")
        for n in range(3):
            with k.atomic():
                k(f"s_lshl_b32 s{F0}, s{sWAVE}, 10\ns_add_u32 m0, s{F0}, {L_RP + n*4096}\ns_mul_i32 s{F5}, s{sC}, 10240\ns_add_u32 s{F5}, s{F5}, s{F0}")
                if n:
                    k(f"s_add_u32 s{F5}, s{F5}, {n*4096}")
                if n == 2:
                    k(f"s_cmp_ge_u32 s{sWAVE}, 2\ns_cselect_b32 m0, {LDS_BYTES}, m0")
                self.t_rp = k.vmem(f"buffer_load_dwordx4 v6, s[{sW2}:{sW2+3}], s{F5} offen{self.nt('r')} lds")
        return k.end()

    WRAW, WPK = 184, 20

    def w_pack(self):
        k = self.k
        W = self.WRAW
        k.begin()
        k(f"s_bitcmp1_b32 s{sC}, 3\ns_mov_b32 s{T2}, 0x07060302\ns_mov_b32 s{T3}, 0x05040100\ns_cselect_b32 s{T6}, s{T2}, s{T3}\ns_cselect_b32 s{T7}, s{T3}, s{T2}")
        k(f"v_cmp_eq_u32 vcc, 63, v1\nv_min_u32 v8, 161, v151\nv_mov_b32 v9, 161\nv_cndmask_b32 v8, v8, v9, vcc")
        k(f"v_bfe_u32 v9, v8, 1, 3\nv_lshlrev_b32 v9, 4, v9\nv_lshl_add_u32 v8, v8, 7, v9\nv_add_u32 v8, {L_OUT}, v8")
        k.wait_vm(self.t_w)
        for q, lc in enumerate((2, 3, 6, 7)):
            if q == 2:
                L = k.lab("L_wsh")
                with k.atomic():
                    k(f"s_bitcmp0_b32 s{sC}, 3\ns_cbranch_scc1 {L}")
                    for i in range(16):
                        k(f"v_mov_b32_dpp v{W+i}, v{W+i} wave_shl:1 row_mask:0xf bank_mask:0xf")
                    k(f"{L}:")
            for r in range(4):
                i = 4 * (q & 1) + r
                k(f"v_perm_b32 v{self.WPK+4*q+r}, v{W+1+2*i}, v{W+2*i}, s{T6 if q < 2 else T7}")
            with k.atomic():
                k(f"v_xor_b32 v9, {16*lc}, v8")
                self.t_wp = k.ds(f"ds_write_b128 v9, {V(self.WPK+4*q,4)}")
        return k.end()

    def geometry(self):
        k = self.k
        k("v_lshrrev_b32 v7, 4, v1\nv_xor_b32 v7, v7, v1\nv_and_b32 v7, 1, v7\nv_cmp_eq_u32 vcc, 0, v7\nv_mov_b32 v8, 0x3f803f80\nv_lshlrev_b32 v252, 4, v0\nv_cndmask_b32 v124, 0, v8, vcc")
        k(f"v_mov_b32 v125, v124\nv_mov_b32 v126, v124\nv_mov_b32 v127, v124\nv_add_u32 v253, {L_OUT}, v252")
        k(f"s_mul_i32 s{T0}, s{sWAVE}, 2560\ns_add_u32 s{T0}, s{T0}, {L_XN}")
        k(f"v_mul_u32_u24 v7, 1280, v3\nv_lshl_add_u32 v7, v4, 3, v7\nv_add_u32 v221, s{T0}, v7")
        k("v_bfe_u32 v7, v1, 2, 2\nv_lshlrev_b32 v7, 6, v7\nv_bfe_u32 v8, v1, 4, 1\nv_lshl_or_b32 v7, v8, 5, v7\nv_mul_u32_u24 v220, 0x8000, v8")
        k("v_and_b32 v8, 1, v1\nv_lshl_or_b32 v7, v8, 4, v7\nv_bfe_u32 v8, v1, 1, 1\nv_lshl_or_b32 v7, v8, 3, v7\nv_lshl_or_b32 v220, v220, 16, v220")
        k(f"v_add_u32 v223, s{T0}, v7\nv_lshl_add_u32 v222, v3, 9, v223")
        k.drain_lg()
        for s_, n in ((sWS, WS_SIZE), (sOUT, 2621440)):
            k(f"s_mov_b32 s{s_+2}, {n}\ns_mov_b32 s{s_+3}, 0x20000")
        k(f"s_mul_i32 s{sTAG}, s{sTAG}, 1664525\ns_add_u32 s{sTAG}, s{sTAG}, 1013904223")
        k(f"s_mul_i32 s{T5}, s{sWAVE}, 5120\ns_add_u32 s{sW2B}, s{sW2B}, s{T5}")

    F20V, F32V = 160, 224

    def gen_consts(self):
        k = self.k
        self.pi_v(7, 4, 8)
        k(f"v_cvt_f32_u32 v7, v7\nv_lshlrev_b32 v8, 3, v3\nv_cvt_f32_u32 v8, v8\nv_mul_f32 v7, {fl(1/32)}, v7\nv_mul_f32 v8, v8, v7")
        for t in range(2):
            for jp in range(4):
                b = 16 * t + 2 * jp
                k(f"v_fmamk_f32 v9, v7, {fl(float(b))}, v8\nv_add_f32 v2, v9, v7")
                k("v_cos_f32 v20, v9\nv_cos_f32 v21, v2\nv_sin_f32 v22, v9\nv_sin_f32 v23, v2")
                r = self.F32V + 4 * t + jp
                k(f"v_cvt_pk_bf16_f32 v{r}, v20, v21\nv_cvt_pk_bf16_f32 v{r+8}, -v22, -v23\nv_cvt_pk_bf16_f32 v{r+16}, v22, v23")
        k(f"v_lshrrev_b32 v7, 1, v4\nv_cvt_f32_u32 v7, v7\nv_cvt_f32_u32 v8, v3\nv_mul_f32 v7, {fl(1/20)}, v7\nv_mul_f32 v8, v8, v7")
        for t in range(3):
            for jj in range(2):
                q0, q1 = 4 * t + jj, 4 * t + jj + 2
                m = 0
                for l in range(64):
                    Q = q1 if l >> 5 else q0
                    if Q < 10 and (l & 31) < 22 and Q // 5 == (l & 1):
                        m |= 1 << l
                d0, d1 = 4 * (q0 % 5), 4 * (q1 % 5)
                k(f"s_mov_b32 s{sM}, 0x{m & 0xffffffff:x}\ns_mov_b32 s{sM+1}, 0x{m >> 32:x}")
                k(f"v_mul_f32 v9, {fl(float(d1 - d0))}, v8\nv_fmamk_f32 v9, v7, {fl(float(d0))}, v9")
                for jp in range(2):
                    k("v_add_f32 v2, v9, v7\nv_cos_f32 v20, v9\nv_cos_f32 v21, v2\nv_sin_f32 v22, v9\nv_sin_f32 v23, v2")
                    r = self.F20V + 4 * t + 2 * jj + jp
                    if jp == 0:
                        k("v_add_f32 v9, v2, v7")
                    k(f"v_cvt_pk_bf16_f32 v20, v20, v21\nv_cvt_pk_bf16_f32 v22, -v22, -v23")
                    k(f"v_cndmask_b32 v{r}, 0, v20, s[{sM}:{sM+1}]\nv_cndmask_b32 v{r+12}, 0, v22, s[{sM}:{sM+1}]")

    def slot_of(self, c):
        return [0, 1, 2, 3, 0, 4, 1, 2, 3, 0][c] if self.opt.get("S5") else c % NSLOT

    def earliest(self, c):
        prev = [p for p in range(c) if self.slot_of(p) == self.slot_of(c)]
        return prev[-1] + 2 if prev else (1 if c == 5 else 0)

    def dma_chunk(self, c):
        k = self.k
        slot = self.slot_of(c) * SLOT
        k.begin()
        for n in range(8):
            with k.atomic():
                if n == 0:
                    k(f"s_add_u32 s{F0}, s{sROT}, {c}\ns_cmp_ge_u32 s{F0}, 10\ns_cselect_b32 s{F1_}, 10, 0\ns_sub_u32 s{F0}, s{F0}, s{F1_}")
                    k(f"s_lshl_b32 s{F1_}, s{F0}, 7\ns_mul_i32 s{F2}, s{F0}, {64*3456}\ns_add_u32 s{F1_}, s{F1_}, s{sXB}\ns_add_u32 s{F2}, s{F2}, s{sW1B}")
                m = n >> 1
                if n & 1 == 0:
                    k(f"s_add_u32 m0, s{F3}, {slot + m*1024}")
                    self.t_chunk[c] = k.vmem(f"buffer_load_dwordx4 v{152+m}, s[{sX}:{sX+3}], s{F1_} offen{self.nt('c') if self.opt.get('NTC0', 0) <= c < self.opt.get('NTC', 10) else ''} lds")
                else:
                    L, rg = m & 1, m >> 1
                    k(f"s_add_u32 m0, s{F4}, {slot + 16384 + L*(8192-128) + rg*1024}")
                    self.t_chunk[c] = k.vmem(f"buffer_load_dwordx4 v{156+rg}, s[{sW1}:{sW1+3}], s{F2} offen offset:{128*L}{self.nt('1') if self.opt.get('NTC0', 0) <= c < self.opt.get('NTC', 10) else ''} lds")
        return k.end()

    def setup_a(self):
        k = self.k
        k("v_lshrrev_b32 v7, 1, v4\nv_cvt_f32_u32 v7, v7")
        k(f"v_mul_f32 v7, {fl(1/640)}, v7")
        k("v_lshlrev_b32 v8, 3, v3\nv_cvt_f32_u32 v8, v8\nv_mul_f32 v8, v8, v7")
        for i in range(16):
            g, r = i >> 2, i & 3
            d = 16 * (g >> 1) + 4 * (g & 1) + r
            k(f"v_fmamk_f32 v9, v7, {fl(float(d))}, v8")
            k(f"v_cos_f32 v{84+i}, v9")
            k(f"v_sin_f32 v{100+i}, v9")

    def xres_loads(self):
        k = self.k
        k.begin()
        for b in range(5):
            k.vmem(f"buffer_load_dwordx2 {V(240+2*b,2)}, v{251 if b == 4 else 250}, s[{sX}:{sX+3}], 0 offen offset:{(0, 32, 640, 672, 0)[b]}")
        return k.end()

    def setup_b(self):
        k = self.k
        k.begin()
        k.wait_vm(self.t_l2)
        for i in range(6):
            k(f"v_mov_b32 v{144+i}, v{138+i}")
        for i in range(8):
            k(f"v_add_u32 v{136+i}, 0x10000, v{128+i}")
        return k.end()

    def reduce32(self, r, t):
        k = self.k
        for sh in (8, 4, 2, 1):
            k(f"v_add_f32_dpp v{r}, v{r}, v{r} row_ror:{sh} row_mask:0xf bank_mask:0xf")
        k(f"v_mov_b32 v{t}, v{r}")
        k(f"v_permlane16_swap_b32 v{t}, v{r}")
        k(f"v_add_f32 v{r}, v{r}, v{t}")

    def phase1(self):
        k = self.k
        o = self.opt
        k.wait_vm(self.t_x[-1])
        self.stamp("x")
        k.begin()
        for i in range(10):
            k(f"v_lshlrev_b32 v{20+2*i}, 16, v{10+i}\nv_and_b32 v{21+2*i}, 0xffff0000, v{10+i}")
        k("v_pk_add_f32 v[8:9], v[20:21], v[22:23]\nv_pk_add_f32 v[10:11], v[24:25], v[26:27]")
        for i in range(4, 10, 2):
            k(f"v_pk_add_f32 v[8:9], v[8:9], v[{20+2*i}:{21+2*i}]\nv_pk_add_f32 v[10:11], v[10:11], v[{22+2*i}:{23+2*i}]")
        k("v_pk_add_f32 v[8:9], v[8:9], v[10:11]\nv_add_f32 v8, v8, v9")
        self.reduce32(8, 9)
        k(f"v_mul_f32 v8, {fl(1/640)}, v8")
        for i in range(10):
            k(f"v_pk_add_f32 v[{20+2*i}:{21+2*i}], v[{20+2*i}:{21+2*i}], v[8:9] op_sel_hi:[1,0] neg_lo:[0,1] neg_hi:[0,1]")
        k("v_pk_mul_f32 v[10:11], v[20:21], v[20:21]\nv_pk_mul_f32 v[12:13], v[22:23], v[22:23]")
        for i in range(2, 10, 2):
            k(f"v_pk_fma_f32 v[10:11], v[{20+2*i}:{21+2*i}], v[{20+2*i}:{21+2*i}], v[10:11]")
            k(f"v_pk_fma_f32 v[12:13], v[{22+2*i}:{23+2*i}], v[{22+2*i}:{23+2*i}], v[12:13]")
        k("v_pk_add_f32 v[10:11], v[10:11], v[12:13]\nv_add_f32 v10, v10, v11")
        self.stamp("ln1")
        self.reduce32(10, 11)
        k(f"v_mul_f32 v10, {fl(1/640)}, v10")
        k("v_cvt_pk_bf16_f32 v12, v8, v10")
        k("v_and_b32 v13, 0xffff0000, v12")
        k(f"v_add_f32 v13, {fl(1e-5)}, v13\nv_cvt_pk_bf16_f32 v13, v13, v13\nv_and_b32 v13, 0xffff0000, v13")
        k("v_sqrt_f32 v13, v13\nv_lshlrev_b32 v15, 16, v12\nv_cvt_pk_bf16_f32 v13, v13, v13\nv_and_b32 v13, 0xffff0000, v13")
        k("v_rcp_f32 v14, v13\nv_sub_f32 v15, v8, v15")
        k("v_mul_f32 v15, v15, v14")
        with k.atomic():
            k.wait_vm(self.t_c)
            if o.get("RPE"):
                k.wait_vm(self.t_rp)
            k("s_barrier")
        rds = [f"ds_read_b128 {A(208+4*i,4)}, v121 offset:{1024*i}" for i in range(12)]
        self.stamp("cb")
        for i in range(10):
            k(f"v_pk_fma_f32 v[{20+2*i}:{21+2*i}], v[{20+2*i}:{21+2*i}], v[14:15], v[14:15] op_sel:[0,0,1] op_sel_hi:[1,0,1]")
            if i < 6:
                k.ds(rds[i])
            if i & 1:
                k(f"v_cvt_pk_bf16_f32 v{39+i}, v{18+2*i}, v{19+2*i}\nv_cvt_pk_bf16_f32 v{40+i}, v{20+2*i}, v{21+2*i}")
                tw = k.ds(f"ds_write_b64 v221, v[{39+i}:{40+i}] offset:{128*(i-1)}")
        k("v_and_b32 v12, 0xffff, v12\nv_or_b32 v12, v12, v13")
        k(f"v_mov_b32 v13, s{sTAG}")
        k(f"s_lshl_b32 s{T0}, s{sC}, 6\ns_lshl_b32 s{T1}, s{sWAVE}, 4\ns_add_u32 s{T0}, s{T0}, s{T1}\ns_add_u32 s{T0}, s{T0}, {WS_ST}")
        k("v_lshlrev_b32 v2, 3, v3")
        k.wait_lg(tw, est=40)
        toks = []
        for t in range(3):
            for jj in range(2):
                ar = 222 if t < 2 else 223
                toks.append(k.ds(f"ds_read_b64_tr_b16 v[{40+4*t+2*jj}:{41+4*t+2*jj}], v{ar} offset:{t*1024+jj*256}"))
        for r in rds[6:]:
            tc = k.ds(r)
        with k.atomic():
            k("s_mov_b32 exec_lo, 1\ns_mov_b32 exec_hi, 1")
            k.vmem(f"buffer_store_dwordx2 v[12:13], v2, s[{sWS}:{sWS+3}], s{T0} offen sc1")
            k("s_mov_b64 exec, -1")
        for t in range(3):
            k.wait_lg(toks[2 * t + 1], est=(60 if t == 0 else 0))
            for part in range(2):
                D = V(52 + 16 * part, 16)
                k(f"v_mfma_f32_32x32x16_bf16 {D}, {V(40+4*t,4)}, {A(208+12*part+4*t,4)}, {'0' if t == 0 else D}")
        self.stamp("dst1")
        if o.get("RPE"):
            rrd, rst = self.rp_units()
            k.put(rrd)
            k.begin()
            self.cmul(52, 84, +1, 160, 8)
            k.weave(k.end(), rst, start=40)
        else:
            self.cmul(52, 84, +1, 160, 8)
        main = k.end()
        fill = self.p1_fill
        k.begin()
        k.weave(main, fill[:self.n_fast], interval=o.get("P1T", 60))
        main = k.end()
        fill = k.weave(main, fill[self.n_fast:], start=o["P1START"], interval=o.get("P1I", 80), tail=False)
        assert not any(op[0] == "vm" and op[2] is self.t_l2 for u in fill for op in u)
        sb = self.setup_b() + self.w_pack()
        Fr, Fi, NFi = 232, 240, 248
        n = 0
        k.wait_lg(tc)
        for t in range(2):
            for (dat, cre, cim) in ((160, Fr, Fi), (168, NFi, Fr)):
                for D, cc in ((52, cre), (68, cim)):
                    k(f"v_mfma_f32_32x32x16_bf16 {V(D,16)}, {V(dat+4*t,4)}, {A(cc+4*t,4)}, {'0' if n < 2 else V(D,16)}")
                    n += 1
                    k.put(sb[:5]); sb = sb[5:]
        k.put(sb)
        self.p1_left = fill
        self.stamp("wpk")
        for p in range(6):
            r0 = 4 * (p >> 1) + 2 * (p & 1)
            k(f"v_cvt_pk_bf16_f32 v{8+(p&1)*2}, v{52+r0}, v{53+r0}\nv_cvt_pk_bf16_f32 v{9+(p&1)*2}, v{68+r0}, v{69+r0}")
            k(f"v_xor_b32 v{9+(p&1)*2}, v220, v{9+(p&1)*2}")
            k.ds(f"ds_write_b32 v{208+p}, v{8+(p&1)*2}")
            k.ds(f"ds_write_b32 v{214+p}, v{9+(p&1)*2}")
        self.stamp("p1done")

    def rp_units(self):
        k = self.k
        k.begin()
        k.wait_vm(self.t_l2)
        tr = [k.ds(f"ds_read_b64_tr_b16 {A(24+4*i+2*jj,2)}, v{138+i} offset:{5120*jj}") for i in range(3) for jj in range(2)]
        rd = k.end()
        k.begin()
        for i in range(3):
            with k.atomic():
                k.wait_lg(tr[2 * i + 1])
                k.vmem(f"buffer_store_dwordx4 {A(24+4*i,4)}, v{141+i}, s[{sWS}:{sWS+3}], s{sRPB} offen sc1")
        return rd, k.end()

    def out_units(self):
        k = self.k
        k.begin()
        toks = [k.ds(f"ds_read_b128 {A(4*i,4)}, v253 offset:{4096*i}") for i in range(6)]
        if not self.opt.get("RPE"):
            tr = [k.ds(f"ds_read_b64_tr_b16 {A(24+4*i+2*jj,2)}, v{144+i} offset:{5120*jj}") for i in range(3) for jj in range(2)]
        rd = k.end()
        k.begin()
        for i in range(6):
            with k.atomic():
                if i == 5:
                    L = k.lab("L_o6")
                    k(f"s_cmp_lg_u32 s{sWAVE}, 0\ns_cbranch_scc1 {L}\ns_mov_b64 exec, 0xff")
                if i:
                    k(f"s_add_u32 s{sOB}, s{sOB}, 4096")
                self.t_out = k.vmem(f"buffer_store_dwordx4 {A(4*i,4)}, v252, s[{sWS}:{sWS+3}], s{sOB} offen sc1", opt=(i == 5))
                if i == 5:
                    k(f"s_mov_b64 exec, -1\n{L}:")
        for i in range(0 if self.opt.get("RPE") else 3):
            self.t_out = k.vmem(f"buffer_store_dwordx4 {A(24+4*i,4)}, v{147+i}, s[{sWS}:{sWS+3}], s{sRPB} offen sc1")
        return rd, k.end()

    def cmul(self, src, c0, sgn, dst, t):
        k = self.k
        n1 = "" if sgn > 0 else " neg_lo:[1,0,0] neg_hi:[1,0,0]"
        n2 = " neg_lo:[1,0,0] neg_hi:[1,0,0]" if sgn > 0 else ""
        for p in range(8):
            re, im, c, s = V(src + 2 * p, 2), V(src + 16 + 2 * p, 2), V(c0 + 2 * p, 2), V(c0 + 16 + 2 * p, 2)
            q = t + 4 * (p & 1)
            k(f"v_pk_mul_f32 {V(q,2)}, {re}, {c}")
            k(f"v_pk_mul_f32 {V(q+2,2)}, {im}, {c}")
            k(f"v_pk_fma_f32 {V(q,2)}, {im}, {s}, {V(q,2)}{n1}")
            k(f"v_pk_fma_f32 {V(q+2,2)}, {re}, {s}, {V(q+2,2)}{n2}")
            k(f"v_cvt_pk_bf16_f32 v{dst+p}, v{q}, v{q+1}")
            k(f"v_cvt_pk_bf16_f32 v{dst+8+p}, v{q+2}, v{q+3}")

    TW1, TW2, F64, F32 = 160, 192, 184, 232

    def sfft_setup(self):
        k = self.k
        TW1, TW2 = self.TW1, self.TW2
        k.begin()
        k(f"v_lshrrev_b32 v2, 3, v1\nv_and_b32 v5, 3, v2\nv_lshrrev_b32 v7, 2, v2\nv_lshl_add_u32 v5, v7, 3, v5")
        k(f"s_mov_b32 s{T3}, {8*PFB}\nv_mul_lo_u32 v5, v5, s{T3}")
        k(f"s_bfe_u32 s{T3}, s{sJOB}, 0x30001\nv_lshrrev_b32 v7, 1, v2\nv_and_b32 v2, 7, v1\nv_xor_b32 v7, v7, v2\nv_xor_b32 v7, s{T3}, v7")
        k(f"s_lshl_b32 s{T3}, s{sJOB}, 7\ns_mul_i32 s{T4}, s{sWAVE}, {2*PFB}\ns_add_u32 s{T3}, s{T3}, s{T4}\ns_add_u32 s{T3}, s{T3}, {WS_PF}")
        k(f"v_add_u32 v5, s{T3}, v5\nv_lshl_add_u32 v224, v7, 4, v5\nv_xor_b32 v7, 4, v7\nv_lshl_add_u32 v225, v7, 4, v5")
        self.pi_v(2, 4, 5)
        k(f"s_and_b32 s{T0}, s{sWAVE}, 1\ns_lshl_b32 s{T0}, s{T0}, 5")
        k(f"v_add_u32 v5, s{T0}, v2\nv_cvt_f32_u32 v5, v5\nv_mul_f32 v5, {fl(1/2048)}, v5")
        k(f"v_cvt_f32_u32 v2, v2\nv_mul_f32 v2, {fl(1/2048)}, v2")
        k(f"v_lshlrev_b32 v7, 3, v3\nv_cvt_f32_u32 v232, v7\nv_mul_f32 v232, v232, v5")
        k(f"v_add_u32 v7, s{T0}, v7\nv_cvt_f32_u32 v233, v7\nv_mul_f32 v233, v233, v2")
        k(f"s_lshr_b32 s{T1}, s{sWAVE}, 1\ns_lshl_b32 s{T1}, s{T1}, 8\ns_or_b32 s{T1}, s{T1}, s{sJOB}\ns_cmp_eq_u32 s{T1}, 0\ns_cselect_b32 s{T2}, 0.5, 1.0\ns_cmp_eq_u32 s{T1}, 160\ns_cselect_b32 s{T2}, 0.5, s{T2}")
        for i in range(16):
            g, r = i >> 2, i & 3
            d = 16 * (g >> 1) + 4 * (g & 1) + r
            k(f"v_fmamk_f32 v7, v5, {fl(float(d))}, v232")
            k(f"v_fmamk_f32 v234, v2, {fl(float(d))}, v233")
            k(f"v_cos_f32 v{TW1+i}, v7")
            k(f"v_sin_f32 v{TW1+16+i}, v7")
            k(f"v_cos_f32 v{TW2+i}, v234")
            k(f"v_sin_f32 v{TW2+16+i}, v234")
        L = k.lab("L_tw2")
        with k.atomic():
            k(f"s_cmp_eq_u32 s{T2}, 1.0\ns_cbranch_scc1 {L}")
            for i in range(32):
                k(f"v_mul_f32 v{TW2+i}, 0.5, v{TW2+i}")
            k(f"{L}:")
        k(f"s_lshr_b32 s{T3}, s{sWAVE}, 1\ns_lshl_b32 s{T3}, s{T3}, 2\ns_and_b32 s{T4}, s{sWAVE}, 1")
        k(f"v_bfe_u32 v2, v1, 1, 3\nv_xor_b32 v2, s{T3}, v2\nv_lshlrev_b32 v5, 7, v4\nv_add_u32 v5, {L_INB}, v5")
        k(f"v_lshl_add_u32 v7, v2, 4, v5\nv_lshl_add_u32 v7, v3, 12, v7")
        k(f"s_lshl_b32 s{T3}, s{T4}, 14\nv_add_u32 v226, s{T3}, v7\nv_xor_b32 v227, 16, v226")
        k(f"s_xor_b32 s{T3}, s{T3}, 16384\nv_add_u32 v228, s{T3}, v7\nv_xor_b32 v229, 16, v228")
        k(f"v_xor_b32 v2, 2, v2\nv_xor_b32 v2, v3, v2\nv_lshl_add_u32 v230, v2, 4, v5\ns_lshl_b32 s{T3}, s{T4}, 12\nv_add_u32 v230, s{T3}, v230")
        return k.end()

    def sfft_consts(self):
        k = self.k
        k.begin()
        self.pi_v(2, 4, 5)
        k(f"s_and_b32 s{T0}, s{sWAVE}, 1\ns_lshl_b32 s{T0}, s{T0}, 5\nv_add_u32 v2, s{T0}, v2\nv_cvt_f32_u32 v2, v2\nv_mul_f32 v2, {fl(1/64)}, v2")
        k(f"v_lshl_add_u32 v5, v3, 3, s{T0}\nv_xor_b32 v7, 32, v5\nv_cvt_f32_u32 v5, v5\nv_cvt_f32_u32 v7, v7\nv_mul_f32 v5, v5, v2\nv_mul_f32 v7, v7, v2")
        for tau in range(4):
            for jp in range(4):
                r = self.F64 + 4 * tau + jp
                k(f"v_fmamk_f32 v232, v2, {fl(float(16*(tau&1) + 2*jp))}, v{5 if tau < 2 else 7}")
                k("v_add_f32 v233, v232, v2")
                k("v_cos_f32 v234, v232")
                k("v_cos_f32 v235, v233")
                k("v_sin_f32 v236, v232")
                k("v_sin_f32 v237, v233")
                k("v_cvt_pk_bf16_f32 v234, v234, v235")
                k("v_cvt_pk_bf16_f32 v238, -v236, -v237")
                k("v_cvt_pk_bf16_f32 v239, v236, v237")
                k(f"v_accvgpr_write_b32 a{r}, v234")
                k(f"v_accvgpr_write_b32 a{r+16}, v238")
                k(f"v_accvgpr_write_b32 a{r+32}, v239")
        return k.end()

    def gen_g(self):
        k = self.k
        k.begin()
        D, P, R2, R26, B = 112, 116, 122, 128, 136
        k(f"s_mul_i32 s{T0}, s{sJ}, 40\nv_and_b32 v158, 15, v1\nv_add_u32 v159, s{T0}, v158\nv_cvt_f32_u32 v{D}, v159\nv_add_f32 v{D+1}, 0x41800000, v{D}")
        k(f"v_and_b32 v159, 7, v158\nv_lshrrev_b32 v158, 3, v158\nv_mul_u32_u24 v158, 320, v158\nv_add3_u32 v159, v159, v158, s{T0}\nv_add_u32 v159, 32, v159\nv_cvt_f32_u32 v{D+2}, v159")
        k(f"s_and_b32 s{T0}, s{sWAVE}, 1\ns_mul_i32 s{T0}, s{T0}, 160\ns_lshr_b32 s{T1}, s{sWAVE}, 1\ns_add_u32 s{T0}, s{T0}, s{T1}")
        k(f"v_lshrrev_b32 v158, 4, v1\nv_lshl_add_u32 v158, v158, 3, s{T0}\nv_cvt_f32_u32 v{D+3}, v158")
        k(f"s_mul_i32 s{T0}, s{sWAVE}, 15360\ns_add_u32 s{T0}, s{T0}, {L_G}\nv_add_u32 v134, s{T0}, v6")
        for blk in range(3):
            k(f"v_mul_f32 v158, 0.5, v{D+blk}\nv_fract_f32 v158, v158\nv_mul_f32 v{D+blk}, {fl(1/640)}, v{D+blk}")
            k(f"v_cos_f32 v158, v158\nv_mul_f32 v159, v{D+3}, v{D+blk}\nv_cvt_pk_bf16_f32 v{160+blk}, 1.0, v158")
            k(f"v_fract_f32 v159, v159\nv_add_f32 v158, v{D+blk}, v{D+blk}\nv_mul_f32 v135, {fl(26.0)}, v{D+blk}")
            k(f"v_cos_f32 v{P+2*blk}, v159")
            k(f"v_sin_f32 v{P+2*blk+1}, -v159")
            k(f"v_cos_f32 v{R2+2*blk}, v158")
            k(f"v_sin_f32 v{R2+2*blk+1}, -v158")
            k(f"v_cos_f32 v{R26+2*blk}, v135")
            k(f"v_sin_f32 v{R26+2*blk+1}, -v135")
        for ks in range(5 if "gg" not in self.opt.get("SKIP", "") else 0):
            for jd in range(4):
                for blk in range(3):
                    b = (B if ks & 1 == 0 else 172) + 4 * blk
                    p = V(P + 2 * blk, 2)
                    k(f"v_cvt_pk_bf16_f32 v{b+jd}, v{P+2*blk}, v{P+2*blk+1}")
                    if not (ks == 4 and jd == 3):
                        r = V((R2 if jd < 3 else R26) + 2 * blk, 2)
                        t = V(164 + 2 * blk, 2)
                        k(f"v_pk_mul_f32 {t}, {p}, {r} op_sel_hi:[1,0]")
                        k(f"v_pk_fma_f32 {p}, {p}, {r}, {t} op_sel:[1,1,0] op_sel_hi:[0,1,1] neg_lo:[1,0,0]")
                    if jd == 3:
                        if ks == 0:
                            k(f"v_cmp_eq_f32 vcc, 0, v{D+3}\ns_nop 1\nv_cndmask_b32 v{b}, v{b}, v{160+blk}, vcc")
                        k.ds(f"ds_write_b128 v134, {V(b,4)} offset:{1024*(3*ks+blk)}")
        return k.end()

    def w2reg(self, i, b):
        q = 5 * i + b
        return A(4 * q, 4) if q < 64 else V(208 + 4 * (q - 64), 4)

    def w2_loads(self, steps):
        k = self.k
        k.begin()
        for i in steps:
            if "w2" in self.opt.get("SKIP", "") and i >= 7:
                continue
            if i == 13:
                L = k.lab("L_w13")
                with k.atomic():
                    k(f"s_cmp_ge_u32 s{sWAVE}, 2\ns_cbranch_scc1 {L}\ns_mov_b32 s{F5}, {13*4*5120}")
                    for b in range(5):
                        k.vmem(f"buffer_load_dwordx4 {self.w2reg(i,b)}, v{246 if b < 4 else 247}, s[{sWS}:{sWS+3}], s{F5} offen offset:{(b&3)*1024} sc1", opt=True)
                    k(f"{L}:")
                continue
            for b in range(5):
                with k.atomic():
                    if b == 0:
                        k(f"s_mul_i32 s{F5}, s{sRI(i)}, 5")
                    k.vmem(f"buffer_load_dwordx4 {self.w2reg(i,b)}, v{246 if b < 4 else 247}, s[{sWS}:{sWS+3}], s{F5} offen offset:{(b&3)*1024} sc1")
        return k.end()

    def gemm1(self, nb, job):
        k = self.k
        o = self.opt
        F1R = [(8, 12), (9, 13), (10, 14), (11, 15)]

        def cap(f):
            k.begin()
            f()
            return k.end()
        tok = {}

        def reads(c, t, bs):
            slot = self.slot_of(c)
            st, off0 = slot // 2, (slot % 2) * SLOT
            out = []
            for bi in range(nb):
                k.begin()
                if bi == 0:
                    k.ds(f"ds_read_b128 {V(112+4*bs,4)}, v{128+8*st+t} offset:{off0}")
                for jj in range(2):
                    tok[c, t, bi] = k.ds(f"ds_read_b64_tr_b16 {V(80+16*bs+4*bi+2*jj,2)}, v{132+8*st+bi} offset:{off0 + t*2048 + jj*512}")
                out.append(k.end())
            return out

        ord_, ost = self.out_units()
        if "out" in o.get("SKIP", ""):
            ost = ost[-1:]
        OB = 0
        nost = len(ost)
        vq = [(0, u) for u in self.p1_left]
        for c in range(o["P1DMA"], 10):
            vq += [(max(self.earliest(c), c - o.get('LA', 3)), u) for u in self.dma_chunk(c)]

        def f1i():
            L = k.lab("L_f1i")
            with k.atomic():
                k(f"s_cmp_lg_u32 s{sWAVE}, 0\ns_cbranch_scc1 {L}")
                k(f"v_mul_u32_u24 v8, {o['FS1']}, v1\nv_add_u32 v8, {WS_F1}, v8")
                for i in range(1, 4):
                    k(f"v_add_u32 v{8+i}, {64*o['FS1']*i}, v8")
                self.t_f1 = self.poll_issue(F1R, opt=True)
                k(f"{L}:")

        def fs():
            with k.atomic():
                k(f"s_lshl_b32 s{F0}, s{sRB}, 7\ns_lshl_b32 s{F5}, s{sWAVE}, 5\ns_add_u32 s{F0}, s{F0}, s{F5}\ns_lshl_b32 s{F0}, s{F0}, 3")
                k(f"s_add_u32 s{F0}, s{F0}, {WS_ST}\nv_lshlrev_b32 v231, 3, v4\nv_add_u32 v231, s{F0}, v231")
                self.t_st = k.vmem(f"buffer_load_dwordx2 v[158:159], v231, s[{sWS}:{sWS+3}], 0 offen sc1")
        f1u = cap(f1i)
        vq += [(0, u) for u in cap(fs)]
        ntail = 0
        late = []
        if job:
            late += cap(self.inbox_dma)
        npre = o.get("W2PREJ", 2) if job else o.get("W2PRE", 5)
        late += self.w2_loads(range(npre))

        def epi_addr():
            k(f"s_lshl_b32 s{T0}, s{sWAVE}, 7\ns_add_u32 s{T0}, s{T0}, {L_CS}")
            k(f"v_lshrrev_b32 v2, 4, v1\nv_lshlrev_b32 v2, 4, v2\nv_and_b32 v5, 1, v1\nv_lshl_or_b32 v2, v5, 6, v2\nv_add_u32 v2, s{T0}, v2")
            k(f"s_mul_i32 s{T0}, s{sWAVE}, {2*55296}\ns_add_u32 s{T0}, s{T0}, s{sHB0}")
            k("v_bfe_u32 v7, v1, 4, 1\nv_mul_u32_u24 v7, 55296, v7\nv_and_b32 v5, 15, v1\nv_lshl_add_u32 v7, v5, 4, v7\nv_lshl_add_u32 v7, v3, 8, v7")
            k(f"v_lshlrev_b32 v5, 4, v3\nv_add_u32 v5, {L_CS}, v5")
            for bi in range(nb):
                k(f"s_add_u32 s{T2}, s{sWAVE}, {bi}\ns_cmp_ge_u32 s{T2}, {nb}\ns_cselect_b32 s{T3}, {nb}, 0\ns_sub_u32 s{T2}, s{T2}, s{T3}")
                if nb == 3:
                    k(f"s_cmp_ge_u32 s{T2}, {nb}\ns_cselect_b32 s{T3}, {nb}, 0\ns_sub_u32 s{T2}, s{T2}, s{T3}")
                k(f"s_lshl_b32 s{sBID+bi}, s{T2}, 7\ns_lshl_b32 s{T2}, s{T2}, 10\ns_add_u32 s{sHB+bi}, s{T2}, s{T0}")

        def rot_idx():
            k(f"s_lshl_b32 s{sRI(0)}, s{sR2}, 12\nv_add_u32 v246, s{sW2B}, v6\nv_add_u32 v247, 4096, v246")
            for i in range(1, 13):
                k(f"s_add_u32 s{sRI(i)}, s{sRI(i-1)}, 4096\ns_cmp_eq_u32 s{sRI(i)}, {13*4096}\ns_cselect_b32 s{sRI(i)}, 0, s{sRI(i)}")

        def f32copy():
            for i in range(24):
                k(f"v_accvgpr_write_b32 a{self.F32+i}, v{self.F32V+i}")
        early = []
        def set5():
            for i in range(8 if o.get("S5") else 0):
                k(f"v_add_u32 v{144+i}, 0x20000, v{128+i}")
        pre5 = cap(set5)
        chore = cap(rot_idx) + (self.sfft_setup() + self.sfft_consts() if job else []) + cap(epi_addr)
        if "chore" in o.get("SKIP", "") and job:
            chore = cap(rot_idx) + self.sfft_setup()[:8] + cap(epi_addr)
        nchore = len(chore)
        CH0 = 0
        xq = []

        k.wait_vm(self.t_chunk[0])
        k.wait_vm(self.t_rp)
        k.drain_lg()
        k("s_barrier")
        self.stamp("B0")
        k.put(ord_)
        for g in reads(0, 0, 0):
            k.put(g)
        step = 0
        done_f1 = False
        for c in range(10):
            for t in range(4):
                bs = step & 1
                rd = [[] for _ in range(nb)]
                extra = []
                it = c
                if t < 3:
                    rd = reads(c, t + 1, bs ^ 1)
                elif c < 9:
                    it = c + 1
                    k.wait_vm(self.t_chunk[c + 1])
                    if c + 1 == o["FLAG_AT"]:
                        self.stamp("oa")
                        k.wait_vm(self.t_out)
                        self.stamp("ob")
                    if c + 1 == 5:
                        k.put(pre5)
                    if c + 1 == o["F1CHK"]:
                        self.stamp("f1a")
                        self.poll_check(F1R, self.t_f1, wave0=True)
                        self.stamp("f1b")
                        done_f1 = True
                    k("s_barrier")
                    self.stamp(f"B{c+1}")
                    rd = reads(c + 1, 0, bs ^ 1)
                    if c + 1 == o["FLAG_AT"]:
                        extra += cap(lambda: self.flag_store(f"s_mul_i32 s{F0}, s{sC}, {o['FS1']}\ns_add_u32 s{F0}, s{F0}, {WS_F1}", F0, 8))
                nv = o["NV"] if not done_f1 else o.get("NVL", 2)
                avail = 0
                while avail < len(vq) - ntail and vq[avail][0] <= it:
                    avail += 1
                nv = min(max(nv, -(-avail // ((3 - t) if t < 3 else 4))), o["NV0"])
                vm = []
                if step >= o.get("OSTEP", 2) and (avail == 0 or not o.get("OAFT") or len(ost) < nost):
                    for _ in range(o.get("NVO", 1)):
                        if ost:
                            vm.append(ost.pop(0))
                            nv += 1
                if step == o.get("F1STEP", 29):
                    vm += f1u
                    nv += 1
                if step >= o.get('XQ', 16) and xq:
                    vm.append(xq.pop(0))
                    nv += 1
                if done_f1 and not extra and job:
                    while len(vm) < nv and len(late) > 5 * npre:
                        vm.append(late.pop(0))
                while len(vm) < nv and vq and vq[0][0] <= it:
                    vm.append(vq.pop(0)[1])
                if done_f1 and not extra:
                    while len(vm) < nv and late:
                        vm.append(late.pop(0))
                want = nchore * max(step + 1 - CH0, 0) // (39 - CH0)
                ch = []
                if step < 6:
                    ch += early[:4]
                    del early[:4]
                while chore and nchore - len(chore) < want:
                    ch.append(chore.pop(0))
                gaps = [list(x) for x in rd]
                if "cs" not in o.get("SKIP", "") or step == 0:
                  gaps[0].append([("i", f"v_mfma_f32_16x16x32_bf16 v[120:123], {V(80+16*bs,4)}, v[124:127], {'0' if step == 0 else 'v[120:123]'}")])
                used = set()
                for i, u in enumerate(vm):
                    gi = nb - 1 - (len(vm) - 1 - i) * nb // max(len(vm), 2) if len(vm) <= nb else i * nb // len(vm)
                    if gi not in used and len(u) > 1 and u[-1][0] == "vm" and all(x[0] == "i" and x[1].startswith("s_") for x in u[:-1]):
                        gaps[gi] = [u[:-1]] + gaps[gi] + [u[-1:]]
                    else:
                        gaps[gi].append(u)
                    used.add(gi)
                gaps[nb - 1] = extra + gaps[nb - 1]
                last = 0
                for u in ch:
                    gi = min(range(last, nb), key=lambda g: sum(k.ucost(x) for x in gaps[g]) - (24 if g == 0 else 0))
                    last = gi
                    gaps[gi].append(u)
                for bi in range(nb):
                    D = V(16 + 16 * bi, 16)
                    if o.get("WM", 1) == 1:
                        k.wait_lg(tok[c, t, bi])
                    elif bi % 2 == 0:
                        k.wait_lg(tok[c, t, min(bi + 1, nb - 1)])
                    if "g1mm" not in o.get("SKIP", "") or step == 0 or bi == 0:
                        k(f"v_mfma_f32_32x32x16_bf16 {D}, {V(80+16*bs+4*bi,4)}, {V(112+4*bs,4)}, {'0' if step == 0 else D}")
                    k.put(gaps[bi])
                step += 1
        assert not chore and done_f1 and not ost and not xq and not early
        rest = [u for _, u in vq] + late
        self.stamp("g1mm")
        with k.atomic():
            k("s_mov_b32 exec_lo, 0x00030003\ns_mov_b32 exec_hi, 0x00030003")
            k.ds("ds_write_b128 v2, v[120:123]")
            k("s_mov_b64 exec, -1")
        for bi in range(nb):
            k(f"v_add_u32 v{9+bi}, s{sBID+bi}, v5")
        L, Ld = k.lab("L_st"), k.lab("L_std")
        with k.atomic():
            k.wait_vm(self.t_st)
            k(f"s_mov_b32 s{sPOLL}, 0")
            k(f"{L}:")
            k(f"v_cmp_ne_u32 vcc, s{sTAG}, v159")
            k(f"s_add_u32 s{sPOLL}, s{sPOLL}, 1")
            k(f"s_cmp_eq_u64 vcc, 0\ns_cbranch_scc1 {Ld}")
            k(f"buffer_load_dwordx2 v[158:159], v231, s[{sWS}:{sWS+3}], 0 offen sc1")
            k("s_waitcnt vmcnt(0)")
            k(f"s_cmp_lt_u32 s{sPOLL}, {SPIN_MAX}\ns_cbranch_scc1 {L}")
            k(f"{Ld}:")
        k("v_lshlrev_b32 v158, 16, v158")
        k.drain_lg()
        k("s_barrier")
        toks = {}

        def csr(bi):
            toks[bi] = [k.ds(f"ds_read_b128 {V(112+16*(bi&1)+4*g,4)}, v{9+bi} offset:{32*g}") for g in range(4)]
        csr(0)
        csr(1)
        for bi in range(nb):
            cb = 112 + 16 * (bi & 1)
            pk = 80 + 8 * bi
            for gg in range(2):
                k.wait_lg(toks[bi][2 * gg + 1])
                for r in range(0, 8, 2):
                    i = 8 * gg + r
                    k(f"v_pk_fma_f32 {V(16+16*bi+i,2)}, v[158:159], {V(cb+i,2)}, {V(16+16*bi+i,2)} op_sel_hi:[0,1,1] neg_lo:[1,0,0] neg_hi:[1,0,0]")
                for r in range(0, 8, 2):
                    i = 8 * gg + r
                    k(f"v_cvt_pk_bf16_f32 v{pk+i//2}, v{16+16*bi+i}, v{17+16*bi+i}")
                for r in range(0, 8, 2):
                    i = 8 * gg + r
                    k(f"v_pk_max_i16 v{pk+i//2}, v{pk+i//2}, 0")
                self.t_h = k.vmem(f"buffer_store_dwordx4 {V(pk+4*gg,4)}, v7, s[{sWS}:{sWS+3}], s{sHB+bi} offen offset:{512*gg} sc1")
            if bi + 2 < nb:
                csr(bi + 2)
        self.stamp("g1done")
        return npre, rest

    def fh_store(self):
        k = self.k
        with k.atomic():
            k.wait_vm(self.t_h)
            k(f"s_lshr_b32 s{T0}, s{sWAVE}, 1\ns_lshl_b32 s{T0}, s{T0}, 5\ns_and_b32 s{T1}, s{sWAVE}, 1\ns_add_u32 s{T0}, s{T0}, s{T1}\ns_mul_i32 s{T0}, s{T0}, {self.opt['FSH']}\ns_add_u32 s{T0}, s{T0}, s{sFHO}")
            k(f"v_mov_b32 v8, s{sTAG}\nv_mov_b32 v9, 0\ns_mov_b64 exec, 1")
            k.vmem(f"buffer_store_dword v8, v9, s[{sWS}:{sWS+3}], s{T0} offen sc1")
            k("s_mov_b64 exec, -1")
        self.stamp("fh")

    def middle_end(self, left, nback):
        k = self.k
        ts = self.tail_setup()
        nlast = min(nback, len(left))
        k.weave(ts[:-1], left[:len(left) - nlast], interval=self.opt.get("W2I", 80))
        k.put(ts[-1:])
        k.put(left[len(left) - nlast:])
        self.stamp("fha")
        self.poll_check([(7, 14)], self.t_fh)

    def middle_nojob(self, npre, rest):
        k = self.k
        o = self.opt
        rest = rest + self.w2_loads(range(npre, o.get('W2LATE', 14)))
        g = self.gen_g()
        n1 = len(g) * o.get("GFH", 100) // 100
        left = k.weave(g[:n1], rest, start=o.get("W2S", 0), interval=o.get("W2I", 80), tail=False)
        k.put(left[:o.get("WFH", 4)])
        self.fh_store()
        left = k.weave(g[n1:], left[o.get("WFH", 4):], interval=o.get("W2I", 80), tail=False)
        k.drain_lg()
        k("s_barrier")
        self.middle_end(left, o.get('FHB', 8))

    def middle_job(self, npre, rest):
        k = self.k
        o = self.opt
        isw2 = lambda u: not any(op[0] == "vm" and op[1].endswith("lds") for op in u)
        k.put([u for u in rest if not isw2(u)])
        pre = [u for u in rest if isw2(u)] + self.w2_loads(range(npre, min(9, o.get('W2LATE', 14))))
        left = self.sfft_body(pre)
        post = left + self.w2_loads(range(9, o.get('W2LATE', 14)))
        left = k.weave(self.gen_g(), post, interval=o.get("W2I", 80), tail=False)
        n1 = o.get("WFZ", 4)
        k.put(left[:n1])
        k.wait_vm(self.t_z)
        k.drain_lg()
        k("s_barrier")
        pre = f"s_bfe_u32 s{T0}, s{sJOB}, 0x20002\ns_mul_i32 s{T0}, s{T0}, 41\ns_lshr_b32 s{T1}, s{sJOB}, 4\ns_lshl_b32 s{T1}, s{T1}, 2\ns_add_u32 s{T0}, s{T0}, s{T1}\n"
        pre += f"s_and_b32 s{T1}, s{sJOB}, 3\ns_add_u32 s{T0}, s{T0}, s{T1}\ns_mul_i32 s{T0}, s{T0}, {o['FSZ']}\ns_add_u32 s{T0}, s{T0}, {WS_FZ}"
        self.flag_store(pre, T0, 8)
        self.stamp("fz")
        self.middle_end(left[n1:], o.get('FHBJ', 8))

    def inbox_dma(self):
        k = self.k
        for n in range(8):
            a = n & 3
            with k.atomic():
                if n == 0:
                    k(f"s_lshl_b32 s{F7}, s{sWAVE}, 13")
                k(f"s_add_u32 m0, s{F7}, {L_INB + n*1024}")
                k(f"s_mov_b32 s{F0}, {(8*(16*(a>>1)+4*(a&1)) + (n>>2))*PFB}")
                self.t_in = k.vmem(f"buffer_load_dwordx4 v{224+(a&1)}, s[{sWS}:{sWS+3}], s{F0} offen sc1 lds")

    def sfft_body(self, fill):
        k = self.k
        o = self.opt
        DAT, ACT, ACX, TM = 16, 48, 80, 112
        TW1, TW2, F64, F32 = self.TW1, self.TW2, self.F64, self.F32
        k.wait_vm(self.t_in)
        k("s_barrier")
        self.stamp("inbox")
        k.begin()
        toks = []
        for tau in range(4):
            for part in range(2):
                toks.append(k.ds(f"ds_read_b128 {V(DAT+16*part+4*tau,4)}, v{226+2*(tau>>1)+part} offset:{(tau&1)*8192}"))
        Fr, Fi, NFi = F64, F64 + 16, F64 + 32
        R, Im = V(ACT, 16), V(ACT + 16, 16)
        for tau in range(4):
            k.wait_lg(toks[2 * tau], est=(60 if tau == 0 else 0))
            k(f"v_mfma_f32_32x32x16_bf16 {R}, {V(DAT+4*tau,4)}, {A(Fr+4*tau,4)}, {'0' if tau == 0 else R}")
            k(f"v_mfma_f32_32x32x16_bf16 {Im}, {V(DAT+4*tau,4)}, {A(Fi+4*tau,4)}, {'0' if tau == 0 else Im}")
            k.wait_lg(toks[2 * tau + 1])
            k(f"v_mfma_f32_32x32x16_bf16 {R}, {V(DAT+16+4*tau,4)}, {A(NFi+4*tau,4)}, {R}")
            k(f"v_mfma_f32_32x32x16_bf16 {Im}, {V(DAT+16+4*tau,4)}, {A(Fr+4*tau,4)}, {Im}")
        tw = [k.ds(f"ds_read_b128 {V(DAT+16+4*g,4)}, v230 offset:{g*8192}") for g in range(4)]
        k(f"s_lshl_b32 s{T3}, s{sWAVE}, 12\ns_add_u32 s{T3}, s{T3}, {L_EXC}\nv_add_u32 v120, s{T3}, v6\nv_xor_b32 v121, 4096, v120")
        self.cmul(ACT, TW1, +1, DAT, TM)
        fr, fi, nfi = F32, F32 + 8, F32 + 16
        XR, XI = V(ACX, 16), V(ACX + 16, 16)
        fst = True
        k.wait_lg(tw[-1])
        un = [f"v_lshlrev_b32 v{ACT+i}, 16, v{DAT+16+i}\nv_and_b32 v{ACT+16+i}, 0xffff0000, v{DAT+16+i}" for i in range(16)]
        for t in range(2):
            for (dat, cre, cim) in ((DAT, fr, fi), (DAT + 8, nfi, fr)):
                k(f"v_mfma_f32_32x32x16_bf16 {XR}, {A(cre+4*t,4)}, {V(dat+4*t,4)}, {'0' if fst else XR}")
                k(un.pop(0)), k(un.pop(0))
                k(f"v_mfma_f32_32x32x16_bf16 {XI}, {A(cim+4*t,4)}, {V(dat+4*t,4)}, {'0' if fst else XI}")
                k(un.pop(0)), k(un.pop(0))
                fst = False
        if o.get("FHPOS", 1) == 2:
            self.fh_store()
        self.cmul(ACX, ACT, -1, DAT, TM)
        if o.get("FHPOS", 1) == 1:
            self.fh_store()
        k.begin()
        self.pi_v(122, 4, 123)
        k(f"s_and_b32 s{T3}, s{sJOB}, 1\ns_bfe_u32 s{T4}, s{sJOB}, 0x10002\ns_lshl_b32 s{T4}, s{T4}, 1\ns_or_b32 s{T3}, s{T3}, s{T4}")
        k(f"s_and_b32 s{T4}, s{sWAVE}, 1\ns_lshl_b32 s{T4}, s{T4}, 1\ns_xor_b32 s{T3}, s{T3}, s{T4}\ns_lshl_b32 s{T3}, s{T3}, 5")
        k(f"s_lshr_b32 s{T4}, s{sWAVE}, 1\ns_mul_i32 s{T4}, s{T4}, {ZSTU}\ns_add_u32 s{T4}, s{T4}, {L_ZST}")
        k(f"v_mul_u32_u24 v122, 272, v122\nv_lshl_add_u32 v122, v3, 4, v122\nv_add_u32 v122, s{T4}, v122")
        k(f"s_xor_b32 s{T6}, s{T3}, 32\nv_add_u32 v123, s{T6}, v122\nv_add_u32 v122, s{T3}, v122")
        k(f"s_and_b32 s{T3}, s{sWAVE}, 1\ns_mul_i32 s{T6}, s{T3}, {16*272}\ns_add_u32 s{T4}, s{T4}, s{T6}")
        k(f"v_lshrrev_b32 v124, 4, v1\nv_mul_u32_u24 v124, 272, v124\nv_and_b32 v125, 15, v1\nv_lshl_add_u32 v124, v125, 4, v124\nv_add_u32 v124, s{T4}, v124")
        k(f"s_lshr_b32 s{T4}, s{sWAVE}, 1\ns_mul_i32 s{T4}, s{T4}, 160\ns_add_u32 s{T4}, s{T4}, s{sJOB}\ns_lshl_b32 s{T4}, s{T4}, 13")
        k(f"s_cmp_eq_u32 s{sJOB}, 160\ns_cselect_b32 s{T4}, 128, s{T4}\ns_lshl_b32 s{T3}, s{T3}, 12\ns_add_u32 s{T4}, s{T4}, s{T3}\ns_add_u32 s{T4}, s{T4}, {WS_Z}")
        k(f"s_mul_i32 s{T1}, s{sJOB}, 2\ns_lshr_b32 s{T2}, s{sWAVE}, 1\ns_add_u32 s{T1}, s{T1}, s{T2}")
        k(f"s_cmp_eq_u32 s{T1}, 0\ns_cselect_b32 s{sEX}, 0x00ff00ff, -1\ns_cmp_eq_u32 s{T1}, 320\ns_cselect_b32 s{sEX}, 0x00ff00ff, s{sEX}\ns_mov_b32 s{sEX+1}, s{sEX}")
        k(f"s_cmp_eq_u32 s{T1}, 321\ns_cselect_b32 s{T4}, {WS_SIZE}, s{T4}")
        ad = k.end()
        fst = True
        for t in range(2):
            for (dat, cre, cim) in ((DAT, fr, nfi), (DAT + 8, fi, fr)):
                k(f"v_mfma_f32_32x32x16_bf16 {R}, {V(dat+4*t,4)}, {A(cre+4*t,4)}, {'0' if fst else R}")
                k.put(ad[:2]); ad = ad[2:]
                k(f"v_mfma_f32_32x32x16_bf16 {Im}, {V(dat+4*t,4)}, {A(cim+4*t,4)}, {'0' if fst else Im}")
                k.put(ad[:1]); ad = ad[1:]
                fst = False
        k.put(ad)
        self.cmul(ACT, TW2, -1, DAT, TM)
        for q in range(4):
            k.ds(f"ds_write_b128 v120, {V(DAT+4*q,4)} offset:{1024*q}")
        n = 0
        for t in range(2):
            for (dat, cre, cim) in ((DAT, Fr, NFi), (DAT + 8, Fi, Fr)):
                k(f"v_mfma_f32_32x32x16_bf16 {XR}, {A(cre+4*t,4)}, {V(dat+4*t,4)}, {'0' if n == 0 else XR}")
                k(f"v_mfma_f32_32x32x16_bf16 {XI}, {A(cim+4*t,4)}, {V(dat+4*t,4)}, {'0' if n == 0 else XI}")
                if n == 1:
                    with k.atomic():
                        k.drain_lg()
                        k("s_barrier")
                    for q in range(4):
                        k.ds(f"ds_read_b128 {V(DAT+16+4*q,4)}, v121 offset:{1024*q}")
                    if o.get("FHPOS", 1) == 0:
                        self.fh_store()
                n += 1
        k.drain_lg()
        for t in range(2):
            for (dat, cre, cim) in ((DAT + 16, Fr, NFi), (DAT + 24, Fi, Fr)):
                k(f"v_mfma_f32_32x32x16_bf16 {XR}, {A(cre+8+4*t,4)}, {V(dat+4*t,4)}, {XR}")
                k(f"v_mfma_f32_32x32x16_bf16 {XI}, {A(cim+8+4*t,4)}, {V(dat+4*t,4)}, {XI}")
        main = k.end()
        left = k.weave(main, fill, start=o.get("SFS", 100), interval=o.get("SFI", 110), tail=False)
        for part in range(2):
            for gg in range(2):
                for j in range(4):
                    r = ACX + 16 * part + 8 * gg + 2 * j
                    k(f"v_cvt_pk_bf16_f32 v{DAT+8*part+4*gg+j}, v{r}, v{r+1}")
                k.ds(f"ds_write_b128 v{122+gg}, {V(DAT+8*part+4*gg,4)} offset:{128*part}")
        k.drain_lg()
        k("s_barrier")
        toks = [k.ds(f"ds_read_b128 {V(DAT+16+4*n,4)}, v124 offset:{4*272*n}") for n in range(4)]
        for n in range(4):
            k.wait_lg(toks[n])
            with k.atomic():
                k(f"s_mov_b64 exec, s[{sEX}:{sEX+1}]")
                self.t_z = k.vmem(f"buffer_store_dwordx4 {V(DAT+16+4*n,4)}, v6, s[{sWS}:{sWS+3}], s{T4} offen offset:{1024*n} sc1")
                k("s_mov_b64 exec, -1")
        self.stamp("zst")
        return left

    def tail_setup(self):
        k = self.k
        k.begin()
        k(f"v_and_b32 v5, 15, v1\nv_lshrrev_b32 v2, 4, v1")
        for nb in range(4):
            k(f"s_add_u32 s{T0}, s{sWAVE}, {nb}\ns_and_b32 s{T0}, s{T0}, 3\ns_lshl_b32 s{T5}, s{sRB2}, 2\ns_add_u32 s{T0}, s{T0}, s{T5}")
            k(f"s_mul_i32 s{T0}, s{T0}, 55296\ns_lshl_b32 s{T5}, s{sWAVE}, 10\ns_add_u32 s{T0}, s{T0}, s{T5}\ns_add_u32 s{T0}, s{T0}, {WS_H}")
            k(f"v_add_u32 v{10+nb}, s{T0}, v6")
        k(f"s_cmp_eq_u32 s{sWAVE}, 0\ns_cselect_b32 s{T0}, 40, 39\ns_mul_i32 s{T1}, s{sWAVE}, {41*self.opt['FSZ']}\ns_add_u32 s{T1}, s{T1}, {WS_FZ}")
        k(f"v_min_u32 v196, s{T0}, v1\nv_mul_u32_u24 v196, {self.opt['FSZ']}, v196\nv_add_u32 v196, s{T1}, v196")
        k(f"s_lshl_b32 s{T0}, s{sRB2}, 8\ns_lshl_b32 s{T1}, s{sWAVE}, 15\ns_add_u32 s{T0}, s{T0}, s{T1}\ns_add_u32 s{T0}, s{T0}, {WS_Z}")
        k(f"v_lshlrev_b32 v199, 13, v2\nv_lshl_add_u32 v199, v5, 4, v199\nv_add_u32 v199, s{T0}, v199")
        k(f"v_bfe_u32 v200, v1, 2, 2\nv_lshlrev_b32 v201, 10, v2\nv_lshl_add_u32 v201, v200, 7, v201")
        k(f"v_lshrrev_b32 v200, 1, v200\nv_and_b32 v7, 1, v2\nv_lshl_or_b32 v200, v7, 1, v200\nv_xor_b32 v200, s{sWAVE}, v200\nv_lshl_add_u32 v201, v200, 5, v201")
        k(f"v_and_b32 v200, 3, v1\nv_lshl_add_u32 v201, v200, 3, v201\nv_add_u32 v200, {L_Z}, v201\nv_add_u32 v201, {L_Z + 40960}, v201")
        k(f"v_add_u32 v202, {L_G}, v6")
        k(f"s_mul_i32 s{T0}, s{sWAVE}, 2560\ns_add_u32 s{F4}, s{T0}, {L_XR}\nv_mul_u32_u24 v243, 160, v5\nv_add_u32 v243, s{F4}, v243")
        k(f"v_lshl_add_u32 v244, v7, 3, v243\nv_lshrrev_b32 v7, 1, v2\nv_mul_u32_u24 v7, 80, v7\nv_add3_u32 v244, v244, v7, 64\nv_lshl_add_u32 v243, v2, 3, v243")
        k(f"v_add_u32 v197, s{F4}, v6\ns_mul_i32 s{T0}, s{sWAVE}, {16*40960}\ns_add_u32 s{T0}, s{T0}, s{sXRB}")
        for n in range(3):
            k(f"v_add_u32 v7, {64*n}, v1\nv_mul_u32_u24 v2, 6554, v7\nv_lshrrev_b32 v2, 16, v2\nv_mul_u32_u24 v198, 10, v2\nv_sub_u32 v7, v7, v198")
            k(f"v_mul_u32_u24 v2, 40960, v2\nv_cmp_lt_u32 vcc, 4, v7\nv_lshl_add_u32 v2, v7, 4, v2\nv_add_u32 v7, 560, v2\nv_cndmask_b32 v2, v2, v7, vcc")
            k(f"v_add_u32 v{240+n}, s{T0}, v2")
        if self.opt.get("OUTD"):
            k(f"v_mul_u32_u24 v7, 40960, v5\nv_add_u32 v7, s{T0}, v7\nv_lshrrev_b32 v2, 4, v1\nv_lshl_add_u32 v248, v2, 3, v7")
            k(f"v_and_b32 v198, 1, v2\nv_lshl_add_u32 v249, v198, 3, v7\nv_lshrrev_b32 v2, 1, v2\nv_mul_u32_u24 v2, 640, v2\nv_add3_u32 v249, v249, v2, 64")
        k(f"v_lshlrev_b32 v5, 3, v5\ns_lshl_b32 s{F3}, s{sWAVE}, 10")
        with k.atomic():
            k(f"s_lshl_b32 s{T0}, s{sRB2}, 5\nv_add_u32 v7, s{T0}, v4\nv_mul_u32_u24 v7, {self.opt['FSH']}, v7\nv_add_u32 v7, {WS_FH}, v7")
            self.t_fh = self.poll_issue([(7, 14)])
        return k.end()

    def tail(self):
        k = self.k
        o = self.opt
        ACC, HB, XR_, EO, ZB = 16, 96, 208, 160, 180
        HD = o['HD']
        NBUF = HD + 1
        self.stamp("fhok")
        th = {}

        def cap(f):
            k.begin()
            f()
            return k.end()

        def hload(i):
            k.begin()
            if i == 13:
                L = k.lab("L_h13")
                with k.atomic():
                    k(f"s_cmp_ge_u32 s{sWAVE}, 2\ns_cbranch_scc1 {L}\ns_mov_b32 s{F0}, {13*4096}")
                    for nb in range(4):
                        th[i] = k.vmem(f"buffer_load_dwordx4 {V(HB+16*(i%NBUF)+4*nb,4)}, v{10+nb}, s[{sWS}:{sWS+3}], s{F0} offen sc1", opt=True)
                    k(f"{L}:")
                return k.end()
            for nb in range(4):
                th[i] = k.vmem(f"buffer_load_dwordx4 {V(HB+16*(i%NBUF)+4*nb,4)}, v{10+nb}, s[{sWS}:{sWS+3}], s{sRI(i)} offen sc1")
            return k.end()
        for i in range(HD):
            k.put(hload(i))
        FZR = [(196, 203)]
        tz = []

        def zd():
            for ks in range(20):
                with k.atomic():
                    k(f"s_add_u32 m0, s{F3}, {L_Z + ks*4096}\ns_mov_b32 s{F1_}, {ks*16*8192}")
                    tz.append(k.vmem(f"buffer_load_dwordx4 v199, s[{sWS}:{sWS+3}], s{F1_} offen sc1 lds"))
        zq = cap(zd)

        def xres():
            for n in range(3):
                with k.atomic():
                    k(f"s_add_u32 m0, s{F4}, {1024*n}")
                    if n == 2:
                        k("s_mov_b32 exec_hi, 0")
                    k.vmem(f"buffer_load_dwordx4 v{240+n}, s[{sX}:{sX+3}], 0 offen lds")
                    if n == 2:
                        k("s_mov_b32 exec_hi, -1")

        def stat():
            with k.atomic():
                k(f"s_lshl_b32 s{T0}, s{sRB2}, 6\ns_lshl_b32 s{T1}, s{sWAVE}, 4\ns_add_u32 s{T0}, s{T0}, s{T1}\ns_lshl_b32 s{T0}, s{T0}, 3\ns_add_u32 s{T0}, s{T0}, {WS_ST}")
                self.t_stat = k.vmem(f"buffer_load_dword v206, v5, s[{sWS}:{sWS+3}], s{T0} offen sc1")
        xq = cap(xres)
        lateq = [(i, self.w2_loads([i])) for i in range(o.get("W2LATE", 14), 14)]
        FZ = o["FZAT"]
        for i in range(14):
            fill = []
            if lateq and i % o.get("W2LS", 1) == 0:
                assert lateq[0][0] >= i + HD
                fill += lateq.pop(0)[1]
            if i + HD < 14:
                fill += hload(i + HD)
            if i >= o.get("XRAT", 2) and xq:
                fill.append(xq.pop(0))
            if i == FZ:
                fill += cap(lambda: setattr(self, "t_fz", self.poll_issue(FZR)))
            if i == FZ + 2:
                fill = cap(lambda: (self.stamp("fza"), self.poll_check(FZR, self.t_fz), self.stamp("fzb"))) + cap(stat) + fill
            if FZ + 2 <= i < 13:
                nz = o.get('NZ', 5)
                fill += zq[:nz]
                zq = zq[nz:]
            rd = []
            if 1 <= i <= 12:
                rd = cap(lambda: [k.ds(f"ds_read_b128 {A(4*q,4)}, v202 offset:{1024*q}") for q in range(5 * (i - 1), 5 * i)])
            if i == 13:
                L13 = k.lab("L_s13")
                k.put(zq[:o.get("NZ13", 5)])
                zq = zq[o.get("NZ13", 5):]
                snap = k.snapshot()
                k(f"s_cmp_ge_u32 s{sWAVE}, 2\ns_cbranch_scc1 {L13}")
            k.wait_vm(th[i])
            self.stamp(f"s{i}")
            pos = {}
            for n_, u in enumerate(fill):
                pos.setdefault(1 + n_ * 19 // max(len(fill), 1), []).append(u)
            for n_, u in enumerate(rd):
                pos.setdefault(2 + 4 * n_, []).append(u)
            n = 0
            for nb in (range(4) if i < 13 else (1, 2, 3, 0)):
                for b in range(5):
                    if "g2mm" in o.get("SKIP", "") and i and b:
                        n += 1
                        k.put(pos.pop(n, []))
                        continue
                    D = V(ACC + 20 * nb + 4 * b, 4)
                    k(f"v_mfma_f32_16x16x32_bf16 {D}, {self.w2reg(i,b)}, {V(HB+16*(i%NBUF)+4*nb,4)}, {'0' if i == 0 else D}")
                    n += 1
                    k.put(pos.pop(n, []))
            assert not pos
            if i == 13:
                k(f"{L13}:")
                k.restore(snap)
        self.stamp("g2")
        L = k.lab("L_gen")
        with k.atomic():
            k(f"s_cmp_lg_u32 s{sC}, 0\ns_cbranch_scc1 {L}")
            self.flag_store(f"s_mov_b32 s{T0}, {WS_GEN}", T0, 8)
            k(f"{L}:")
        for nb in range(1, 4):
            k(f"s_add_u32 s{T0}, s{sWAVE}, {nb}\ns_and_b32 s{T0}, s{T0}, 3\ns_mul_i32 s{T0}, s{T0}, 15360\ns_add_u32 s{T0}, s{T0}, {L_RED + (nb-1)*5120}")
            k(f"v_add_u32 v{10+nb}, s{T0}, v6")
        k(f"s_mul_i32 s{T0}, s{sWAVE}, 15360\ns_add_u32 s{T0}, s{T0}, {L_RED}\nv_add_u32 v10, s{T0}, v6")

        def zread(ks):
            base, off = (200, ks * 4096) if ks < 10 else (201, (ks - 10) * 4096)
            return [k.ds(f"ds_read_b64_tr_b16 {V(ZB+4*(ks&3)+2*jj,2)}, v{base} offset:{off+512*jj}") for jj in range(2)][-1]

        def idft(k0, k1, valu, per, tk):
            for ks in range(k0, k1):
                k.wait_lg(tk[ks])
                P = ks // 10
                for blk in range(3):
                    d = EO + (16 if blk == 2 else 8 * P + 4 * blk)
                    first = (ks % 10 == 0) if blk < 2 else ks == 0
                    k(f"v_mfma_f32_16x16x32_bf16 {V(d,4)}, {A(4*(3*ks+blk),4)}, {V(ZB+4*(ks&3),4)}, {'0' if first else V(d,4)}")
                    if blk == 0 and ks + 3 < 20:
                        tk[ks + 3] = zread(ks + 3)
                    else:
                        k.put(valu[:per])
                        del valu[:per]
            k.put(valu)
        loff = (0, 32, 80, 112, 0)
        k.drain_lg()
        k("s_barrier")
        self.stamp("red0")
        k.begin()
        for nb in range(1, 4 if "red" not in o.get("SKIP", "") else 1):
            for b in range(5):
                k.ds(f"ds_write_b128 v{10+nb}, {V(ACC+20*nb+4*b,4)} offset:{1024*b}")
        k.weave(k.end(), zq)
        self.stamp("redw")
        k.wait_vm(self.t_stat)
        for b in range(5):
            tx = k.ds(f"ds_read_b64 {V(XR_+2*b,2)}, v{244 if b == 4 else 243} offset:{loff[b]}")
        k("v_and_b32 v14, 0xffff0000, v206\nv_rcp_f32 v14, v14")
        k(f"s_nop 0\nv_mul_f32 v15, {fl(-math.log2(math.e))}, v14\nv_mul_f32 v14, {fl(2.0/(640*2048))}, v14")
        k.wait_vm(tz[19])
        k.drain_lg()
        k("s_barrier")
        self.stamp("red")
        K0 = o.get("IK0", 4)
        tk0 = {ks: zread(ks) for ks in range(3)}
        toks = [k.ds(f"ds_read_b128 {V(HB+4*q,4)}, v10 offset:{1024*q}") for q in range(15)]
        k.begin()
        for i in range(10):
            k(f"v_lshlrev_b32 v{ACC+20+2*i}, 16, v{XR_+i}\nv_and_b32 v{ACC+21+2*i}, 0xffff0000, v{XR_+i}")
        idft(0, K0, k.end(), 1, tk0)
        for s_ in range(3):
            k.wait_lg(toks[5 * s_ + 4])
            for i in range(0, 20, 2):
                k(f"v_pk_add_f32 {V(ACC+i,2)}, {V(ACC+i,2)}, {V(HB+20*s_+i,2)}")
        for i in range(0, 20, 2):
            k(f"v_pk_mul_f32 {V(HB+i,2)}, {V(ACC+i,2)}, v[14:15] op_sel:[0,1] op_sel_hi:[1,1]")
        for i in range(0, 20, 2):
            k(f"v_pk_mul_f32 {V(ACC+i,2)}, {V(ACC+i,2)}, v[14:15] op_sel_hi:[1,0]")
        k.begin()
        for i in range(20):
            k(f"v_exp_f32 v{HB+i}, v{HB+i}")
        for i in range(21):
            k((f"v_add_f32 v{HB+i}, 1.0, v{HB+i}\n" if i < 20 else "") + (f"v_rcp_f32 v{HB+i-1}, v{HB+i-1}" if i else ""))
        idft(K0, 20, k.end(), 1, tk0)
        self.stamp("idft")
        for i in range(0, 20, 2):
            k(f"v_pk_mul_f32 {V(ACC+i,2)}, {V(ACC+i,2)}, {V(HB+i,2)}")
        for b in range(5):
            for r in range(0, 4, 2):
                t = 10 + r
                if b < 4:
                    e, o_ = V(EO + 4 * (b & 1) + r, 2), V(EO + 8 + 4 * (b & 1) + r, 2)
                    k(f"v_pk_add_f32 {V(t,2)}, {e}, {o_}" + (" neg_lo:[0,1] neg_hi:[0,1]" if b >= 2 else ""))
                    src = V(t, 2)
                else:
                    src = V(EO + 16 + r, 2)
                k(f"v_pk_fma_f32 {V(t,2)}, {src}, {V(ACC+4*b+r,2)}, {V(ACC+20+4*b+r,2)}")
                k(f"v_cvt_pk_bf16_f32 v{HB+2*b+r//2}, v{t}, v{t+1}")
            if o.get("OUTD"):
                k.vmem(f"buffer_store_dwordx2 {V(HB+2*b,2)}, v{249 if b == 4 else 248}, s[{sOUT}:{sOUT+3}], 0 offen offset:{(0, 32, 640, 672, 0)[b]} {o.get('OST', '')}")
            else:
                k.ds(f"ds_write_b64 v{244 if b == 4 else 243}, {V(HB+2*b,2)} offset:{loff[b]}")
        if o.get("OUTD"):
            return
        self.stamp("fin")
        k.drain_lg()
        toks = [k.ds(f"ds_read_b128 {V(HB+12+4*n,4)}, v197 offset:{1024*n}") for n in range(3)]
        for n in range(3):
            k.wait_lg(toks[n])
            if n == 2:
                k("s_mov_b32 exec_hi, 0")
            k.vmem(f"buffer_store_dwordx4 {V(HB+12+4*n,4)}, v{240+n}, s[{sOUT}:{sOUT+3}], 0 offen {o.get('OST', '')}")
        k("s_mov_b32 exec_hi, -1")

    def build(self):
        k = self.k
        self.startup()
        o = self.opt
        self.stamp("iss0")
        self.setup_a()
        self.geometry()
        self.stamp("setup")
        k.put(self.role)
        if not o.get("CEARLY", 1):
            k.put(self.const_loads())
        fill = []
        for ch in o.get("P1ORD", "t0"):
            fill += self.dma_chunk(0) if ch == "0" else self.table_loads()
        self.n_fast = len(fill)
        for c in range(1, o["P1DMA"]):
            fill += self.dma_chunk(c)
        self.p1_fill = fill
        self.phase1()
        Ln, Lw, Lg = k.lab("L_narrow"), k.lab("L_widejob"), k.lab("L_join")
        k(f"s_cmp_lg_u32 s{sVAR}, 0\ns_cbranch_scc1 {Ln}")
        k(f"s_cmp_eq_u32 s{sC}, 0\ns_cbranch_scc1 {Lw}")
        snap = k.snapshot()
        tch = dict(self.t_chunk)
        self.middle_nojob(*self.gemm1(4, False))
        k(f"s_branch {Lg}")
        k(f"{Lw}:")
        k.restore(snap)
        self.t_chunk = dict(tch)
        self.middle_job(*self.gemm1(4, True))
        k(f"s_branch {Lg}")
        k(f"{Ln}:")
        k.restore(snap)
        self.t_chunk = dict(tch)
        self.middle_job(*self.gemm1(3, True))
        k(f"{Lg}:")
        k.all_opt()
        k.clear_lg()
        self.tail()
        self.finish()
        body = k.text(self.opt.get('ALIGN', 1), f'{KN}:\n.set tab_data, {KN}+0x12340\n.set tab_end, {KN}+0x23450\n.set tab_pf, {KN}+0x23000\n')
        hdr = open("recurrent_scan__spectral_gfnet__dense_activation_relu__prompt.s.ref").read().split("; Override launch")[0]
        s = hdr + f"; @launch grid=(256,1,1) block=(256,1,1) lds={LDS_BYTES}\n"
        s += NOTES
        s += f'.amdgcn_target "amdgcn-amd-amdhsa--gfx950"\n.text\n.globl {KN}\n.p2align 8\n.type {KN},@function\n{KN}:\n'
        s += body
        s += ".p2align 8\n.type tab_data,@object\ntab_data:\n"
        for f in tables()[:12]:
            u = bf16(f).reshape(-1).view(np.uint32)
            for i in range(0, 256, 8):
                s += ".long " + ",".join("0x%x" % x for x in u[i:i + 8]) + "\n"
        u = np.concatenate([lane_table().reshape(-1), lane_table2(), wg_table(self.opt).reshape(-1)])
        for i in range(0, len(u), 8):
            s += ".long " + ",".join("0x%x" % x for x in u[i:i + 8]) + "\n"
        s += f"tab_end:\n.set tab_pf, tab_data + {TAB_WG}\n.size tab_data, {TAB_BYTES}\n"
        s += f""".section .rodata,"a"
.p2align 6
.amdhsa_kernel {KN}
  .amdhsa_next_free_vgpr 512
  .amdhsa_next_free_sgpr 102
  .amdhsa_accum_offset 256
  .amdhsa_group_segment_fixed_size 0
  .amdhsa_kernarg_size 72
  .amdhsa_user_sgpr_count 2
  .amdhsa_user_sgpr_kernarg_segment_ptr 1
  .amdhsa_system_sgpr_workgroup_id_x 1
.end_amdhsa_kernel
"""
        return s


if __name__ == "__main__":
    out = sys.argv[1] if len(sys.argv) > 1 else "k.s"
    stop = sys.argv[2] if len(sys.argv) > 2 and sys.argv[2] != "-" else None
    g = Gen(stop=stop, stamps=(len(sys.argv) > 3 and sys.argv[3] == "1"))
    open(out, "w").write(g.build())
    print("written", out, "nops inserted", fix_hazards.total, "align", getattr(align8, "stats", None), "stamps", g.stn)
```

```python
import sys, json
from gen import *
for a in sys.argv[1:]:
    name, js = a.split("=", 1)
    g = Gen(stamps=True, **json.loads(js))
    open(f"exp/{name}.s", "w").write(g.build())
    print(name, g.stn)
```
